```python
import torch

def _softmax(x, axis=-1):
    return torch.softmax(x, dim=axis)
def _gelu(x):
    return torch.nn.functional.gelu(x, approximate="tanh")
def _silu(x):
    return torch.nn.functional.silu(x)
def _sigmoid(x):
    return torch.sigmoid(x)
def _layernorm(x, axis=-1, eps=1e-5):
    m = x.mean(dim=axis, keepdim=True)
    v = x.var(dim=axis, keepdim=True, unbiased=False)
    return (x - m) / torch.sqrt(v + eps)
def _scatter_add(tgt, idx, src, axis=0):
    return tgt.clone().index_add_(axis, idx, src)
def _segment_sum(src, seg, n):
    out = torch.zeros((n,) + src.shape[1:], dtype=src.dtype)
    return out.index_add_(0, seg, src)
def _pad(x, pw):
    flat = tuple(v for pair in reversed(pw) for v in pair)
    return torch.nn.functional.pad(x, flat)

kernel_name = 'gather_scatter__mpnn_edge_mlp__graph'

def setup_inputs():

    _w = (lambda a: (lambda t: t.to(torch.bfloat16) if t.is_floating_point() else t)(torch.as_tensor(a)))
    N, deg, D, De = 25000, 32, 64, max(0, 1)
    E = N * deg
    return {
        "x": _w((lambda *s: torch.randn(*s, dtype=torch.bfloat16) * 0.05)(N, D)),
        "e_attr": _w((lambda *s: torch.randn(*s, dtype=torch.bfloat16) * 0.4)(E, De)),
        "src": _w((lambda lo, hi, *s: torch.randint(lo, hi, s))(0, N, E).to(torch.int64)),
        "dst": _w((lambda lo, hi, *s: torch.randint(lo, hi, s))(0, N, E).to(torch.int64)),
        "w_msg": _w((lambda *s: torch.randn(*s, dtype=torch.bfloat16) * 0.4)(2 * D + De, D)),
        "w_upd": _w((lambda *s: torch.randn(*s, dtype=torch.bfloat16) * 0.05)(2 * D, D)),
    }

def reference(x, e_attr, src, dst, w_msg, w_upd):
    N, D = x.shape
    m_in = torch.concatenate([x[src], x[dst], e_attr], axis=-1)
    msg = _silu(m_in @ w_msg)
    agg = _segment_sum(msg, dst, N)
    return _silu(torch.concatenate([x, agg], axis=-1) @ w_upd)
```

```python
import sys

N = 25000; E = 800000; NB = 98; NBK = 256; CH = 3200; NCH = 250
P_OFF = 0; P_SIZE = N * 128
REC_OFF = 0x320000; REC_SIZE = E * 8
DESC_OFF = 0x940000; DESC_SIZE = NCH * 1024
FLG_OFF = 0x980000; NTILE = 782
FRAG_OFF = 0x982000; FRAG_SIZE = 24576
NLOG2E = 0xbfb8aa3b
NLN2 = 0xbf317218
TEN = 0x41200000
DUMMY = 0x00FFFF80

K1_SORT = NCH
K1_PW = 98
K1_PREP = 3
K1_GRID = K1_SORT + K1_PW + K1_PREP
K1_LDS = 30720

SLOT = 0
PART = 66816
QT = PART + 226 * 256
CNT = QT + 112 * 256
OFFS = CNT + 512
FLAGS = OFFS + 640
K2_LDS = FLAGS + 128
AGG = SLOT; AGG_STRIDE = 144

L = []
def o(s): L.append("    " + s)
def lab(s): L.append(s + ":")
def c(s): L.append("    ; " + s)
def vr(a, n): return f"v[{a}:{a+n-1}]"
def sr(a, n): return f"s[{a}:{a+n-1}]"

def srd(d, base_lo, off=None, size=None, off_s=None):
    if off is None and off_s is None:
        o(f"s_mov_b32 s{d}, s{base_lo}")
        o(f"s_mov_b32 s{d+1}, s{base_lo+1}")
    else:
        first = True
        for x in (off, off_s):
            if x is None: continue
            src_lo = f"s{base_lo}" if first else f"s{d}"
            src_hi = f"s{base_lo+1}" if first else f"s{d+1}"
            xs = x if isinstance(x, str) else str(x)
            o(f"s_add_u32 s{d}, {src_lo}, {xs}")
            o(f"s_addc_u32 s{d+1}, {src_hi}, 0")
            first = False
    o(f"s_mov_b32 s{d+2}, {size}")
    o(f"s_mov_b32 s{d+3}, 0x20000")

def wave_scan_add(v):
    for sh in (1, 2, 4, 8):
        o("s_nop 1")
        o(f"v_add_u32_dpp v{v}, v{v}, v{v} row_shr:{sh} row_mask:0xf bank_mask:0xf bound_ctrl:0")
    o("s_nop 1")
    o(f"v_add_u32_dpp v{v}, v{v}, v{v} row_bcast:15 row_mask:0xa bank_mask:0xf")
    o("s_nop 1")
    o(f"v_add_u32_dpp v{v}, v{v}, v{v} row_bcast:31 row_mask:0xc bank_mask:0xf")

def kernarg():
    o("s_load_dwordx16 s[4:19], s[0:1], 0")
    o("s_load_dwordx2 s[20:21], s[0:1], 64")
    o("v_lshrrev_b32 v1, 6, v0")
    o("s_nop 0")
    o("v_readfirstlane_b32 s22, v1")
    o("s_waitcnt lgkmcnt(0)")

def gen_k1():
    L.append(".globl mpnn_k1_kernel")
    L.append(".p2align 8")
    L.append(".type mpnn_k1_kernel,@function")
    lab("mpnn_k1_kernel")
    o(f"s_cmp_ge_u32 s2, {K1_GRID}")
    o("s_cbranch_scc1 K1_END")
    kernarg()
    o(f"s_cmp_ge_u32 s2, {K1_SORT}")
    o("s_cbranch_scc1 K1_NOTSORT")
    o("s_cmp_ge_u32 s22, 7")
    o("s_cbranch_scc1 K1_END")
    o("s_mul_i32 s3, s2, 12800")
    srd(24, 8, off_s="s3", size=12800)
    srd(28, 10, off_s="s3", size=12800)
    o("s_mul_i32 s3, s2, 6400")
    srd(32, 6, off_s="s3", size=6400)
    o("v_cmp_gt_u32 vcc, 0x190, v0")
    o("s_mov_b64 s[44:45], vcc")
    o("s_mov_b64 exec, vcc")
    o("v_lshlrev_b32 v1, 4, v0")
    o("v_lshlrev_b32 v2, 3, v0")
    o("v_add_u32 v3, 0x1900, v1")
    o("v_add_u32 v4, 0xc80, v2")
    o("buffer_load_dwordx4 v[16:19], v1, s[28:31], 0 offen")
    o("buffer_load_dwordx4 v[20:23], v3, s[28:31], 0 offen")
    o("buffer_load_dwordx4 v[8:11], v1, s[24:27], 0 offen")
    o("buffer_load_dwordx4 v[12:15], v3, s[24:27], 0 offen")
    o("buffer_load_dwordx2 v[24:25], v2, s[32:35], 0 offen")
    o("buffer_load_dwordx2 v[26:27], v4, s[32:35], 0 offen")
    o("s_mul_i32 s3, s2, 25600")
    srd(36, 20, off=REC_OFF, off_s="s3", size=25600)
    o("s_lshl_b32 s3, s2, 10")
    srd(40, 20, off=DESC_OFF, off_s="s3", size=1024)
    o("s_cmp_lg_u32 s22, 0")
    o("s_cbranch_scc1 K1_S1")
    o("v_mov_b64 v[28:29], 0")
    o("v_mov_b64 v[30:31], 0")
    o("ds_write_b128 v1, v[28:31]")
    o("s_waitcnt lgkmcnt(0)")
    lab("K1_S1")
    o("s_barrier")
    o("v_mov_b32 v5, 1")
    o("s_movk_i32 s46, 98")
    o("s_waitcnt vmcnt(4)")
    for i in range(8):
        d = 16 + i
        o(f"v_mul_u32_u24 v{32+i}, 0xa730, v{d}")
        o(f"v_lshrrev_b32 v{32+i}, 22, v{32+i}")
        o(f"v_mul_u32_u24 v6, s46, v{32+i}")
        o(f"v_sub_u32 v{d}, v{d}, v6")
        o(f"v_lshlrev_b32 v{32+i}, 2, v{32+i}")
        o(f"ds_add_rtn_u32 v{40+i}, v{32+i}, v5")
    o("s_waitcnt vmcnt(0)")
    for i in range(8):
        o(f"v_lshlrev_b32 v{16+i}, 24, v{16+i}")
        o(f"v_lshl_or_b32 v{48+2*i}, v{8+i}, 7, v{16+i}")
        ew = 24 + i // 2
        if i % 2 == 0: o(f"v_lshlrev_b32 v{49+2*i}, 16, v{ew}")
        else: o(f"v_and_b32 v{49+2*i}, 0xffff0000, v{ew}")
    o("s_waitcnt lgkmcnt(0)")
    o("s_barrier")
    o("s_mov_b64 exec, -1")
    o("v_and_b32 v6, 63, v0")
    o("v_lshlrev_b32 v6, 4, v6")
    o("ds_read_b128 v[8:11], v6")
    o("s_waitcnt lgkmcnt(0)")
    o("v_add_u32 v12, v8, v9")
    o("v_add_u32 v13, v12, v10")
    o("v_add_u32 v14, v13, v11")
    o("v_mov_b32 v15, v14")
    wave_scan_add(15)
    o("v_sub_u32 v15, v15, v14")
    o("v_add_u32 v16, v15, v8")
    o("v_add_u32 v17, v15, v12")
    o("v_add_u32 v18, v15, v13")
    o("s_movk_i32 s46, 0x800")
    o("v_lshl_add_u32 v20, v15, 3, s46")
    o("v_lshl_add_u32 v21, v16, 3, s46")
    o("v_lshl_add_u32 v22, v17, 3, s46")
    o("v_lshl_add_u32 v23, v18, 3, s46")
    o("ds_write_b128 v6, v[20:23] offset:1024")
    o("s_cmp_lg_u32 s22, 0")
    o("s_cbranch_scc1 K1_S2")
    o("v_lshl_or_b32 v24, v8, 16, v15")
    o("v_lshl_or_b32 v25, v9, 16, v16")
    o("v_lshl_or_b32 v26, v10, 16, v17")
    o("v_lshl_or_b32 v27, v11, 16, v18")
    o("buffer_store_dwordx4 v[24:27], v6, s[40:43], 0 offen")
    lab("K1_S2")
    o("s_mov_b64 exec, s[44:45]")
    o("s_waitcnt lgkmcnt(0)")
    for i in range(8):
        o(f"ds_read_b32 v{32+i}, v{32+i} offset:1024")
    for i in range(8):
        o(f"s_waitcnt lgkmcnt({7-i})" if i < 7 else "s_waitcnt lgkmcnt(0)")
        o(f"v_lshl_add_u32 v{32+i}, v{40+i}, 3, v{32+i}")
    for i in range(8):
        o(f"ds_write_b64 v{32+i}, v[{48+2*i}:{49+2*i}]")
    o("s_mov_b64 exec, -1")
    o("v_lshlrev_b32 v1, 4, v0")
    o("v_add_u32 v2, 0x1c00, v1")
    o("v_add_u32 v3, 0x3800, v1")
    o("v_add_u32 v4, 0x5400, v1")
    o("s_waitcnt lgkmcnt(0)")
    o("s_barrier")
    for m in range(4):
        o(f"ds_read_b128 v[{8+4*m}:{11+4*m}], v1 offset:{2048+m*7168}")
    for m in range(4):
        o(f"s_waitcnt lgkmcnt({3-m})")
        o(f"buffer_store_dwordx4 v[{8+4*m}:{11+4*m}], v{1+m}, s[36:39], 0 offen")
    o("s_endpgm")

    lab("K1_NOTSORT")
    o(f"s_cmp_ge_u32 s2, {K1_SORT+K1_PW}")
    o("s_cbranch_scc1 K1_PREP")
    o(f"s_sub_u32 s3, s2, {K1_SORT}")
    o("s_lshl_b32 s3, s3, 3")
    o("s_add_u32 s3, s3, s22")
    o(f"s_cmp_ge_u32 s3, {NTILE}")
    o("s_cbranch_scc1 K1_END")
    srd(24, 4, size=N*128)
    srd(28, 12, size=129*128)
    srd(32, 20, off=P_OFF, size=P_SIZE)
    srd(36, 20, off=FLG_OFF, size=NTILE*4)
    o("v_and_b32 v1, 31, v0")
    o("v_bfe_u32 v2, v0, 5, 1")
    o("s_lshl_b32 s23, s3, 12")
    o("v_lshlrev_b32 v3, 7, v1")
    o("v_add_u32 v3, s23, v3")
    o("v_lshl_add_u32 v4, v2, 4, v3")
    for kc in range(4):
        o(f"buffer_load_dwordx4 v[{8+4*kc}:{11+4*kc}], v4, s[24:27], 0 offen offset:{kc*32}")
    o("v_bfe_u32 v5, v1, 2, 1")
    o("v_lshlrev_b32 v5, 4, v5")
    o("v_and_b32 v6, 3, v1")
    o("v_add_u32 v5, v5, v6")
    o("v_lshrrev_b32 v6, 3, v1")
    o("v_lshl_add_u32 v5, v6, 2, v5")
    o("v_lshlrev_b32 v5, 2, v5")
    o("v_lshl_add_u32 v5, v2, 10, v5")
    o("v_add_u32 v6, 0x1000, v5")
    for kc in range(4):
        for t in range(8):
            off = kc * 2048 + t * 128
            a = "v5" if off < 4096 else "v6"
            o(f"buffer_load_dword v{32+8*kc+t}, {a}, s[28:31], 0 offen offset:{off%4096}")
    o("s_mov_b32 s40, 0x05040100")
    o("s_mov_b32 s41, 0x07060302")
    o("v_lshl_add_u32 v4, v2, 6, v3")
    for kc in range(4):
        o(f"s_waitcnt vmcnt({24-8*kc})")
        for m in range(4):
            a, b = 32 + 8*kc + 2*m, 33 + 8*kc + 2*m
            o(f"v_perm_b32 v{64+8*kc+m}, v{b}, v{a}, s40")
            o(f"v_perm_b32 v{68+8*kc+m}, v{b}, v{a}, s41")
        o("s_nop 1")
        cl = "0" if kc == 0 else "v[96:111]"
        ch = "0" if kc == 0 else "v[112:127]"
        o(f"v_mfma_f32_32x32x16_bf16 v[96:111], v[{64+8*kc}:{67+8*kc}], v[{8+4*kc}:{11+4*kc}], {cl}")
        o(f"v_mfma_f32_32x32x16_bf16 v[112:127], v[{68+8*kc}:{71+8*kc}], v[{8+4*kc}:{11+4*kc}], {ch}")
    o(f"s_mov_b32 s42, 0x{NLOG2E:08x}")
    o("s_mov_b32 s43, s42")
    o("s_mov_b32 s44, 0x7fff0000")
    o("s_mov_b32 s45, 0x80000000")
    o("s_nop 7")
    o("s_nop 7")
    for r in range(0, 32, 2):
        o(f"v_pk_mul_f32 v[{96+r}:{97+r}], v[{96+r}:{97+r}], s[42:43]")
    o("v_mov_b32 v7, 0")
    for r in range(0, 32, 2):
        o(f"v_max3_f32 v7, |v{96+r}|, |v{97+r}|, v7")
    o("v_mov_b32 v6, 0")
    for r in range(0, 32, 2):
        o(f"v_fma_f32 v6, v{96+r}, 0, v6")
        o(f"v_fma_f32 v6, v{97+r}, 0, v6")
    o("v_add_f32 v7, v7, v6")
    o(f"v_cmp_ngt_f32 vcc, 0x{TEN:08x}, v7")
    o("s_cmp_lg_u64 vcc, 0")
    o("s_cselect_b32 s46, 1, 0")
    o("v_mov_b32 v6, s46")
    o("s_lshl_b32 s47, s3, 2")
    o("v_mov_b32 v5, s47")
    o("buffer_store_dword v6, v5, s[36:39], 0 offen")
    for r in range(16):
        lo, hi, w = 96 + r, 112 + r, 32 + r
        o(f"v_cvt_pk_bf16_f32 v{w}, v{lo}, v{lo}")
        o(f"v_and_b32 v{w}, 0xffff, v{w}")
        o(f"v_and_b32 v48, 0x7fffffff, v{hi}")
        o(f"v_add_u32 v48, 0x8000, v48")
        o(f"v_sub_u32 v48, v48, v{w} clamp")
        o(f"v_and_or_b32 v{w}, v{hi}, s45, v{w}")
        o(f"v_bfi_b32 v{w}, s44, v48, v{w}")
        if r % 4 == 3:
            m = r // 4
            o(f"buffer_store_dwordx4 v[{32+4*m}:{35+4*m}], v4, s[32:35], 0 offen offset:{16*m}")
    o("s_endpgm")

    lab("K1_PREP")
    o(f"s_sub_u32 s3, s2, {K1_SORT+K1_PW}")
    o("s_lshl_b32 s3, s3, 3")
    o("s_add_u32 s3, s3, s22")
    srd(32, 20, off=FRAG_OFF, size=FRAG_SIZE)
    o("v_and_b32 v1, 63, v0")
    o("v_and_b32 v2, 3, v1")
    o("v_bfe_u32 v3, v1, 2, 2")
    o("v_lshrrev_b32 v4, 4, v1")
    o("s_cmp_ge_u32 s3, 8")
    o("s_cbranch_scc1 K1_PREP_U")
    srd(28, 12, size=129*128)
    o("s_lshr_b32 s40, s3, 2")
    o("s_bfe_u32 s41, s3, 0x10001")
    o("s_and_b32 s42, s3, 1")
    o("s_lshl_b32 s40, s40, 5")
    o("s_sub_u32 s41, 1, s41")
    o("s_add_u32 s40, s40, s41")
    o("s_lshl_b32 s42, s42, 5")
    o("s_add_u32 s42, s42, 64")
    o("v_lshlrev_b32 v2, 1, v2")
    o("s_branch K1_PREP_GO")
    lab("K1_PREP_U")
    srd(28, 14, size=128*128)
    o("s_sub_u32 s43, s3, 8")
    o("s_lshr_b32 s40, s43, 3")
    o("s_bfe_u32 s41, s43, 0x10002")
    o("s_and_b32 s42, s43, 3")
    o("s_lshl_b32 s40, s40, 5")
    o("s_lshl_b32 s41, s41, 2")
    o("s_add_u32 s40, s40, s41")
    o("s_lshl_b32 s42, s42, 5")
    lab("K1_PREP_GO")
    o("v_lshl_add_u32 v5, v3, 3, v2")
    o("v_add_u32 v5, s40, v5")
    o("v_lshl_add_u32 v6, v4, 3, s42")
    o("v_lshlrev_b32 v6, 7, v6")
    o("v_lshl_add_u32 v5, v5, 1, v6")
    for t in range(8):
        o(f"buffer_load_ushort v{8+t}, v5, s[28:31], 0 offen offset:{t*128}")
    o("s_lshl_b32 s40, s3, 10")
    o("v_lshl_add_u32 v6, v1, 4, s40")
    o("s_waitcnt vmcnt(0)")
    for m in range(4):
        o(f"v_lshl_or_b32 v{16+m}, v{9+2*m}, 16, v{8+2*m}")
    o("buffer_store_dwordx4 v[16:19], v6, s[32:35], 0 offen")
    lab("K1_END")
    o("s_endpgm")

vJ16, vQC, vOC, vSLOT, vQA, vQAN, vT0 = 1, 2, 3, 4, 5, 6, 7
W, ACC, A, DESC, GA, RA, RB, PA, PB, Q, NN, D, T, EE = 8, 16, 24, 32, 36, 40, 48, 56, 72, 88, 96, 104, 112, 120
sX, sP, sREC, sDESC, sFLG, sFRAG, sWM, sOUT = 24, 28, 32, 36, 40, 44, 48, 52
sMASK = 56
sQN, sS, sBASE, sREM, sRW, sCNT, sK, sM24 = 72, 73, 74, 75, 76, 77, 78, 79
sVIO = 82
sSLOW, sMORE, sRND = 84, 85, 23

def gathers(R, P):
    for i in range(4):
        o(f"v_and_or_b32 v{GA+i}, v{R+2*i}, s{sM24}, v{vJ16}")
        o(f"buffer_load_dwordx4 {vr(P+4*i,4)}, v{GA+i}, {sr(sP,4)}, 0 offen")

def pk(op, d, *src, mods=""):
    o(f"v_pk_{op}_f32 {vr(d,2)}, " + ", ".join(src) + (" " + mods if mods else ""))

def compute_quad(R, RN, P, slow):
    for i in range(4):
        TT = NN if (i == 0 and not slow) else T
        for p in range(4):
            pk("fma", TT+2*p, vr(R+2*i,2), vr(W+2*p,2), vr(Q+2*p,2), mods="op_sel:[1,0,0] op_sel_hi:[1,1,1]")
        if i == 3:
            o(f"v_add_u32 v{vT0}, v{vQA}, v{vOC}")
            o(f"v_lshrrev_b32 v{vQAN}, 24, v{RN}")
            o(f"v_lshl_add_u32 v{vQAN}, v{vQAN}, 8, v{vQC}")
            o(f"ds_read_b128 {vr(Q,4)}, v{vQAN}")
            o(f"ds_read_b128 {vr(Q+4,4)}, v{vQAN} offset:128")
            o(f"ds_read_b128 {vr(R,4)}, v{vSLOT}")
            o(f"ds_read_b128 {vr(R+4,4)}, v{vSLOT} offset:16")
            o(f"v_add_u32 v{vSLOT}, 32, v{vSLOT}")
        for k in range(4):
            o(f"v_dot2_f32_bf16 v{TT+4+k}, v{P+4*i+k}, s{sK}, v{TT+4+k}")
        pk("add", TT, vr(P+4*i,2), vr(TT,2))
        pk("add", TT+2, vr(P+4*i+2,2), vr(TT+2,2))
        for k in range(8):
            o(f"v_exp_f32 v{EE+k}, v{TT+k}")
        if slow:
            for p in range(4):
                pk("add", EE+2*p, vr(EE+2*p,2), "1.0", mods="op_sel_hi:[1,0]")
            for k in range(8):
                o(f"v_rcp_f32 v{EE+k}, v{EE+k}")
            o("s_nop 0")
            for p in range(4):
                pk("fma", ACC+2*p, vr(T+2*p,2), vr(EE+2*p,2), vr(ACC+2*p,2))
        elif i == 0:
            for p in range(4):
                pk("add", D+2*p, vr(EE+2*p,2), "1.0", mods="op_sel_hi:[1,0]")
        else:
            for p in range(4):
                pk("fma", NN+2*p, vr(NN+2*p,2), vr(EE+2*p,2), vr(NN+2*p,2))
            for p in range(4):
                pk("fma", NN+2*p, vr(T+2*p,2), vr(D+2*p,2), vr(NN+2*p,2))
            for p in range(4):
                pk("fma", D+2*p, vr(D+2*p,2), vr(EE+2*p,2), vr(D+2*p,2))
    if not slow:
        for k in range(8):
            o(f"v_rcp_f32 v{EE+k}, v{D+k}")
        o("s_nop 0")
        for p in range(4):
            pk("fma", ACC+2*p, vr(NN+2*p,2), vr(EE+2*p,2), vr(ACC+2*p,2))
    o(f"ds_write_b128 v{vT0}, {vr(ACC,4)}")
    o(f"ds_write_b128 v{vT0}, {vr(ACC+4,4)} offset:128")

def gen_main(tag, slow):
    lab(f"K2_MAIN_{tag}")
    o(f"ds_read_b128 {vr(RA,4)}, v{vSLOT}")
    o(f"ds_read_b128 {vr(RA+4,4)}, v{vSLOT} offset:16")
    o(f"ds_read_b128 {vr(RB,4)}, v{vSLOT} offset:32")
    o(f"ds_read_b128 {vr(RB+4,4)}, v{vSLOT} offset:48")
    o(f"v_add_u32 v{vSLOT}, 64, v{vSLOT}")
    for p in range(4):
        o(f"v_mov_b64 {vr(ACC+2*p,2)}, 0")
    o(f"s_sub_u32 s{sCNT}, s{sRW}, 1")
    o("s_waitcnt lgkmcnt(2)")
    gathers(RA, PA)
    o(f"v_lshrrev_b32 v{vQA}, 24, v{RA}")
    o(f"v_lshl_add_u32 v{vQA}, v{vQA}, 8, v{vQC}")
    o(f"ds_read_b128 {vr(Q,4)}, v{vQA}")
    o(f"ds_read_b128 {vr(Q+4,4)}, v{vQA} offset:128")
    for (x, R, RN, P, PN) in (("A", RA, RB, PA, PB), ("B", RB, RA, PB, PA)):
        lab(f"K2_LOOP_{tag}{x}")
        o("s_waitcnt lgkmcnt(0)")
        o(f"s_cmp_eq_u32 s{sCNT}, 0")
        o(f"s_cbranch_scc1 K2_LAST_{tag}{x}")
        gathers(RN, PN)
        o("s_waitcnt vmcnt(4)")
        o(f"s_branch K2_GO_{tag}{x}")
        lab(f"K2_LAST_{tag}{x}")
        o("s_waitcnt vmcnt(0)")
        lab(f"K2_GO_{tag}{x}")
        compute_quad(R, RN, P, slow)
        o(f"s_cmp_eq_u32 s{sCNT}, 0")
        o("s_cbranch_scc1 K2_MAIN_DONE")
        o(f"s_sub_u32 s{sCNT}, s{sCNT}, 1")
        o(f"v_cmp_ne_u32 vcc, v{vQAN}, v{vQA}")
        o(f"v_mov_b32 v{vQA}, v{vQAN}")
        o("s_and_saveexec_b64 s[80:81], vcc")
        o(f"s_cbranch_execz K2_KEEP_{tag}{x}")
        for p in range(4):
            o(f"v_mov_b64 {vr(ACC+2*p,2)}, 0")
        lab(f"K2_KEEP_{tag}{x}")
        o("s_mov_b64 exec, -1")
        if x == "B":
            o(f"s_branch K2_LOOP_{tag}A")

def gen_k2():
    L.append(".globl mpnn_k2_kernel")
    L.append(".p2align 8")
    L.append(".type mpnn_k2_kernel,@function")
    lab("mpnn_k2_kernel")
    o(f"s_cmp_ge_u32 s2, {NBK}")
    o("s_cbranch_scc1 K2_END")
    kernarg()
    srd(sDESC, 20, off=DESC_OFF, size=DESC_SIZE)
    o("v_lshrrev_b32 v7, 4, v0")
    o("v_and_b32 v6, 3, v7")
    o("s_lshl_b32 s3, s22, 4")
    o("v_add_u32 v6, s3, v6")
    o("s_lshl_b32 s3, s2, 2")
    o("v_lshl_add_u32 v72, v6, 10, s3")
    for i in range(1, 4):
        o(f"v_add_u32 v{72+i}, {4096*i}, v72")
    for i in range(4):
        o(f"buffer_load_dword v{DESC+i}, v{72+i}, {sr(sDESC,4)}, 0 offen")
    srd(sX, 4, size=N*128)
    srd(sFRAG, 20, off=FRAG_OFF, size=FRAG_SIZE)
    srd(sWM, 12, size=129*128)
    srd(sFLG, 20, off=FLG_OFF, size=NTILE*4)
    srd(sP, 20, off=P_OFF, size=P_SIZE)
    srd(sREC, 20, off=REC_OFF, size=REC_SIZE)
    srd(sOUT, 16, size=N*128)
    o("s_lshr_b32 s86, s22, 1")
    o("s_and_b32 s87, s22, 1")
    o("s_mul_i32 s3, s2, 98")
    o("s_lshl_b32 s88, s86, 4")
    o("s_add_u32 s3, s3, s88")
    o("s_lshl_b32 s88, s3, 7")
    o("v_and_b32 v76, 15, v0")
    o("v_lshlrev_b32 v76, 7, v76")
    o("v_bfe_u32 v77, v0, 4, 2")
    o("v_lshl_add_u32 v76, v77, 4, v76")
    o("v_add_u32 v76, s88, v76")
    o(f"buffer_load_dwordx4 v[88:91], v76, {sr(sX,4)}, 0 offen")
    o(f"buffer_load_dwordx4 v[92:95], v76, {sr(sX,4)}, 0 offen offset:64")
    o("v_and_b32 v77, 63, v0")
    o("v_lshlrev_b32 v77, 4, v77")
    o("s_lshl_b32 s3, s87, 12")
    o("v_add_u32 v78, s3, v77")
    for f in range(4):
        o(f"buffer_load_dwordx4 {vr(96+4*f,4)}, v78, {sr(sFRAG,4)}, 0 offen offset:{1024*f}")
    o(f"v_and_b32 v{vJ16}, 7, v0")
    o(f"v_lshlrev_b32 v{vJ16}, 4, v{vJ16}")
    o(f"v_add_u32 v79, 0x4000, v{vJ16}")
    o(f"buffer_load_dwordx4 v[120:123], v79, {sr(sWM,4)}, 0 offen")
    o("v_lshlrev_b32 v79, 2, v0")
    o(f"buffer_load_dword v124, v79, {sr(sFLG,4)}, 0 offen")
    o(f"s_movk_i32 s{sK}, 0x3f80")
    o(f"s_mov_b32 s{sM24}, 0xffffff")
    o(f"s_mov_b32 s{sRND}, 0")
    o(f"s_mov_b64 {sr(sVIO,2)}, 0")
    o(f"v_add_u32 v{vQC}, {QT}, v{vJ16}")
    o("v_bfe_u32 v7, v0, 3, 7")
    o(f"v_lshlrev_b32 v{vOC}, 8, v7")
    o(f"v_add_u32 v{vOC}, {(PART-QT) & 0xffffffff}, v{vOC}")
    for p in range(4):
        o(f"v_mov_b64 {vr(A+2*p,2)}, 0")
    o("s_cmp_lg_u32 s22, 15")
    o("s_cbranch_scc1 K2_Z0")
    o("v_and_b32 v7, 63, v0")
    o("v_lshlrev_b32 v7, 3, v7")
    o(f"v_add_u32 v7, {CNT}, v7")
    o(f"ds_write_b64 v7, {vr(A,2)}")
    o(f"v_mov_b32 v7, {FLAGS}")
    o(f"ds_write_b64 v7, {vr(A,2)}")
    o("s_waitcnt lgkmcnt(0)")
    lab("K2_Z0")
    o("s_barrier")
    o("s_waitcnt vmcnt(8)")
    o("s_mov_b32 s89, 1")
    lab("K2_ROUND")
    o("v_and_b32 v7, 15, v0")
    o(f"v_add_u32 v7, s{sRND}, v7")
    o("v_add_u32 v6, 16, v7")
    o("v_bfe_u32 v5, v0, 4, 2")
    o("s_lshl_b32 s3, s22, 4")
    o("v_add_u32 v5, s3, v5")
    o("s_movk_i32 s3, 3200")
    o("v_mad_u32_u24 v5, v5, s3, v7")
    o("v_mov_b32 v4, 0x7fffff00")
    o(f"s_add_u32 s90, s{sRND}, 32")
    o("s_mov_b64 s[92:93], 0")
    for i in range(4):
        o(f"v_lshrrev_b32 v80, 16, v{DESC+i}")
        o(f"v_and_b32 v81, 0xffff, v{DESC+i}")
        o(f"v_add3_u32 v81, v81, v5, {0}" if False else f"v_add_u32 v81, v81, v5")
        if i: o(f"v_add_u32 v81, {i*4*3200}, v81")
        o("v_lshlrev_b32 v81, 3, v81")
        o(f"v_cmp_lt_u32 {sr(sMASK+4*i,2)}, v7, v80")
        o(f"v_cmp_lt_u32 {sr(sMASK+4*i+2,2)}, v6, v80")
        o("v_cmp_lt_u32 vcc, s90, v80")
        o("s_or_b64 s[92:93], s[92:93], vcc")
        o(f"v_cndmask_b32 v{72+2*i}, v4, v81, {sr(sMASK+4*i,2)}")
        o(f"v_cndmask_b32 v{73+2*i}, v4, v81, {sr(sMASK+4*i+2,2)}")
        o(f"buffer_load_dwordx2 {vr(56+4*i,2)}, v{72+2*i}, {sr(sREC,4)}, 0 offen")
        o(f"buffer_load_dwordx2 {vr(58+4*i,2)}, v{73+2*i}, {sr(sREC,4)}, 0 offen offset:128")
    o("s_cmp_eq_u32 s89, 0")
    o("s_cbranch_scc1 K2_NOQ")
    o("s_mov_b32 s89, 0")
    o("s_waitcnt vmcnt(8)")
    o(f"v_mfma_f32_16x16x32_bf16 v[112:115], v[96:99], v[88:91], 0")
    o(f"v_mfma_f32_16x16x32_bf16 v[116:119], v[104:107], v[88:91], 0")
    o(f"v_mfma_f32_16x16x32_bf16 v[112:115], v[100:103], v[92:95], v[112:115]")
    o(f"v_mfma_f32_16x16x32_bf16 v[116:119], v[108:111], v[92:95], v[116:119]")
    o(f"s_mov_b32 s90, 0x{NLOG2E:08x}")
    o("s_mov_b32 s91, s90")
    for k in range(4):
        o(f"v_and_b32 v{W+k}, 0xffff0000, v{120+k}")
        o(f"v_lshlrev_b32 v{W+4+k}, 16, v{120+k}")
    for p in range(4):
        pk("mul", W+2*p, vr(W+2*p,2), "s[90:91]")
    o(f"v_max3_f32 v125, |v{W}|, |v{W+1}|, |v{W+2}|")
    o(f"v_max3_f32 v125, |v{W+3}|, |v{W+4}|, v125")
    o(f"v_max3_f32 v125, |v{W+5}|, |v{W+6}|, v125")
    o(f"v_max_f32 v125, |v{W+7}|, v125")
    o(f"v_mul_f32 v126, 0, v{W}")
    for k in range(1, 8):
        o(f"v_fma_f32 v126, v{W+k}, 0, v126")
    o("v_add_f32 v125, v125, v126")
    o("v_cmp_ne_u32 vcc, 0, v124")
    o(f"s_or_b64 {sr(sVIO,2)}, {sr(sVIO,2)}, vcc")
    o("v_cmp_u_f32 vcc, v125, v125")
    o(f"s_or_b64 {sr(sVIO,2)}, {sr(sVIO,2)}, vcc")
    o("v_max_f32_dpp v125, v125, v125 quad_perm:[1,0,3,2] row_mask:0xf bank_mask:0xf")
    o("s_nop 1")
    o("v_max_f32_dpp v125, v125, v125 quad_perm:[2,3,0,1] row_mask:0xf bank_mask:0xf")
    o("s_nop 1")
    o("v_max_f32_dpp v125, v125, v125 row_half_mirror row_mask:0xf bank_mask:0xf")
    o("s_nop 0")
    o("v_readfirstlane_b32 s94, v125")
    for p in range(4):
        pk("mul", 112+2*p, vr(112+2*p,2), "s[90:91]")
    o("v_max3_f32 v125, |v112|, |v113|, |v114|")
    o("v_max3_f32 v125, |v115|, |v116|, v125")
    o("v_max3_f32 v125, |v117|, |v118|, v125")
    o("v_max_f32 v125, |v119|, v125")
    o("v_mul_f32 v126, 0, v112")
    for k in range(1, 8):
        o(f"v_fma_f32 v126, v{112+k}, 0, v126")
    o("v_add_f32 v125, v125, v126")
    o("s_cmp_ge_u32 s22, 14")
    o("s_cbranch_scc1 K2_NOQ")
    o(f"v_cmp_ngt_f32 vcc, 0x{TEN:08x}, v125")
    o(f"s_or_b64 {sr(sVIO,2)}, {sr(sVIO,2)}, vcc")
    o("v_and_b32 v125, 15, v0")
    o("s_lshl_b32 s3, s86, 4")
    o("v_add_u32 v125, s3, v125")
    o("v_lshlrev_b32 v125, 8, v125")
    o("v_bfe_u32 v126, v0, 4, 2")
    o("v_lshl_add_u32 v125, v126, 4, v125")
    o("s_lshl_b32 s3, s87, 6")
    o(f"s_add_u32 s3, s3, {QT}")
    o("v_add_u32 v125, s3, v125")
    o("ds_write_b128 v125, v[112:115]")
    o("ds_write_b128 v125, v[116:119] offset:128")
    lab("K2_NOQ")
    o("v_mov_b32 v7, 1")
    o(f"v_mov_b32 v6, {CNT}")
    o("s_waitcnt vmcnt(0)")
    for i in range(8):
        o(f"v_lshrrev_b32 v{72+i}, 22, v{56+2*i}")
        o(f"v_add_u32 v{72+i}, v6, v{72+i}")
    for i in range(8):
        o(f"s_mov_b64 exec, {sr(sMASK+2*i,2)}")
        if i % 2 == 1 or i >= 4:
            o(f"s_cbranch_execz K2_RK{i}")
        o(f"ds_add_rtn_u32 v{80+i}, v{72+i}, v7")
        if i % 2 == 1 or i >= 4:
            lab(f"K2_RK{i}")
    o("s_mov_b64 exec, -1")
    o("v_max3_f32 v5, |v57|, |v59|, |v61|")
    o("v_max3_f32 v5, |v63|, |v65|, v5")
    o("v_max3_f32 v5, |v67|, |v69|, v5")
    o("v_max_f32 v5, |v71|, v5")
    o("v_mul_f32 v4, 0, v57")
    for k in range(1, 8):
        o(f"v_fma_f32 v4, v{57+2*k}, 0, v4")
    o("v_fma_f32 v5, v5, s94, v4")
    o(f"v_cmp_ngt_f32 vcc, 0x{TEN:08x}, v5")
    o(f"s_or_b64 {sr(sVIO,2)}, {sr(sVIO,2)}, vcc")
    o(f"v_mov_b32 v6, {FLAGS}")
    o(f"s_cmp_eq_u64 {sr(sVIO,2)}, 0")
    o("s_cbranch_scc1 K2_F1")
    o("ds_write_b32 v6, v7")
    lab("K2_F1")
    o("s_cmp_eq_u64 s[92:93], 0")
    o("s_cbranch_scc1 K2_F2")
    o("ds_write_b32 v6, v7 offset:4")
    lab("K2_F2")
    o("s_waitcnt lgkmcnt(0)")
    o("s_barrier")
    o("v_and_b32 v5, 63, v0")
    o("v_lshlrev_b32 v5, 3, v5")
    o(f"v_add_u32 v5, {CNT}, v5")
    o("ds_read_b64 v[88:89], v5")
    o("ds_read_b64 v[90:91], v6")
    o("s_waitcnt lgkmcnt(1)")
    o("v_add_u32 v92, 3, v88")
    o("v_add_u32 v93, 3, v89")
    o("v_lshrrev_b32 v92, 2, v92")
    o("v_lshrrev_b32 v93, 2, v93")
    o("v_add_u32 v94, v92, v93")
    o("v_mov_b32 v95, v94")
    wave_scan_add(95)
    o("v_sub_u32 v96, v95, v94")
    o("v_add_u32 v97, v96, v92")
    o("v_lshlrev_b32 v96, 5, v96")
    o("v_lshlrev_b32 v97, 5, v97")
    o("ds_write_b64 v5, v[96:97] offset:512")
    o(f"v_readlane_b32 s{sQN}, v95, 63")
    o("s_waitcnt lgkmcnt(0)")
    o(f"v_readfirstlane_b32 s{sSLOW}, v90")
    o(f"v_readfirstlane_b32 s{sMORE}, v91")
    for i in range(8):
        o(f"s_mov_b64 exec, {sr(sMASK+2*i,2)}")
        if i % 2 == 1 or i >= 4:
            o(f"s_cbranch_execz K2_OF{i}")
        o(f"ds_read_b32 v{72+i}, v{72+i} offset:512")
        if i % 2 == 1 or i >= 4:
            lab(f"K2_OF{i}")
    o("s_mov_b64 exec, -1")
    o(f"v_mov_b32 v98, 0x{DUMMY:08x}")
    o("v_mov_b32 v99, 0")
    o("s_cmp_gt_u32 s22, 6")
    o("s_cbranch_scc1 K2_PADDONE")
    o("s_cmp_eq_u32 s22, 6")
    o("s_cbranch_scc1 K2_TRASH")
    o("s_bitcmp1_b32 s22, 0")
    o("s_cbranch_scc0 K2_PADE")
    o("v_mov_b32 v88, v89")
    o("v_mov_b32 v92, v93")
    o("v_mov_b32 v96, v97")
    lab("K2_PADE")
    o("s_lshr_b32 s3, s22, 1")
    o("s_add_u32 s3, s3, 1")
    o("v_lshlrev_b32 v92, 2, v92")
    o("v_subrev_u32 v92, s3, v92")
    o("v_cmp_ge_i32 vcc, v92, v88")
    o("v_lshl_add_u32 v96, v92, 3, v96")
    o("s_and_saveexec_b64 s[80:81], vcc")
    o("s_cbranch_execz K2_PADX")
    o("ds_write_b64 v96, v[98:99]")
    lab("K2_PADX")
    o("s_mov_b64 exec, -1")
    o("s_branch K2_PADDONE")
    lab("K2_TRASH")
    o(f"v_mov_b32 v98, 0x{DUMMY | (98<<24):08x}")
    o("v_and_b32 v96, 31, v0")
    o(f"s_lshl_b32 s3, s{sQN}, 5")
    o("v_lshl_add_u32 v96, v96, 3, s3")
    o("ds_write_b64 v96, v[98:99]")
    lab("K2_PADDONE")
    o("s_waitcnt lgkmcnt(0)")
    for i in range(8):
        o(f"v_lshl_add_u32 v{72+i}, v{80+i}, 3, v{72+i}")
    for i in range(8):
        o(f"s_mov_b64 exec, {sr(sMASK+2*i,2)}")
        if i % 2 == 1 or i >= 4:
            o(f"s_cbranch_execz K2_SC{i}")
        o(f"ds_write_b64 v{72+i}, {vr(56+2*i,2)}")
        if i % 2 == 1 or i >= 4:
            lab(f"K2_SC{i}")
    o("s_mov_b64 exec, -1")
    o(f"s_add_u32 s{sS}, s{sQN}, 7")
    o(f"s_lshr_b32 s{sS}, s{sS}, 3")
    o(f"s_lshr_b32 s{sBASE}, s{sS}, 4")
    o(f"s_and_b32 s{sREM}, s{sS}, 15")
    o(f"s_cmp_lt_u32 s22, s{sREM}")
    o(f"s_cselect_b32 s{sRW}, 1, 0")
    o(f"s_add_u32 s{sRW}, s{sRW}, s{sBASE}")
    o(f"s_mul_i32 s3, s{sBASE}, s22")
    o(f"s_min_u32 s90, s22, s{sREM}")
    o("s_add_u32 s3, s3, s90")
    o("s_lshl_b32 s3, s3, 8")
    o(f"s_lshl_b32 s90, s{sRW}, 5")
    o("v_bfe_u32 v7, v0, 3, 3")
    o(f"v_mov_b32 v{vSLOT}, s3")
    o(f"v_mad_u32_u24 v{vSLOT}, v7, s90, v{vSLOT}")
    o("s_waitcnt lgkmcnt(0)")
    o("s_barrier")
    o(f"s_cmp_eq_u32 s{sRW}, 0")
    o("s_cbranch_scc1 K2_MAIN_DONE")
    o(f"s_cmp_lg_u32 s{sSLOW}, 0")
    o("s_cbranch_scc1 K2_MAIN_S")
    gen_main("F", False)
    gen_main("S", True)
    lab("K2_MAIN_DONE")
    o("s_waitcnt lgkmcnt(0)")
    o("v_and_b32 v4, 63, v0")
    o("v_lshlrev_b32 v4, 4, v4")
    o("s_lshl_b32 s3, s87, 13")
    o("s_add_u32 s3, s3, 0x2000")
    o("v_add_u32 v4, s3, v4")
    o("v_add_u32 v5, 0x1000, v4")
    for f in range(8):
        o(f"buffer_load_dwordx4 {vr(56+4*f,4)}, v{4 if f < 4 else 5}, {sr(sFRAG,4)}, 0 offen offset:{1024*(f%4)}")
    o("v_and_b32 v6, 15, v0")
    o("v_lshlrev_b32 v6, 7, v6")
    o("v_bfe_u32 v7, v0, 4, 2")
    o("v_lshl_add_u32 v6, v7, 4, v6")
    o("v_add_u32 v6, s88, v6")
    o(f"buffer_load_dwordx4 v[88:91], v6, {sr(sX,4)}, 0 offen")
    o(f"buffer_load_dwordx4 v[92:95], v6, {sr(sX,4)}, 0 offen offset:64")
    o("v_lshrrev_b32 v7, 3, v0")
    o("v_lshlrev_b32 v36, 2, v7")
    o(f"v_add_u32 v36, {CNT}, v36")
    o("ds_read2_b32 v[40:41], v36 offset0:128 offset1:129")
    o("ds_read_b32 v42, v36")
    o(f"v_lshl_add_u32 v37, v7, 8, v{vQC}")
    o("ds_read_b128 v[96:99], v37")
    o("ds_read_b128 v[100:103], v37 offset:128")
    o(f"s_add_u32 s3, s{sBASE}, 1")
    o("v_cvt_f32_u32 v44, s3")
    o(f"v_cvt_f32_u32 v45, s{sBASE}")
    o("v_rcp_f32 v44, v44")
    o("v_rcp_f32 v45, v45")
    o(f"s_mul_i32 s3, s3, s{sREM}")
    o("s_lshl_b32 s3, s3, 3")
    o("v_cvt_f32_u32 v46, s3")
    o(f"s_lshl_b32 s90, s{sREM}, 3")
    o("s_waitcnt lgkmcnt(2)")
    o("v_lshrrev_b32 v40, 5, v40")
    o("v_lshrrev_b32 v41, 5, v41")
    o("v_sub_u32 v43, v41, v40")
    o("v_lshlrev_b32 v47, 2, v43")
    o("v_sub_u32 v47, v47, v42")
    o("v_cvt_f32_u32 v47, v47")
    o("v_subrev_u32 v41, 1, v41")
    for q in (40, 41):
        o(f"v_cvt_f32_u32 v48, v{q}")
        o("v_add_f32 v48, 0.5, v48")
        o("v_sub_f32 v49, v48, v46")
        o("v_mul_f32 v48, v48, v44")
        o("v_mul_f32 v49, v49, v45")
        o("v_cvt_u32_f32 v48, v48")
        o("v_cvt_u32_f32 v49, v49")
        o("v_add_u32 v49, s90, v49")
        o(f"v_cmp_gt_u32 vcc, s3, v{q}")
        o("s_nop 1")
        o(f"v_cndmask_b32 v{q}, v49, v48, vcc")
    o("v_sub_u32 v41, v41, v40")
    o("v_add_u32 v41, 1, v41")
    o("v_cmp_lt_i32 vcc, 0, v43")
    o("v_cmp_gt_u32 s[80:81], 0x310, v0" if False else "s_movk_i32 s3, 784")
    o("v_cmp_gt_u32 s[80:81], s3, v0")
    o("s_and_b64 vcc, vcc, s[80:81]")
    o("s_nop 1")
    o("v_cndmask_b32 v41, 0, v41, vcc")
    o("v_add_u32 v40, v40, v7")
    o(f"v_lshl_add_u32 v40, v40, 8, v{vJ16}")
    o(f"v_add_u32 v40, {PART}, v40")
    o("s_waitcnt lgkmcnt(0)")
    for k in range(8):
        o(f"v_exp_f32 v{104+k}, v{96+k}")
    o("s_nop 0")
    for p in range(4):
        pk("add", 104+2*p, vr(104+2*p,2), "1.0", mods="op_sel_hi:[1,0]")
    for k in range(8):
        o(f"v_rcp_f32 v{104+k}, v{104+k}")
    o("s_nop 0")
    for p in range(4):
        pk("mul", 104+2*p, vr(104+2*p,2), vr(96+2*p,2))
    o("v_cmp_lt_f32 vcc, 0, v47")
    o("s_and_saveexec_b64 s[80:81], vcc")
    for k in range(8):
        o(f"v_fma_f32 v{A+k}, -v47, v{104+k}, v{A+k}")
    o("s_mov_b64 exec, -1")
    o("s_barrier")
    lab("K2_RED")
    o("v_cmp_lt_i32 vcc, 0, v41")
    o("s_and_b64 exec, exec, vcc")
    o("s_cbranch_execz K2_REDX")
    o("ds_read_b128 v[96:99], v40")
    o("ds_read_b128 v[100:103], v40 offset:128")
    o("v_subrev_u32 v41, 1, v41")
    o("v_add_u32 v40, 0x100, v40")
    o("s_waitcnt lgkmcnt(0)")
    for p in range(4):
        pk("add", A+2*p, vr(A+2*p,2), vr(96+2*p,2))
    o("s_branch K2_RED")
    lab("K2_REDX")
    o("s_mov_b64 exec, -1")
    o(f"s_cmp_eq_u32 s{sMORE}, 0")
    o("s_cbranch_scc1 K2_FINAL")
    o("s_waitcnt vmcnt(0)")
    o("s_barrier")
    o("s_cmp_lg_u32 s22, 15")
    o("s_cbranch_scc1 K2_Z1")
    o("v_and_b32 v7, 63, v0")
    o("v_lshlrev_b32 v7, 3, v7")
    o(f"v_add_u32 v7, {CNT}, v7")
    o("v_mov_b64 v[96:97], 0")
    o("ds_write_b64 v7, v[96:97]")
    o(f"v_mov_b32 v7, {FLAGS}")
    o("ds_write_b32 v7, v96 offset:4")
    o("s_waitcnt lgkmcnt(0)")
    lab("K2_Z1")
    o("s_barrier")
    o(f"s_add_u32 s{sRND}, s{sRND}, 32")
    o("s_branch K2_ROUND")
    lab("K2_FINAL")
    o(f"s_mov_b32 s90, 0x{NLN2:08x}")
    o("s_mov_b32 s91, s90")
    for p in range(4):
        pk("mul", A+2*p, vr(A+2*p,2), "s[90:91]")
    for k in range(4):
        o(f"v_cvt_pk_bf16_f32 v{96+k}, v{A+4+k}, v{A+k}")
    o(f"s_movk_i32 s3, {AGG_STRIDE}")
    o(f"v_mad_u32_u24 v7, v7, s3, v{vJ16}")
    o(f"ds_write_b128 v7, v[96:99] offset:{AGG}")
    o("v_and_b32 v6, 15, v0")
    o("s_lshl_b32 s90, s86, 4")
    o("v_add_u32 v6, s90, v6")
    o("v_bfe_u32 v5, v0, 4, 2")
    o("v_lshlrev_b32 v5, 4, v5")
    o("v_mad_u32_u24 v7, v6, s3, v5")
    o("s_waitcnt lgkmcnt(0)")
    o("s_barrier")
    o("s_cmp_ge_u32 s22, 14")
    o("s_cbranch_scc1 K2_END")
    o(f"ds_read_b128 v[96:99], v7 offset:{AGG}")
    o(f"ds_read_b128 v[100:103], v7 offset:{AGG+64}")
    o("s_waitcnt vmcnt(0)")
    bop = ["v[88:91]", "v[92:95]", "v[96:99]", "v[100:103]"]
    for ks in range(4):
        if ks == 2: o("s_waitcnt lgkmcnt(0)")
        for sub in range(2):
            dd = vr(104+4*sub, 4)
            o(f"v_mfma_f32_16x16x32_bf16 {dd}, {vr(56+16*sub+4*ks,4)}, {bop[ks]}, {'0' if ks == 0 else dd}")
    o(f"s_mov_b32 s90, 0x{NLOG2E:08x}")
    o("s_mov_b32 s91, s90")
    o("v_and_b32 v4, 15, v0")
    o("v_lshlrev_b32 v4, 7, v4")
    o("v_add_u32 v4, v4, v5")
    o("s_lshl_b32 s3, s87, 6")
    o("s_add_u32 s3, s3, s88")
    o("v_add_u32 v4, s3, v4")
    o("v_cmp_gt_u32 vcc, 98, v6") if False else None
    o("s_movk_i32 s3, 98")
    o("v_cmp_gt_u32 vcc, s3, v6")
    o("s_nop 3")
    for p in range(4):
        pk("mul", 112+2*p, vr(104+2*p,2), "s[90:91]")
    for k in range(8):
        o(f"v_exp_f32 v{112+k}, v{112+k}")
    o("s_nop 0")
    for p in range(4):
        pk("add", 112+2*p, vr(112+2*p,2), "1.0", mods="op_sel_hi:[1,0]")
    for k in range(8):
        o(f"v_rcp_f32 v{112+k}, v{112+k}")
    o("s_nop 0")
    for p in range(4):
        pk("mul", 112+2*p, vr(112+2*p,2), vr(104+2*p,2))
    for k in range(4):
        o(f"v_cvt_pk_bf16_f32 v{120+k}, v{112+2*k}, v{113+2*k}")
    o("s_and_b64 exec, exec, vcc")
    o("s_cbranch_execz K2_END")
    o(f"buffer_store_dwordx4 v[120:123], v4, {sr(sOUT,4)}, 0 offen")
    lab("K2_END")
    o("s_endpgm")

def kd(name, vgpr, sgpr):
    L.append(f".amdhsa_kernel {name}")
    L.append(f"  .amdhsa_next_free_vgpr {vgpr}")
    L.append(f"  .amdhsa_next_free_sgpr {sgpr}")
    L.append(f"  .amdhsa_accum_offset {vgpr}")
    L.append("  .amdhsa_group_segment_fixed_size 0")
    L.append("  .amdhsa_kernarg_size 72")
    L.append("  .amdhsa_user_sgpr_count 2")
    L.append("  .amdhsa_user_sgpr_kernarg_segment_ptr 1")
    L.append("  .amdhsa_system_sgpr_workgroup_id_x 1")
    L.append("  .amdhsa_float_denorm_mode_32 3")
    L.append(".end_amdhsa_kernel")

def main(path):
    hdr = open("gather_scatter__mpnn_edge_mlp__graph.s.ref").read().split("\n")
    head = [h for h in hdr if h.startswith(";") and "@launch" not in h and "Override launch" not in h and "Harness parses" not in h]
    L.extend(head)
    L.append(f"; @launch kernel=mpnn_k1_kernel grid=({K1_GRID},1,1) block=(512,1,1) lds={K1_LDS}")
    L.append(f"; @launch kernel=mpnn_k2_kernel grid=({NBK},1,1) block=(1024,1,1) lds={K2_LDS}")
    L.append('.amdgcn_target "amdgcn-amd-amdhsa--gfx950"')
    L.append(".text")
    gen_k1()
    gen_k2()
    L.append('.section .rodata,"a"')
    L.append(".p2align 6")
    kd("mpnn_k1_kernel", 128, 64)
    L.append(".p2align 6")
    kd("mpnn_k2_kernel", 128, 100)
    open(path, "w").write("\n".join(x for x in L if x is not None) + "\n")

if __name__ == "__main__":
    main(sys.argv[1] if len(sys.argv) > 1 else "gather_scatter__mpnn_edge_mlp__graph.s")
```

```python
import sys, os

N = 25000; E = 800000; NB = 98; NBK = 256; CH = 3200; NCH = 250
P_OFF = 0; P_SIZE = N * 128
REC_OFF = 0x320000; REC_SIZE = E * 8
DESC_OFF = 0x940000
FLG_OFF = 0x980000; NTILE = 782
FRAG_OFF = 0x982000
W3_OFF = 0x988000
WS_SIZE = 0x990000
NLOG2E = 0xbfb8aa3b
NLN2 = 0xbf317218
TEN = 0x41200000
DUMMY = 0x00FFFF80 | (98 << 24)
OOB = 0x7fffff00

K1_SORT = NCH
K1_PW = 196
K1_PREP = 4
K1_GRID = K1_SORT + K1_PW + K1_PREP
K1_WAVES = 8
K1_LDS = 30720

CNT = 0
OFFS = 512
FLAGS = 1152
NINFO = 1280
SLOT = 1792
NSLOT = 4608
PART = SLOT + NSLOT * 8
RS = 272
QT = PART + 226 * RS
XT = QT + 112 * RS; XSTR = 144
WUF = XT + 112 * XSTR
K2_LDS = WUF + 16384
AGG = SLOT; AGG_STRIDE = 144
OTR = SLOT + 16384

STAMP = int(os.environ.get("STAMP", "0"))
SC = os.environ.get("SC", "")
SCP = os.environ.get("SCP", "")
PRIO = int(os.environ.get("PRIO", "1"))
NOCOMP = int(os.environ.get("NOCOMP", "0"))
DBG_OFF = 0x1000000
STAMP_SG = {"k2": [95, 98, 99, 100, 101, 36, 37, 38, 39, 40, 41, 42], "k1": [80, 81, 82, 83, 84, 85, 86, 87, 88, 89, 90, 91]}

L = []
def o(s): L.append("    " + s)
def lab(s): L.append(s + ":")
def vr(a, n): return f"v[{a}:{a+n-1}]"
def sr(a, n): return f"s[{a}:{a+n-1}]"

def stamp(k, idx):
    if not STAMP: return
    o("s_memrealtime s[96:97]")
    o("s_waitcnt lgkmcnt(0)")
    o(f"s_mov_b32 s{STAMP_SG[k][idx]}, s96")
def stamp_flush(k, n, nwaves, base):
    if not STAMP: return
    o("s_mov_b64 exec, -1")
    o(f"s_mul_i32 s96, s2, {nwaves}")
    o("s_add_u32 s96, s96, s22")
    o("s_lshl_b32 s96, s96, 6")
    o(f"s_add_u32 s96, s96, {DBG_OFF + base}")
    o("s_add_u32 s96, s20, s96")
    o("s_addc_u32 s97, s21, 0")
    o("v_mov_b32 v1, 0")
    for i in range(n):
        o(f"v_mov_b32 v2, s{STAMP_SG[k][i]}")
        o(f"global_store_dword v1, v2, s[96:97] offset:{4*i}")

def srd(d, base_lo, off=None, size=None, off_s=None):
    if off is None and off_s is None:
        o(f"s_mov_b64 {sr(d,2)}, {sr(base_lo,2)}")
    else:
        first = True
        for x in (off, off_s):
            if x is None: continue
            src_lo = f"s{base_lo}" if first else f"s{d}"
            src_hi = f"s{base_lo+1}" if first else f"s{d+1}"
            o(f"s_add_u32 s{d}, {src_lo}, {x}")
            o(f"s_addc_u32 s{d+1}, {src_hi}, 0")
            first = False
    o(f"s_mov_b32 s{d+2}, {size}")
    o(f"s_mov_b32 s{d+3}, 0x20000")

def wave_scan(v, op="add_u32"):
    for sh in (1, 2, 4, 8):
        o("s_nop 1")
        o(f"v_{op}_dpp v{v}, v{v}, v{v} row_shr:{sh} row_mask:0xf bank_mask:0xf bound_ctrl:0")
    o("s_nop 1")
    o(f"v_{op}_dpp v{v}, v{v}, v{v} row_bcast:15 row_mask:0xa bank_mask:0xf")
    o("s_nop 1")
    o(f"v_{op}_dpp v{v}, v{v}, v{v} row_bcast:31 row_mask:0xc bank_mask:0xf")

def kernarg():
    o("s_load_dwordx16 s[4:19], s[0:1], 0")
    o("s_load_dwordx2 s[20:21], s[0:1], 64")
    o("v_lshrrev_b32 v1, 6, v0")
    o("s_nop 0")
    o("v_readfirstlane_b32 s22, v1")

def pk(op, d, *src, mods=""):
    o(f"v_pk_{op}_f32 {vr(d,2)}, " + ", ".join(src) + (" " + mods if mods else ""))

def gen_k1():
    L.append(".globl mpnn_k1_kernel")
    L.append(".p2align 8")
    L.append(".type mpnn_k1_kernel,@function")
    lab("mpnn_k1_kernel")
    o(f"s_cmp_ge_u32 s2, {K1_GRID}")
    o("s_cbranch_scc1 K1_END")
    kernarg()
    o(f"s_cmp_ge_u32 s2, {K1_SORT}")
    o("s_cbranch_scc1 K1_NOTSORT")
    o("s_cmp_ge_u32 s22, 7")
    o("s_cbranch_scc1 K1_END")
    o("v_cmp_gt_u32 vcc, 0x190, v0")
    o("s_mov_b64 s[44:45], vcc")
    o("s_mov_b64 exec, vcc")
    o("v_lshlrev_b32 v1, 4, v0")
    o("v_lshlrev_b32 v2, 3, v0")
    o("v_add_u32 v3, 0x1900, v1")
    o("v_add_u32 v4, 0xc80, v2")
    o("s_mul_i32 s3, s2, 12800")
    o("s_mul_i32 s23, s2, 6400")
    o("s_waitcnt lgkmcnt(0)")
    stamp("k1", 0)
    srd(28, 10, off_s="s3", size=12800)
    o("buffer_load_dwordx4 v[16:19], v1, s[28:31], 0 offen")
    o("buffer_load_dwordx4 v[20:23], v3, s[28:31], 0 offen")
    srd(24, 8, off_s="s3", size=12800)
    o("buffer_load_dwordx4 v[8:11], v1, s[24:27], 0 offen")
    o("buffer_load_dwordx4 v[12:15], v3, s[24:27], 0 offen")
    srd(32, 6, off_s="s23", size=6400)
    o("buffer_load_dwordx2 v[24:25], v2, s[32:35], 0 offen")
    o("buffer_load_dwordx2 v[26:27], v4, s[32:35], 0 offen")
    o("s_mul_i32 s3, s2, 25600")
    srd(36, 20, off=REC_OFF, off_s="s3", size=25600)
    o("s_lshl_b32 s3, s2, 2")
    srd(40, 20, off=DESC_OFF, off_s="s3", size=256*1024)
    o("s_cmp_lg_u32 s22, 0")
    o("s_cbranch_scc1 K1_S1")
    o("v_mov_b64 v[28:29], 0")
    o("v_mov_b64 v[30:31], 0")
    o("ds_write_b128 v1, v[28:31]")
    o("s_waitcnt lgkmcnt(0)")
    lab("K1_S1")
    o("s_barrier")
    stamp("k1", 1)
    o("v_mov_b32 v5, 1")
    o("s_movk_i32 s46, 98")
    o("s_waitcnt vmcnt(4)")
    stamp("k1", 2)
    for i in range(8):
        d = 16 + i
        o(f"v_mul_u32_u24 v{32+i}, 0xa730, v{d}")
        o(f"v_lshrrev_b32 v{40+i}, 22, v{32+i}")
        o(f"v_lshlrev_b32 v{32+i}, 2, v{40+i}")
        o(f"v_mul_u32_u24 v6, s46, v{40+i}")
        o(f"ds_add_rtn_u32 v{40+i}, v{32+i}, v5")
        o(f"v_sub_u32 v{d}, v{d}, v6")
        o(f"v_lshlrev_b32 v{d}, 24, v{d}")
    o("s_waitcnt vmcnt(0)")
    stamp("k1", 3)
    for i in range(8):
        o(f"v_lshl_or_b32 v{48+2*i}, v{8+i}, 7, v{16+i}")
        ew = 24 + i // 2
        if i % 2 == 0: o(f"v_lshlrev_b32 v{49+2*i}, 16, v{ew}")
        else: o(f"v_and_b32 v{49+2*i}, 0xffff0000, v{ew}")
    o("s_mov_b64 exec, -1")
    o("v_and_b32 v6, 63, v0")
    o("v_lshlrev_b32 v6, 4, v6")
    o("s_movk_i32 s46, 0x800")
    o("s_waitcnt lgkmcnt(0)")
    o("s_barrier")
    stamp("k1", 4)
    o("ds_read_b128 v[8:11], v6")
    o("s_waitcnt lgkmcnt(0)")
    o("v_add_u32 v12, v8, v9")
    o("v_add_u32 v13, v12, v10")
    o("v_add_u32 v14, v13, v11")
    o("v_mov_b32 v15, v14")
    wave_scan(15)
    o("v_sub_u32 v15, v15, v14")
    o("v_add_u32 v16, v15, v8")
    o("v_add_u32 v17, v15, v12")
    o("v_add_u32 v18, v15, v13")
    for k in range(4):
        o(f"v_lshl_add_u32 v{20+k}, v{15+k}, 3, s46")
    o("ds_write_b128 v6, v[20:23] offset:1024")
    o("s_mov_b64 exec, s[44:45]")
    o("s_waitcnt lgkmcnt(0)")
    for i in range(8):
        o(f"ds_read_b32 v{32+i}, v{32+i} offset:1024")
    for i in range(8):
        o(f"s_waitcnt lgkmcnt(7)")
        o(f"v_lshl_add_u32 v{32+i}, v{40+i}, 3, v{32+i}")
        o(f"ds_write_b64 v{32+i}, v[{48+2*i}:{49+2*i}]")
    o("s_mov_b64 exec, -1")
    o("v_lshlrev_b32 v1, 4, v0")
    o("v_add_u32 v2, 0x1c00, v1")
    o("v_add_u32 v3, 0x3800, v1")
    o("v_add_u32 v4, 0x5400, v1")
    o("s_waitcnt lgkmcnt(0)")
    o("s_barrier")
    stamp("k1", 5)
    for m in range(4):
        o(f"ds_read_b128 v[{24+4*m}:{27+4*m}], v1 offset:{2048+m*7168}")
    for m in range(4):
        o(f"s_waitcnt lgkmcnt({3-m})")
        o(f"buffer_store_dwordx4 v[{24+4*m}:{27+4*m}], v{1+m}, s[36:39], 0 offen{SC}")
    o("s_cmp_lt_u32 s22, 3")
    o("s_cbranch_scc1 K1_S2")
    o("s_mul_i32 s47, s2, 3200")
    for k in range(1, 4):
        o(f"s_cmp_lg_u32 s22, {k+3}")
        o(f"s_cbranch_scc1 K1_D{k}")
        o(f"v_mov_b32 v8, v{8+k}")
        o(f"v_mov_b32 v15, v{15+k}")
        lab(f"K1_D{k}")
    o("v_add_u32 v15, s47, v15")
    o("v_lshl_or_b32 v15, v8, 20, v15")
    o("v_lshlrev_b32 v8, 8, v6")
    o("s_sub_u32 s47, s22, 3")
    o("s_lshl_b32 s47, s47, 10")
    o("v_add_u32 v8, s47, v8")
    o("buffer_store_dword v15, v8, s[40:43], 0 offen")
    lab("K1_S2")
    stamp("k1", 6)
    if STAMP: o("s_waitcnt vmcnt(0)")
    stamp("k1", 7)
    stamp_flush("k1", 8, K1_WAVES, 0)
    o("s_endpgm")

    lab("K1_NOTSORT")
    o(f"s_cmp_ge_u32 s2, {K1_SORT+K1_PW}")
    o("s_cbranch_scc1 K1_PREP")
    o("s_cmp_ge_u32 s22, 4")
    o("s_cbranch_scc1 K1_END")
    o(f"s_sub_u32 s3, s2, {K1_SORT}")
    o("s_lshl_b32 s3, s3, 2")
    o("s_add_u32 s3, s3, s22")
    o("v_lshlrev_b32 v1, 4, v0")
    o("v_and_b32 v2, 63, v0")
    o("v_lshlrev_b32 v2, 4, v2")
    o("s_lshl_b32 s23, s3, 12")
    o("v_add_u32 v2, s23, v2")
    o("s_waitcnt lgkmcnt(0)")
    stamp("k1", 0)
    srd(28, 12, size=129*128)
    o("buffer_load_dwordx4 v[64:67], v1, s[28:31], 0 offen")
    o("v_add_u32 v3, 0x1000, v1")
    o("buffer_load_dwordx4 v[68:71], v3, s[28:31], 0 offen")
    srd(24, 4, size=N*128)
    for m in range(4):
        o(f"buffer_load_dwordx4 v[{72+4*m}:{75+4*m}], v2, s[24:27], 0 offen offset:{m*1024}")
    srd(32, 20, size=P_SIZE)
    srd(36, 20, off=FLG_OFF, size=NTILE*4)
    o("s_mul_i32 s47, s22, 4608")
    o("s_add_u32 s47, s47, 8192")
    o("s_movk_i32 s46, 144")
    o("v_and_b32 v7, 31, v0")
    o("v_bfe_u32 v6, v0, 5, 1")
    o("v_bfe_u32 v5, v0, 3, 3")
    o("v_and_b32 v4, 7, v0")
    o("v_lshlrev_b32 v4, 4, v4")
    o("v_mad_u32_u24 v5, v5, s46, v4")
    o("v_add_u32 v5, s47, v5")
    o("v_mov_b32 v4, s47")
    o("v_mad_u32_u24 v4, v7, s46, v4")
    o("v_lshl_add_u32 v3, v6, 4, v4")
    o("v_lshl_add_u32 v4, v6, 6, v4")
    o("v_bfe_u32 v48, v7, 2, 1")
    o("v_lshlrev_b32 v48, 4, v48")
    o("v_and_b32 v49, 3, v7")
    o("v_add_u32 v48, v48, v49")
    o("v_lshrrev_b32 v49, 3, v7")
    o("v_lshl_add_u32 v48, v49, 2, v48")
    o("v_lshlrev_b32 v48, 2, v48")
    o("v_lshl_add_u32 v48, v6, 10, v48")
    for kc in range(1, 4):
        o(f"v_add_u32 v{48+kc}, {2048*kc}, v48")
    o("s_mov_b32 s40, 0x05040100")
    o("s_mov_b32 s41, 0x07060302")
    o(f"s_mov_b32 s42, 0x{NLOG2E:08x}")
    o("s_mov_b32 s43, s42")
    o("s_mov_b32 s44, 0xffff0000")
    o("s_brev_b32 s45, 1")
    o("s_waitcnt vmcnt(4)")
    o("ds_write_b128 v1, v[64:67]")
    o("ds_write_b128 v1, v[68:71] offset:4096")
    o("s_waitcnt lgkmcnt(0)")
    o("s_barrier")
    for kc in range(4):
        for m in range(4):
            o(f"ds_read2_b32 v[{96+8*kc+2*m}:{97+8*kc+2*m}], v{48+kc} offset0:{64*m} offset1:{64*m+32}")
    for kc in range(4):
        o(f"s_waitcnt lgkmcnt({12-4*kc})")
        for m in range(4):
            a, b = 96 + 8*kc + 2*m, 97 + 8*kc + 2*m
            o(f"v_perm_b32 v{8+8*kc+m}, v{b}, v{a}, s40")
            o(f"v_perm_b32 v{12+8*kc+m}, v{b}, v{a}, s41")
    for m in range(4):
        o(f"s_waitcnt vmcnt({3-m})")
        o(f"ds_write_b128 v5, v[{72+4*m}:{75+4*m}] offset:{m*8*144}")
    o("s_waitcnt lgkmcnt(0)")
    for kc in range(4):
        o(f"ds_read_b128 v[{72+4*kc}:{75+4*kc}], v3 offset:{kc*32}")
    for kc in range(4):
        o(f"s_waitcnt lgkmcnt({3-kc})")
        cl = "0" if kc == 0 else "v[96:111]"
        ch = "0" if kc == 0 else "v[112:127]"
        o(f"v_mfma_f32_32x32x16_bf16 v[96:111], v[{8+8*kc}:{11+8*kc}], v[{72+4*kc}:{75+4*kc}], {cl}")
        o(f"v_mfma_f32_32x32x16_bf16 v[112:127], v[{12+8*kc}:{15+8*kc}], v[{72+4*kc}:{75+4*kc}], {ch}")
    stamp("k1", 1)
    o("v_mov_b32 v7, 0")
    o("s_nop 7")
    o("s_nop 3")
    for r in range(0, 32, 2):
        o(f"v_pk_mul_f32 v[{96+r}:{97+r}], v[{96+r}:{97+r}], s[42:43]")
    for r in range(16):
        lo, hi, w = 96 + r, 112 + r, 48 + r
        o(f"v_cvt_pk_bf16_f32 v{w}, v{lo}, v{lo}")
        o(f"v_and_b32 v40, 0x7fffffff, v{hi}")
        o(f"v_add_u32 v40, 0x8000, v40")
        o(f"v_sub_u32_sdwa v40, v40, v{w} clamp dst_sel:DWORD dst_unused:UNUSED_PAD src0_sel:DWORD src1_sel:WORD_0")
        o(f"v_max3_f32 v7, |v{lo}|, |v{hi}|, v7")
        o(f"v_bfi_b32 v40, s45, v{hi}, v40")
        o(f"v_bfi_b32 v{w}, s44, v40, v{w}")
        if r % 4 == 3:
            m = r // 4
            o(f"ds_write_b128 v4, v[{48+4*m}:{51+4*m}] offset:{16*m}")
    o(f"v_cmp_ngt_f32 vcc, 0x{TEN:08x}, v7")
    o("s_waitcnt lgkmcnt(0)")
    for m in range(4):
        o(f"ds_read_b128 v[{64+4*m}:{67+4*m}], v5 offset:{m*8*144}")
    o("s_cmp_lg_u64 vcc, 0")
    o("s_cselect_b32 s46, 1, 0")
    o("v_mov_b32 v8, s46")
    o("s_lshl_b32 s47, s3, 2")
    o("v_mov_b32 v9, s47")
    for m in range(4):
        o(f"s_waitcnt lgkmcnt({3-m})")
        o(f"buffer_store_dwordx4 v[{64+4*m}:{67+4*m}], v2, s[32:35], 0 offen offset:{1024*m}{SCP}")
    o("s_mov_b64 exec, 1")
    o("buffer_store_dword v8, v9, s[36:39], 0 offen")
    stamp("k1", 2)
    if STAMP: o("s_waitcnt vmcnt(0)")
    stamp("k1", 3)
    stamp_flush("k1", 4, K1_WAVES, 0)
    o("s_endpgm")

    lab("K1_PREP")
    o(f"s_sub_u32 s3, s2, {K1_SORT+K1_PW}")
    o("s_lshl_b32 s3, s3, 3")
    o("s_add_u32 s3, s3, s22")
    o("s_cmp_gt_u32 s3, 24")
    o("s_cbranch_scc1 K1_END")
    o("v_and_b32 v1, 63, v0")
    o("v_and_b32 v2, 3, v1")
    o("v_bfe_u32 v3, v1, 2, 2")
    o("v_lshrrev_b32 v4, 4, v1")
    o("s_waitcnt lgkmcnt(0)")
    srd(32, 20, size=WS_SIZE)
    o("s_cmp_eq_u32 s3, 24")
    o("s_cbranch_scc1 K1_PREP_W3")
    o("s_cmp_lt_u32 s3, 16")
    o("s_cbranch_scc1 K1_PREP_U")
    srd(28, 12, size=129*128)
    o("s_bfe_u32 s40, s3, 0x10002")
    o("s_bfe_u32 s41, s3, 0x10001")
    o("s_and_b32 s42, s3, 1")
    o("s_lshl_b32 s40, s40, 5")
    o("s_sub_u32 s41, 1, s41")
    o("s_add_u32 s40, s40, s41")
    o("s_lshl_b32 s42, s42, 5")
    o("s_add_u32 s42, s42, 64")
    o("v_lshlrev_b32 v2, 1, v2")
    o("s_branch K1_PREP_GO")
    lab("K1_PREP_U")
    srd(28, 14, size=128*128)
    o("s_lshr_b32 s40, s3, 3")
    o("s_bfe_u32 s41, s3, 0x10002")
    o("s_and_b32 s42, s3, 3")
    o("s_lshl_b32 s40, s40, 5")
    o("s_lshl_b32 s41, s41, 2")
    o("s_add_u32 s40, s40, s41")
    o("s_lshl_b32 s42, s42, 5")
    lab("K1_PREP_GO")
    o("v_lshl_add_u32 v5, v3, 3, v2")
    o("v_add_u32 v5, s40, v5")
    o("v_lshl_add_u32 v6, v4, 3, s42")
    o("v_lshlrev_b32 v6, 7, v6")
    o("v_lshl_add_u32 v5, v5, 1, v6")
    for t in range(8):
        o(f"buffer_load_ushort v{8+t}, v5, s[28:31], 0 offen offset:{t*128}")
    o("s_lshl_b32 s40, s3, 10")
    o(f"s_add_u32 s40, s40, {FRAG_OFF}")
    o("v_lshl_add_u32 v6, v1, 4, s40")
    o("s_waitcnt vmcnt(0)")
    for m in range(4):
        o(f"v_lshl_or_b32 v{16+m}, v{9+2*m}, 16, v{8+2*m}")
    o("buffer_store_dwordx4 v[16:19], v6, s[32:35], 0 offen")
    o("s_endpgm")
    lab("K1_PREP_W3")
    srd(28, 12, size=129*128)
    o("v_lshlrev_b32 v2, 1, v2")
    o("v_lshrrev_b32 v3, 5, v1")
    o("v_sub_u32 v3, 1, v3")
    o("v_add_u32 v2, v2, v3")
    o("v_bfe_u32 v3, v1, 2, 3")
    o("v_lshl_add_u32 v2, v3, 3, v2")
    o("v_lshlrev_b32 v2, 1, v2")
    o("v_add_u32 v2, 0x4000, v2")
    o("buffer_load_ushort v8, v2, s[28:31], 0 offen")
    o("v_lshlrev_b32 v6, 2, v1")
    o(f"v_add_u32 v6, {W3_OFF}, v6")
    o("s_waitcnt vmcnt(0)")
    o("v_lshlrev_b32 v8, 16, v8")
    o(f"v_mul_f32 v8, 0x{NLOG2E:08x}, v8")
    o("buffer_store_dword v8, v6, s[32:35], 0 offen")
    o("v_and_b32 v9, 0x7fffffff, v8")
    wave_scan(9, "max_u32")
    o("s_nop 1")
    o("v_readlane_b32 s40, v9, 63")
    o(f"v_mov_b32 v6, {W3_OFF+256}")
    o("s_nop 1")
    o("v_mov_b32 v9, s40")
    o("buffer_store_dword v9, v6, s[32:35], 0 offen")
    lab("K1_END")
    o("s_endpgm")

vJ16, vQC, vOC, vSLOT, vQA, vQAN, vT0 = 1, 2, 3, 4, 5, 6, 7
W, ACC, A, DESC, GA, RA, RB, PA, PB, Q, NN, D, T, EE = 8, 16, 24, 32, 36, 40, 48, 56, 72, 88, 96, 104, 112, 120
sX, sP, sWS, sOUT = 24, 28, 32, 44
sMASK = 56
sQN, sS, sBASE, sREM, sRW, sCNT, sK, sM24 = 72, 73, 74, 75, 76, 77, 78, 79
sVIO = 82
sSLOW, sMORE, sRND = 84, 85, 23
sTILE, sHALF, sROWB, sFIRST, sWMAX = 86, 87, 88, 89, 94
sRS = 50
sNEEDF, sREC = 51, 93
sSTEP, sRDONE = 48, 49

def gathers(R, P):
    for i in range(4):
        o(f"v_and_or_b32 v{GA+i}, v{R+2*i}, s{sM24}, v{vJ16}")
        o(f"buffer_load_dwordx4 {vr(P+4*i,4)}, v{GA+i}, {sr(sP,4)}, 0 offen")

def compute_quad(R, RN, P, slow):
    for i in range(4):
        if NOCOMP and i < 3: continue
        TT = NN if (i == 0 and not slow) else T
        for p in range(4):
            pk("fma", TT+2*p, vr(R+2*i,2), vr(W+2*p,2), vr(Q+2*p,2), mods="op_sel:[1,0,0] op_sel_hi:[1,1,1]")
        if i == 3:
            o(f"v_add_u32 v{vT0}, v{vQA}, v{vOC}")
            o(f"v_lshrrev_b32 v{vQAN}, 24, v{RN}")
            o(f"v_mad_u32_u24 v{vQAN}, v{vQAN}, s{sRS}, v{vQC}")
            o(f"ds_read_b128 {vr(Q,4)}, v{vQAN}")
            o(f"ds_read_b128 {vr(Q+4,4)}, v{vQAN} offset:128")
            o(f"ds_read_b128 {vr(R,4)}, v{vSLOT}")
            o(f"ds_read_b128 {vr(R+4,4)}, v{vSLOT} offset:16")
            o(f"v_add_u32 v{vSLOT}, 32, v{vSLOT}")
        for k in range(4):
            o(f"v_dot2_f32_bf16 v{TT+4+k}, v{P+4*i+k}, s{sK}, v{TT+4+k}")
        pk("add", TT, vr(P+4*i,2), vr(TT,2))
        pk("add", TT+2, vr(P+4*i+2,2), vr(TT+2,2))
        for k in range(8):
            o(f"v_exp_f32 v{EE+k}, v{TT+k}")
        if slow:
            for p in range(4):
                pk("add", EE+2*p, vr(EE+2*p,2), "1.0", mods="op_sel_hi:[1,0]")
            for k in range(8):
                o(f"v_rcp_f32 v{EE+k}, v{EE+k}")
            o("s_nop 0")
            for p in range(4):
                pk("fma", ACC+2*p, vr(T+2*p,2), vr(EE+2*p,2), vr(ACC+2*p,2))
        elif i == 0:
            for p in range(4):
                pk("add", D+2*p, vr(EE+2*p,2), "1.0", mods="op_sel_hi:[1,0]")
        else:
            for p in range(4):
                pk("fma", NN+2*p, vr(NN+2*p,2), vr(EE+2*p,2), vr(NN+2*p,2))
            for p in range(4):
                pk("fma", NN+2*p, vr(T+2*p,2), vr(D+2*p,2), vr(NN+2*p,2))
            for p in range(4):
                pk("fma", D+2*p, vr(D+2*p,2), vr(EE+2*p,2), vr(D+2*p,2))
    if not slow:
        for k in range(8):
            o(f"v_rcp_f32 v{EE+k}, v{D+k}")
        o("s_nop 0")
        for p in range(4):
            pk("fma", ACC+2*p, vr(NN+2*p,2), vr(EE+2*p,2), vr(ACC+2*p,2))
    o(f"ds_write_b128 v{vT0}, {vr(ACC,4)}")
    o(f"ds_write_b128 v{vT0}, {vr(ACC+4,4)} offset:128")

def gen_main(tag, slow):
    lab(f"K2_MAIN_{tag}")
    o(f"ds_read_b128 {vr(RA,4)}, v{vSLOT}")
    o(f"ds_read_b128 {vr(RA+4,4)}, v{vSLOT} offset:16")
    o(f"ds_read_b128 {vr(RB,4)}, v{vSLOT} offset:32")
    o(f"ds_read_b128 {vr(RB+4,4)}, v{vSLOT} offset:48")
    o(f"v_add_u32 v{vSLOT}, 64, v{vSLOT}")
    for p in range(4):
        o(f"v_mov_b64 {vr(ACC+2*p,2)}, 0")
    o(f"s_sub_u32 s{sCNT}, s{sRW}, 1")
    if PRIO: o("s_setprio 3")
    o("s_waitcnt lgkmcnt(2)")
    gathers(RA, PA)
    o(f"v_lshrrev_b32 v{vQA}, 24, v{RA}")
    o(f"v_mad_u32_u24 v{vQA}, v{vQA}, s{sRS}, v{vQC}")
    o(f"ds_read_b128 {vr(Q,4)}, v{vQA}")
    o(f"ds_read_b128 {vr(Q+4,4)}, v{vQA} offset:128")
    o(f"s_cmp_eq_u32 s{sNEEDF}, 0")
    o(f"s_cbranch_scc1 K2_NOF_{tag}")
    silu_f(A, 112)
    o(f"s_mov_b32 s{sNEEDF}, 0")
    lab(f"K2_NOF_{tag}")
    o("s_waitcnt lgkmcnt(0)")
    for (x, R, RN, P, PN) in (("A", RA, RB, PA, PB), ("B", RB, RA, PB, PA)):
        t = tag + x
        lab(f"K2_LOOP_{t}")
        o(f"s_cmp_eq_u32 s{sCNT}, 0")
        o(f"s_cbranch_scc1 K2_LAST_{t}")
        if PRIO:
            o(f"s_cmp_gt_u32 s{sCNT}, 2")
            o(f"s_cbranch_scc1 K2_PR_{t}")
            o("s_setprio 2")
            o(f"s_cmp_eq_u32 s{sCNT}, 2")
            o(f"s_cbranch_scc1 K2_PR_{t}")
            o("s_setprio 1")
            lab(f"K2_PR_{t}")
        o("s_waitcnt lgkmcnt(2)")
        gathers(RN, PN)
        o("s_waitcnt vmcnt(4)")
        o(f"s_branch K2_GO_{t}")
        lab(f"K2_LAST_{t}")
        if PRIO: o("s_setprio 0")
        o("s_waitcnt vmcnt(0) lgkmcnt(2)")
        lab(f"K2_GO_{t}")
        compute_quad(R, RN, P, slow)
        o(f"s_cmp_eq_u32 s{sCNT}, 0")
        o("s_cbranch_scc1 K2_MAIN_DONE")
        o(f"s_sub_u32 s{sCNT}, s{sCNT}, 1")
        o(f"v_cmp_ne_u32 vcc, v{vQAN}, v{vQA}")
        o(f"v_mov_b32 v{vQA}, v{vQAN}")
        o("s_and_saveexec_b64 s[80:81], vcc")
        o(f"s_cbranch_execz K2_KEEP_{t}")
        for p in range(4):
            o(f"v_mov_b64 {vr(ACC+2*p,2)}, 0")
        lab(f"K2_KEEP_{t}")
        o("s_mov_b64 exec, -1")
        if x == "B":
            o(f"s_branch K2_LOOP_{tag}A")

def silu_f(dst, src):
    for k in range(8):
        o(f"v_exp_f32 v{dst+k}, v{src+k}")
    o("s_nop 0")
    for p in range(4):
        pk("add", dst+2*p, vr(dst+2*p,2), "1.0", mods="op_sel_hi:[1,0]")
    for k in range(8):
        o(f"v_rcp_f32 v{dst+k}, v{dst+k}")
    o("s_nop 0")
    for p in range(4):
        pk("mul", dst+2*p, vr(dst+2*p,2), vr(src+2*p,2))

def masked(i, tagp, instr):
    o(f"s_mov_b64 exec, {sr(sMASK+2*i,2)}")
    skip = (i % 2 == 1 or i >= 4)
    if skip: o(f"s_cbranch_execz {tagp}{i}")
    o(instr)
    if skip: lab(f"{tagp}{i}")

def prefill():
    n = prefill.n
    o(f"v_mov_b32 v120, 0x{DUMMY:08x}")
    o("v_mov_b32 v121, 0")
    o("v_mov_b32 v122, v120")
    o("v_mov_b32 v123, 0")
    o("v_lshlrev_b32 v124, 4, v0")
    for m in range(2):
        o(f"ds_write_b128 v124, v[120:123] offset:{SLOT + m*16384}")
    o("s_cmp_gt_u32 s22, 3")
    o(f"s_cbranch_scc1 K2_PF1_{n}")
    o(f"ds_write_b128 v124, v[120:123] offset:{SLOT + 32768}")
    lab(f"K2_PF1_{n}")
    o("s_cmp_lg_u32 s22, 15")
    o(f"s_cbranch_scc1 K2_PF2_{n}")
    o("v_and_b32 v125, 63, v0")
    o("v_lshlrev_b32 v125, 3, v125")
    o("v_mov_b32 v120, 0")
    o(f"ds_write_b64 v125, v[120:121] offset:{CNT}")
    if n == 0:
        o(f"ds_write_b64 v121, v[120:121] offset:{FLAGS}")
    else:
        o(f"ds_write_b32 v121, v120 offset:{FLAGS+4}")
    lab(f"K2_PF2_{n}")
    prefill.n += 1
prefill.n = 0

def gen_k2():
    L.append(".globl mpnn_k2_kernel")
    L.append(".p2align 8")
    L.append(".type mpnn_k2_kernel,@function")
    lab("mpnn_k2_kernel")
    o(f"s_cmp_ge_u32 s2, {NBK}")
    o("s_cbranch_scc1 K2_EXIT")
    kernarg()
    o("v_and_b32 v72, 0x3f0, v0")
    o("s_lshl_b32 s3, s2, 10")
    o(f"s_add_u32 s3, s3, {DESC_OFF}")
    o("v_lshlrev_b32 v124, 4, v0")
    o("s_mul_i32 s90, s2, 12544")
    o("s_cmp_gt_u32 s22, 13")
    o(f"s_cselect_b32 s91, {OOB}, s90")
    o("v_add_u32 v76, s91, v124")
    o("s_cmp_gt_u32 s22, 7")
    o(f"s_cselect_b32 s91, {OOB}, 0")
    o("v_or_b32 v77, s91, v124")
    o(f"v_and_b32 v{vJ16}, 7, v0")
    o(f"v_lshlrev_b32 v{vJ16}, 4, v{vJ16}")
    o("v_min_u32 v79, 0x30d, v0")
    o("v_lshlrev_b32 v79, 2, v79")
    o(f"s_mov_b32 s80, {FRAG_OFF}")
    o(f"s_mov_b32 s81, {FRAG_OFF+16384}")
    o(f"s_mov_b32 s91, {W3_OFF}")
    o(f"s_mov_b32 s92, {FLG_OFF}")
    o("s_waitcnt lgkmcnt(0)")
    stamp("k2", 0)
    srd(sWS, 20, size=WS_SIZE)
    o(f"buffer_load_dwordx4 {vr(DESC,4)}, v72, {sr(sWS,4)}, s3 offen")
    prefill()
    srd(sX, 4, size=N*128)
    srd(sP, 20, size=P_SIZE)
    o(f"s_lshr_b32 s{sTILE}, s22, 1")
    o(f"s_and_b32 s{sHALF}, s22, 1")
    o(f"s_lshl_b32 s3, s{sTILE}, 11")
    o(f"s_add_u32 s{sROWB}, s90, s3")
    o(f"s_movk_i32 s{sK}, 0x3f80")
    o(f"s_movk_i32 s{sRS}, {RS}")
    o(f"s_mov_b32 s{sM24}, {os.environ.get('M24', '0xffffff')}")
    o(f"s_mov_b32 s{sRND}, 0")
    o(f"s_mov_b32 s{sRDONE}, 0")
    o(f"s_mov_b32 s{sSTEP}, 32")
    o(f"s_mov_b64 {sr(sVIO,2)}, 0")
    o(f"s_mov_b32 s{sFIRST}, 1")
    o(f"s_mov_b32 s{sNEEDF}, 1")
    o(f"s_mov_b32 s{sREC}, {REC_OFF}")
    o("v_and_b32 v7, 15, v0")
    o("v_add_u32 v6, 16, v7")
    o(f"v_mov_b32 v4, {OOB}")
    o("s_waitcnt vmcnt(0)")
    stamp("k2", 1)
    o("s_cmp_lg_u32 s22, 15")
    o("s_cbranch_scc1 K2_ROUND")
    o("v_cmp_gt_u32 vcc, 0x3f0, v0")
    o("s_movk_i32 s3, 0x3e0")
    o("v_cmp_gt_u32 s[54:55], s3, v0")
    o(f"v_cndmask_b32 v{DESC}, 0, v{DESC}, vcc")
    o(f"v_cndmask_b32 v{DESC+1}, 0, v{DESC+1}, vcc")
    o(f"v_cndmask_b32 v{DESC+2}, 0, v{DESC+2}, s[54:55]")
    o(f"v_cndmask_b32 v{DESC+3}, 0, v{DESC+3}, s[54:55]")
    lab("K2_ROUND")
    o(f"s_add_u32 s90, s{sRND}, s{sSTEP}")
    o("s_mov_b32 s3, 0xfffff")
    for i in range(4):
        o(f"v_lshrrev_b32 v{80+i}, 20, v{DESC+i}")
        o(f"v_and_b32 v84, s3, v{DESC+i}")
        o(f"v_cmp_lt_u32 {sr(sMASK+4*i,2)}, v7, v{80+i}")
        o(f"v_cmp_lt_u32 {sr(sMASK+4*i+2,2)}, v6, v{80+i}")
        o("v_add_lshl_u32 v84, v84, v7, 3")
        o(f"s_mov_b64 exec, {sr(sMASK+4*i,2)}")
        o(f"buffer_load_dwordx2 {vr(56+4*i,2)}, v84, {sr(sWS,4)}, s{sREC} offen")
        o(f"s_mov_b64 exec, {sr(sMASK+4*i+2,2)}")
        o(f"s_cbranch_execz K2_T2_{i}")
        o(f"buffer_load_dwordx2 {vr(58+4*i,2)}, v84, {sr(sWS,4)}, s{sREC} offen offset:128")
        lab(f"K2_T2_{i}")
        o("s_mov_b64 exec, -1")
    o("s_waitcnt lgkmcnt(0)")
    o("s_barrier")
    stamp("k2", 2)
    o(f"s_cmp_eq_u32 s{sFIRST}, 0")
    o("s_cbranch_scc1 K2_NOL")
    o(f"buffer_load_dwordx4 v[96:99], v77, {sr(sWS,4)}, s81 offen")
    o(f"buffer_load_dwordx4 v[88:91], v76, {sr(sX,4)}, 0 offen")
    o(f"buffer_load_dword v119, v79, {sr(sWS,4)}, s92 offen")
    o(f"buffer_load_dwordx4 v[120:123], v124, {sr(sWS,4)}, s80 offen")
    o(f"buffer_load_dwordx4 {vr(W,4)}, v{vJ16}, {sr(sWS,4)}, s91 offen")
    o(f"buffer_load_dwordx4 {vr(W+4,4)}, v{vJ16}, {sr(sWS,4)}, s91 offen offset:128")
    o(f"s_add_u32 s52, s20, {W3_OFF+256}")
    o("s_addc_u32 s53, s21, 0")
    o(f"s_load_dword s{sWMAX}, s[52:53], 0")
    o("s_branch K2_NOL2")
    lab("K2_NOL")
    o("s_waitcnt vmcnt(0)")
    lab("K2_NOL2")
    o("v_max3_u32 v80, v80, v81, v82")
    o("v_max_u32 v80, v80, v83")
    o("v_cmp_lt_u32 s[54:55], s90, v80")
    o("v_mov_b32 v7, 1")
    o("v_mov_b32 v6, 0")
    o("s_waitcnt vmcnt(6)")
    stamp("k2", 3)
    for i in range(8):
        o(f"v_lshrrev_b32 v{100+i}, 22, v{56+2*i}")
    for i in range(8):
        masked(i, "K2_RK", f"ds_add_rtn_u32 v{80+i}, v{100+i}, v7 offset:{CNT}")
    o("s_mov_b64 exec, -1")
    o("v_mov_b32 v5, 0")
    for i in range(8):
        o(f"s_mov_b64 exec, {sr(sMASK+2*i,2)}")
        o(f"v_max_f32 v5, |v{57+2*i}|, v5")
    o("s_mov_b64 exec, -1")
    o("s_cmp_eq_u64 s[54:55], 0")
    o("s_cbranch_scc1 K2_F2")
    o(f"ds_write_b32 v6, v7 offset:{FLAGS+4}")
    lab("K2_F2")
    o(f"s_cmp_eq_u32 s{sFIRST}, 0")
    o("s_cbranch_scc1 K2_NOST")
    o(f"v_add_u32 v{vQC}, {QT}, v{vJ16}")
    o("v_lshrrev_b32 v125, 3, v0")
    o(f"v_mov_b32 v{vOC}, {(PART-QT) & 0xffffffff}")
    o(f"v_mad_u32_u24 v{vOC}, v125, s{sRS}, v{vOC}")
    o(f"s_movk_i32 s3, {XSTR}")
    o(f"v_mad_u32_u24 v126, v125, s3, v{vJ16}")
    o(f"v_add_u32 v126, {XT}, v126")
    o(f"v_add_u32 v127, {WUF}, v124")
    o("v_and_b32 v72, 63, v0")
    o("v_lshlrev_b32 v72, 4, v72")
    o(f"s_lshl_b32 s52, s{sHALF}, 12")
    o("v_add_u32 v72, s52, v72")
    o("v_and_b32 v73, 15, v0")
    o(f"s_lshl_b32 s52, s{sTILE}, 4")
    o("v_add_u32 v73, s52, v73")
    o("v_and_b32 v74, 48, v0")
    o("v_mad_u32_u24 v75, v73, s3, v74")
    o(f"v_add_u32 v75, {XT}, v75")
    o(f"v_mad_u32_u24 v73, v73, s{sRS}, v74")
    o(f"s_lshl_b32 s3, s{sHALF}, 6")
    o(f"s_add_u32 s3, s3, {QT}")
    o("v_add_u32 v73, s3, v73")
    o("s_waitcnt vmcnt(0)")
    o("ds_write_b128 v127, v[120:123]")
    o("v_cmp_ne_u32 vcc, 0, v119")
    o(f"s_or_b64 {sr(sVIO,2)}, {sr(sVIO,2)}, vcc")
    o("s_cmp_gt_u32 s22, 13")
    o("s_cbranch_scc1 K2_NOST")
    o("ds_write_b128 v126, v[88:91]")
    o("s_cmp_gt_u32 s22, 7")
    o("s_cbranch_scc1 K2_NOST")
    o(f"ds_write_b128 v124, v[96:99] offset:{PART}")
    lab("K2_NOST")
    o("v_and_b32 v4, 63, v0")
    o("v_lshlrev_b32 v4, 3, v4")
    o("s_waitcnt lgkmcnt(0)")
    o("s_barrier")
    stamp("k2", 4)
    o(f"ds_read_b64 v[88:89], v4 offset:{CNT}")
    o(f"s_cmp_lt_u32 s22, 14")
    o(f"s_cselect_b32 s{sFIRST}, s{sFIRST}, 0")
    o(f"s_cmp_eq_u32 s{sFIRST}, 0")
    o("s_cbranch_scc1 K2_NOQA")
    o("ds_read_b128 v[56+0:56+3], v75".replace("56+0:56+3", "108:111"))
    o(f"ds_read_b128 v[112:115], v72 offset:{PART}")
    o(f"ds_read_b128 v[116:119], v72 offset:{PART+2048}")
    o("ds_read_b128 v[120:123], v75 offset:64")
    o(f"ds_read_b128 v[124:127], v72 offset:{PART+1024}")
    o(f"ds_read_b128 v[40:43], v72 offset:{PART+3072}")
    o("s_waitcnt lgkmcnt(6)")
    o("s_branch K2_QA1")
    lab("K2_NOQA")
    o("s_waitcnt lgkmcnt(0)")
    lab("K2_QA1")
    o(f"v_mul_f32 v5, s{sWMAX}, v5")
    o(f"v_cmp_ngt_f32 vcc, 0x{TEN:08x}, v5")
    o(f"s_or_b64 {sr(sVIO,2)}, {sr(sVIO,2)}, vcc")
    o(f"s_movk_i32 s3, {SLOT}")
    o("v_add_u32 v92, 3, v88")
    o("v_add_u32 v93, 3, v89")
    o("v_lshrrev_b32 v92, 2, v92")
    o("v_lshrrev_b32 v93, 2, v93")
    o("v_add_u32 v94, v92, v93")
    o("v_mov_b32 v95, v94")
    wave_scan(95)
    o("v_sub_u32 v96, v95, v94")
    o("v_add_u32 v97, v96, v92")
    o("v_lshl_add_u32 v98, v96, 5, s3")
    o("v_lshl_add_u32 v99, v97, 5, s3")
    o(f"ds_write_b64 v4, v[98:99] offset:{OFFS}")
    o(f"v_readlane_b32 s{sQN}, v95, 63")
    o(f"s_cmp_eq_u32 s{sFIRST}, 0")
    o("s_cbranch_scc1 K2_NOQB")
    o("s_waitcnt lgkmcnt(1)")
    o(f"v_mfma_f32_16x16x32_bf16 v[48:51], v[112:115], v[108:111], 0")
    o(f"v_mfma_f32_16x16x32_bf16 v[52:55], v[116:119], v[108:111], 0")
    o(f"v_mfma_f32_16x16x32_bf16 v[48:51], v[124:127], v[120:123], v[48:51]")
    o(f"v_mfma_f32_16x16x32_bf16 v[52:55], v[40:43], v[120:123], v[52:55]")
    lab("K2_NOQB")
    o("s_waitcnt lgkmcnt(0)")
    for i in range(8):
        masked(i, "K2_OF", f"ds_read_b32 v{100+i}, v{100+i} offset:{OFFS}")
    o("s_mov_b64 exec, -1")
    o(f"s_cmp_eq_u32 s{sFIRST}, 0")
    o("s_cbranch_scc1 K2_NOQC")
    o(f"s_mov_b32 s{sFIRST}, 0")
    o(f"s_mov_b32 s90, 0x{NLOG2E:08x}")
    o("s_mov_b32 s91, s90")
    for p in range(4):
        pk("mul", 112+2*p, vr(48+2*p,2), "s[90:91]")
    o("ds_write_b128 v73, v[112:115]")
    o("ds_write_b128 v73, v[116:119] offset:128")
    o("v_max3_f32 v125, |v112|, |v113|, |v114|")
    o("v_max3_f32 v125, |v115|, |v116|, v125")
    o("v_max3_f32 v125, |v117|, |v118|, v125")
    o("v_max_f32 v125, |v119|, v125")
    o(f"v_cmp_ngt_f32 vcc, 0x{TEN:08x}, v125")
    o(f"s_or_b64 {sr(sVIO,2)}, {sr(sVIO,2)}, vcc")
    lab("K2_NOQC")
    o(f"s_cmp_eq_u64 {sr(sVIO,2)}, 0")
    o("s_cbranch_scc1 K2_F1")
    o(f"ds_write_b32 v6, v7 offset:{FLAGS}")
    lab("K2_F1")
    o(f"s_cmp_gt_u32 s{sQN}, {NSLOT//4 - 12}")
    o("s_cbranch_scc1 K2_NARROW")
    o(f"s_add_u32 s{sS}, s{sQN}, 7")
    o(f"s_lshr_b32 s{sS}, s{sS}, 3")
    o(f"s_lshr_b32 s{sBASE}, s{sS}, 4")
    o(f"s_and_b32 s{sREM}, s{sS}, 15")
    o(f"s_cmp_lt_u32 s22, s{sREM}")
    o(f"s_cselect_b32 s{sRW}, 1, 0")
    o(f"s_add_u32 s{sRW}, s{sRW}, s{sBASE}")
    o(f"s_mul_i32 s3, s{sBASE}, s22")
    o(f"s_min_u32 s90, s22, s{sREM}")
    o("s_add_u32 s3, s3, s90")
    o("s_lshl_b32 s3, s3, 8")
    o(f"s_add_u32 s3, s3, {SLOT}")
    o(f"s_lshl_b32 s90, s{sRW}, 5")
    o("v_mov_b32 v5, v4")
    o("v_bfe_u32 v7, v0, 3, 3")
    o(f"v_mov_b32 v{vSLOT}, s3")
    o(f"v_mad_u32_u24 v{vSLOT}, v7, s90, v{vSLOT}")
    o("s_waitcnt lgkmcnt(0)")
    for i in range(8):
        o(f"v_lshl_add_u32 v{100+i}, v{80+i}, 3, v{100+i}")
    for i in range(8):
        masked(i, "K2_SC", f"ds_write_b64 v{100+i}, {vr(56+2*i,2)}")
    o("s_mov_b64 exec, -1")
    o("s_waitcnt lgkmcnt(0)")
    o("s_barrier")
    stamp("k2", 5)
    o(f"ds_read_b64 v[90:91], v6 offset:{FLAGS}")
    o("s_cmp_lg_u32 s22, 15")
    o("s_cbranch_scc1 K2_NONI")
    o(f"s_add_u32 s3, s{sBASE}, 1")
    o("v_cvt_f32_u32 v44, s3")
    o(f"v_cvt_f32_u32 v45, s{sBASE}")
    o("v_rcp_f32 v44, v44")
    o("v_rcp_f32 v45, v45")
    o(f"s_mul_i32 s3, s3, s{sREM}")
    o("s_lshl_b32 s3, s3, 3")
    o("v_cvt_f32_u32 v46, s3")
    o(f"s_lshl_b32 s90, s{sREM}, 3")
    o("v_add_u32 v100, -1, v97")
    o("v_add_u32 v101, -1, v95")
    for q in (96, 97, 100, 101):
        o(f"v_cvt_f32_u32 v48, v{q}")
        o("v_add_f32 v48, 0.5, v48")
        o("v_sub_f32 v49, v48, v46")
        o("v_mul_f32 v48, v48, v44")
        o("v_mul_f32 v49, v49, v45")
        o("v_cvt_u32_f32 v48, v48")
        o("v_cvt_u32_f32 v49, v49")
        o(f"v_cmp_gt_u32 vcc, s3, v{q}")
        o("v_add_u32 v49, s90, v49")
        o("s_nop 0")
        o(f"v_cndmask_b32 v{q}, v49, v48, vcc")
    for (rf, rl, nq, cn) in ((96, 100, 92, 88), (97, 101, 93, 89)):
        o(f"v_sub_u32 v{rl}, v{rl}, v{rf}")
        o(f"v_add_u32 v{rl}, 1, v{rl}")
        o(f"v_cmp_lt_u32 vcc, 0, v{nq}")
        o(f"v_lshlrev_b32 v{nq}, 2, v{nq}")
        o(f"v_sub_u32 v{nq}, v{nq}, v{cn}")
        o(f"v_cndmask_b32 v{rl}, 0, v{rl}, vcc")
        o(f"v_and_b32 v{rf}, 0xff, v{rf}")
        o(f"v_lshl_or_b32 v{rf}, v{rl}, 8, v{rf}")
        o(f"v_lshl_or_b32 v{rf}, v{nq}, 16, v{rf}")
    o(f"ds_write_b64 v5, v[96:97] offset:{NINFO}")
    lab("K2_NONI")
    o("s_waitcnt lgkmcnt(0)")
    o(f"v_readfirstlane_b32 s{sSLOW}, v90")
    o(f"v_readfirstlane_b32 s{sMORE}, v91")
    o(f"s_cmp_eq_u32 s{sRW}, 0")
    o("s_cbranch_scc0 K2_HASW")
    o(f"s_cmp_eq_u32 s{sNEEDF}, 0")
    o("s_cbranch_scc1 K2_MAIN_DONE")
    silu_f(A, 112)
    o(f"s_mov_b32 s{sNEEDF}, 0")
    o("s_branch K2_MAIN_DONE")
    lab("K2_HASW")
    o(f"s_cmp_lg_u32 s{sSLOW}, 0")
    o("s_cbranch_scc1 K2_MAIN_S")
    gen_main("F", False)
    gen_main("S", True)
    lab("K2_MAIN_DONE")
    o("s_waitcnt lgkmcnt(0)")
    stamp("k2", 6)
    o("s_cmp_ge_u32 s22, 14")
    o("s_cbranch_scc1 K2_IDLE")
    o("v_and_b32 v6, 15, v0")
    o(f"s_lshl_b32 s3, s{sTILE}, 4")
    o("v_add_u32 v6, s3, v6")
    o("v_and_b32 v5, 48, v0")
    o("v_lshlrev_b32 v7, 2, v6")
    o(f"s_lshl_b32 s3, s{sHALF}, 6")
    o("v_add_u32 v36, s3, v5")
    o(f"v_mad_u32_u24 v37, v6, s{sRS}, v36")
    o(f"v_add_u32 v37, {PART}, v37")
    o(f"s_movk_i32 s3, {AGG_STRIDE}")
    o("v_mad_u32_u24 v41, v6, s3, v36")
    o("v_mad_u32_u24 v42, v6, s3, v5")
    o(f"v_add_u32 v40, {XT}, v42")
    o("v_and_b32 v43, 63, v0")
    o("v_lshlrev_b32 v43, 4, v43")
    o(f"s_lshl_b32 s3, s{sHALF}, 13")
    o(f"s_add_u32 s3, s3, {WUF}")
    o("v_add_u32 v43, s3, v43")
    o("ds_read_b128 v[88:91], v40")
    o("ds_read_b128 v[92:95], v40 offset:64")
    for ks in range(4):
        for sub in range(2):
            o(f"ds_read_b128 {vr(56+16*sub+4*ks,4)}, v43 offset:{4096*sub + 1024*ks}")
    srd(sOUT, 16, size=N*128)
    o(f"s_mov_b32 s90, 0x{NLN2:08x}")
    o("s_mov_b32 s91, s90")
    bop = ["v[88:91]", "v[92:95]", "v[96:99]", "v[100:103]"]
    def mm(ks):
        for sub in range(2):
            dd = vr(48+4*sub, 4)
            o(f"v_mfma_f32_16x16x32_bf16 {dd}, {vr(56+16*sub+4*ks,4)}, {bop[ks]}, {'0' if ks == 0 else dd}")
    o("s_waitcnt lgkmcnt(0)")
    mm(0); mm(1)
    o("s_barrier")
    stamp("k2", 7)
    o(f"ds_read_b32 v38, v7 offset:{NINFO}")
    o(f"s_cmp_eq_u32 s{sRDONE}, 0")
    o("s_cbranch_scc1 K2_R0")
    o(f"v_add_u32 v39, {(QT-PART) & 0xffffffff}, v37")
    o("ds_read_b128 v[104:107], v39")
    o("ds_read_b128 v[108:111], v39 offset:128")
    o("s_waitcnt lgkmcnt(0)")
    silu_f(96, 104)
    o("v_lshrrev_b32 v39, 16, v38")
    o("v_cvt_f32_u32 v39, v39")
    o("v_cmp_lt_f32 vcc, 0, v39")
    o("s_and_saveexec_b64 s[80:81], vcc")
    for k in range(8):
        o(f"v_fma_f32 v{A+k}, -v39, v{96+k}, v{A+k}")
    o("s_mov_b64 exec, -1")
    o("v_and_b32 v39, 0xff, v38")
    o(f"v_mad_u32_u24 v37, v39, s{sRS}, v37")
    o("v_bfe_u32 v38, v38, 8, 8")
    o("s_branch K2_RED")
    lab("K2_R0")
    o("s_waitcnt lgkmcnt(0)")
    o("v_and_b32 v39, 0xff, v38")
    o(f"v_mad_u32_u24 v37, v39, s{sRS}, v37")
    for m in range(3):
        o(f"ds_read_b128 {vr(96+8*m,4)}, v37 offset:{RS*m}")
        o(f"ds_read_b128 {vr(100+8*m,4)}, v37 offset:{RS*m+128}")
    o("v_cvt_f32_ubyte2 v44, v38")
    o("v_bfe_u32 v38, v38, 8, 8")
    for p in range(4):
        pk("mul", A+2*p, vr(A+2*p,2), "v[44:45]", mods="op_sel_hi:[1,0] neg_lo:[0,1] neg_hi:[0,1]")
    o(f"s_cmp_eq_u32 s{sSLOW}, 0")
    o("s_cbranch_scc1 K2_RED2")
    o("v_cmp_eq_f32 vcc, 0, v44")
    o("s_and_b64 exec, exec, vcc")
    for p in range(4):
        o(f"v_mov_b64 {vr(A+2*p,2)}, 0")
    o("s_mov_b64 exec, -1")
    o("s_branch K2_RED2")
    lab("K2_RED")
    for m in range(3):
        o(f"ds_read_b128 {vr(96+8*m,4)}, v37 offset:{RS*m}")
        o(f"ds_read_b128 {vr(100+8*m,4)}, v37 offset:{RS*m+128}")
    lab("K2_RED2")
    o(f"v_add_u32 v37, {3*RS}, v37")
    for m in range(3):
        o(f"v_cmp_lt_i32 vcc, {m}, v38")
        o("s_and_b64 exec, exec, vcc")
        o(f"s_waitcnt lgkmcnt({4-2*m})")
        for p in range(4):
            pk("add", A+2*p, vr(A+2*p,2), vr(96+8*m+2*p,2))
    o("v_cmp_lt_i32 vcc, 3, v38")
    o("v_subrev_u32 v38, 3, v38")
    o("s_and_b64 exec, exec, vcc")
    o("s_cbranch_execnz K2_RED")
    o("s_mov_b64 exec, -1")
    stamp("k2", 8)
    o(f"s_cmp_eq_u32 s{sMORE}, 0")
    o("s_cbranch_scc1 K2_FINAL")
    lab("K2_NEXT")
    o(f"s_add_u32 s{sRND}, s{sRND}, s{sSTEP}")
    o(f"s_add_u32 s{sRDONE}, s{sRDONE}, 1")
    lab("K2_REDO")
    o("s_waitcnt lgkmcnt(0)")
    o("s_barrier")
    prefill()
    o("v_and_b32 v7, 15, v0")
    o(f"v_add_u32 v7, s{sRND}, v7")
    o("v_add_u32 v6, 16, v7")
    o(f"s_cmp_eq_u32 s{sSTEP}, 32")
    o("s_cbranch_scc1 K2_WIDE")
    o("v_mov_b32 v6, 0x100000")
    lab("K2_WIDE")
    o(f"v_mov_b32 v4, {OOB}")
    o("s_branch K2_ROUND")
    lab("K2_NARROW")
    o(f"s_mov_b32 s{sSTEP}, 16")
    o("s_branch K2_REDO")
    lab("K2_IDLE")
    o("s_barrier")
    o(f"s_cmp_eq_u32 s{sMORE}, 0")
    o("s_cbranch_scc0 K2_NEXT")
    o("s_branch K2_END")
    lab("K2_FINAL")
    for p in range(4):
        pk("mul", A+2*p, vr(A+2*p,2), "s[90:91]")
    for k in range(4):
        o(f"v_cvt_pk_bf16_f32 v{96+k}, v{A+4+k}, v{A+k}")
    o(f"ds_write_b128 v41, v[96:99] offset:{AGG}")
    o("s_mul_i32 s3, s22, 1280")
    o("v_and_b32 v36, 15, v0")
    o("v_mul_u32_u24 v36, 80, v36")
    o("v_add3_u32 v36, v36, v5, s3")
    o("v_bfe_u32 v37, v0, 2, 4")
    o("v_and_b32 v38, 3, v0")
    o("v_lshlrev_b32 v38, 4, v38")
    o("v_mul_u32_u24 v39, 80, v37")
    o("v_add3_u32 v39, v39, v38, s3")
    o("v_lshl_add_u32 v4, v37, 7, v38")
    o(f"s_lshl_b32 s3, s{sHALF}, 6")
    o(f"s_add_u32 s3, s3, s{sROWB}")
    o("v_add_u32 v4, s3, v4")
    o(f"s_lshl_b32 s3, s{sTILE}, 4")
    o("s_sub_u32 s3, 98, s3")
    o("v_cmp_gt_u32 vcc, s3, v37")
    o(f"s_mov_b32 s90, 0x{NLOG2E:08x}")
    o("s_mov_b32 s91, s90")
    o("s_waitcnt lgkmcnt(0)")
    o("s_barrier")
    stamp("k2", 9)
    o(f"ds_read_b128 v[96:99], v42 offset:{AGG}")
    o(f"ds_read_b128 v[100:103], v42 offset:{AGG+64}")
    o("s_waitcnt lgkmcnt(1)")
    mm(2)
    o("s_waitcnt lgkmcnt(0)")
    mm(3)
    o("s_nop 7")
    for p in range(4):
        pk("mul", 112+2*p, vr(48+2*p,2), "s[90:91]")
    for k in range(8):
        o(f"v_exp_f32 v{112+k}, v{112+k}")
    o("s_nop 0")
    for p in range(4):
        pk("add", 112+2*p, vr(112+2*p,2), "1.0", mods="op_sel_hi:[1,0]")
    for k in range(8):
        o(f"v_rcp_f32 v{112+k}, v{112+k}")
    o("s_nop 0")
    for p in range(4):
        pk("mul", 112+2*p, vr(112+2*p,2), vr(48+2*p,2))
    for k in range(4):
        o(f"v_cvt_pk_bf16_f32 v{120+k}, v{112+2*k}, v{113+2*k}")
    o(f"ds_write_b128 v36, v[120:123] offset:{OTR}")
    o("s_waitcnt lgkmcnt(0)")
    o(f"ds_read_b128 v[120:123], v39 offset:{OTR}")
    o("s_and_b64 exec, exec, vcc")
    o("s_cbranch_execz K2_END")
    o("s_waitcnt lgkmcnt(0)")
    o(f"buffer_store_dwordx4 v[120:123], v4, {sr(sOUT,4)}, 0 offen")
    lab("K2_END")
    stamp("k2", 10)
    if STAMP: o("s_waitcnt vmcnt(0)")
    stamp("k2", 11)
    stamp_flush("k2", 12, 16, 0x100000)
    lab("K2_EXIT")
    o("s_endpgm")

def kd(name, vgpr, sgpr):
    L.append(f".amdhsa_kernel {name}")
    L.append(f"  .amdhsa_next_free_vgpr {vgpr}")
    L.append(f"  .amdhsa_next_free_sgpr {sgpr}")
    L.append(f"  .amdhsa_accum_offset {vgpr}")
    L.append("  .amdhsa_group_segment_fixed_size 0")
    L.append("  .amdhsa_kernarg_size 72")
    L.append("  .amdhsa_user_sgpr_count 2")
    L.append("  .amdhsa_user_sgpr_kernarg_segment_ptr 1")
    L.append("  .amdhsa_system_sgpr_workgroup_id_x 1")
    L.append("  .amdhsa_float_denorm_mode_32 3")
    L.append(".end_amdhsa_kernel")

def main(path):
    hdr = open("gather_scatter__mpnn_edge_mlp__graph.s.ref").read().split("\n")
    head = [h for h in hdr if h.startswith(";") and "@launch" not in h and "Override launch" not in h and "Harness parses" not in h]
    L.extend(head)
    L.append(f"; @launch kernel=mpnn_k1_kernel grid=({K1_GRID},1,1) block=(512,1,1) lds={K1_LDS}")
    L.append(f"; @launch kernel=mpnn_k2_kernel grid=({NBK},1,1) block=(1024,1,1) lds={K2_LDS}")
    L.append('.amdgcn_target "amdgcn-amd-amdhsa--gfx950"')
    L.append(".text")
    gen_k1()
    gen_k2()
    L.append('.section .rodata,"a"')
    L.append(".p2align 6")
    kd("mpnn_k1_kernel", 128, 100 if STAMP else 64)
    L.append(".p2align 6")
    kd("mpnn_k2_kernel", 128, 102 if STAMP else 100)
    open(path, "w").write("\n".join(x for x in L if x is not None) + "\n")
    print(f"mpnn_k1_kernel:{K1_GRID}:512:{K1_LDS} mpnn_k2_kernel:{NBK}:1024:{K2_LDS}")

if __name__ == "__main__":
    main(sys.argv[1] if len(sys.argv) > 1 else "gather_scatter__mpnn_edge_mlp__graph.s")
```

```python
import sys, os

KN = "gather_scatter__mpnn_edge_mlp__graph_kernel"
N = 25000; E = 800000; NB = 98; NBK = 256; CH = 3200; NCH = 250
P_SIZE = N * 128
REC_OFF = 0x320000
DESC_OFF = 0x940000
WS_SIZE = 0x980000
NTILE = 782
NONOFF = 248
NLOG2E = 0xbfb8aa3b
NLN2 = 0xbf317218
TEN = 0x41200000
DUMMY = 0x00FFFF80 | (98 << 24)
OOB = 0x7fffff00

CNT = 0
OFFS = 512
FLAGS = 1152
NINFO = 1280
SLOT = 1792
NSLOT = 4608
PART = SLOT + NSLOT * 8
RS = 272
QT = PART + 226 * RS
XT = (QT + 112 * RS + 127) & ~127
WUF = XT + 112 * 128
LDS = WUF + 16384
AGG = SLOT; AGG_STRIDE = 144
OTR = SLOT + 16384
C1 = PART; O1 = PART + 1024; R1 = PART + 2048; EF1 = PART + 27648
PSL = 12288
RAWU = SLOT; RAW2 = SLOT + 16384
W2F = PART
DLDS = PART + 8192 + 256
assert DLDS % 256 == 0 and DLDS // 256 + 3 < 256
assert PART % 128 == 0 and 6 * PSL <= QT + 112 * RS - PART

STAMP = int(os.environ.get("STAMP", "0"))
ARR = os.environ.get("ARR", "atomic")
NSH = int(os.environ.get("NSH", "64"))
SHSTR = int(os.environ.get("SHSTR", "4"))
SLEEP = int(os.environ.get("SLEEP", "8"))
PRIO = int(os.environ.get("PRIO", "1"))
DBG_OFF = 0x1000000
STAMP_SG = [95, 98, 99, 100, 101, 36, 37, 38, 39, 40, 41, 42]

L = []
def o(s): L.append("    " + s)
def lab(s): L.append(s + ":")
def vr(a, n): return f"v[{a}:{a+n-1}]"
def sr(a, n): return f"s[{a}:{a+n-1}]"

def stamp(idx):
    if not STAMP: return
    o("s_memrealtime s[96:97]")
    o("s_waitcnt lgkmcnt(0)")
    o(f"s_mov_b32 s{STAMP_SG[idx]}, s96")
def stamp_flush(n):
    if not STAMP: return
    o("s_mov_b64 exec, -1")
    o("s_lshl_b32 s96, s2, 4")
    o("s_add_u32 s96, s96, s22")
    o("s_lshl_b32 s96, s96, 6")
    o(f"s_add_u32 s96, s96, {DBG_OFF + 0x100000}")
    o("s_add_u32 s96, s20, s96")
    o("s_addc_u32 s97, s21, 0")
    o("v_mov_b32 v1, 0")
    for i in range(n):
        o(f"v_mov_b32 v2, s{STAMP_SG[i]}")
        o(f"global_store_dword v1, v2, s[96:97] offset:{4*i}")

def srd(d, base_lo, off=None, size=None, off_s=None):
    if off is None and off_s is None:
        o(f"s_mov_b64 {sr(d,2)}, {sr(base_lo,2)}")
    else:
        first = True
        for x in (off, off_s):
            if x is None: continue
            src_lo = f"s{base_lo}" if first else f"s{d}"
            src_hi = f"s{base_lo+1}" if first else f"s{d+1}"
            o(f"s_add_u32 s{d}, {src_lo}, {x}")
            o(f"s_addc_u32 s{d+1}, {src_hi}, 0")
            first = False
    o(f"s_mov_b32 s{d+2}, {size}")
    o(f"s_mov_b32 s{d+3}, 0x20000")

def wave_scan(v, op="add_u32"):
    for sh in (1, 2, 4, 8):
        o("s_nop 1")
        o(f"v_{op}_dpp v{v}, v{v}, v{v} row_shr:{sh} row_mask:0xf bank_mask:0xf bound_ctrl:0")
    o("s_nop 1")
    o(f"v_{op}_dpp v{v}, v{v}, v{v} row_bcast:15 row_mask:0xa bank_mask:0xf")
    o("s_nop 1")
    o(f"v_{op}_dpp v{v}, v{v}, v{v} row_bcast:31 row_mask:0xc bank_mask:0xf")

def pk(op, d, *src, mods=""):
    o(f"v_pk_{op}_f32 {vr(d,2)}, " + ", ".join(src) + (" " + mods if mods else ""))

vJ16, vQC, vOC, vSLOT, vQA, vQAN, vT0 = 1, 2, 3, 4, 5, 6, 7
W, ACC, A, DESC, GA, RA, RB, PA, PB, Q, NN, D, T, EE = 8, 16, 24, 32, 36, 40, 48, 56, 72, 88, 96, 104, 112, 120
sX, sP, sWS, sWM, sWU, sOUT = 24, 28, 32, 36, 40, 44
sMASK = 56
sQN, sS, sBASE, sREM, sRW, sCNT, sK, sM24 = 72, 73, 74, 75, 76, 77, 78, 79
sVIO = 82
sSLOW, sMORE, sRND = 84, 85, 23
sTILE, sHALF, sROWB, sBK = 86, 87, 88, 89
sSTEP, sRDONE, sRS, sREC = 48, 49, 50, 93
SC1 = " sc1"

def gathers(R, P):
    for i in range(4):
        o(f"v_and_or_b32 v{GA+i}, v{R+2*i}, s{sM24}, v{vJ16}")
        o(f"buffer_load_dwordx4 {vr(P+4*i,4)}, v{GA+i}, {sr(sP,4)}, 0 offen{SC1}")

def compute_quad(R, RN, P, slow, QA, QN, so):
    for i in range(4):
        TT = NN if (i == 0 and not slow) else T
        for p in range(4):
            pk("fma", TT+2*p, vr(R+2*i,2), vr(W+2*p,2), vr(Q+2*p,2), mods="op_sel:[1,0,0] op_sel_hi:[1,1,1]")
        if i == 3:
            o(f"v_add_u32 v{vT0}, v{QA}, v{vOC}")
            o(f"v_lshrrev_b32 v{QN}, 24, v{RN}")
            o(f"v_mad_u32_u24 v{QN}, v{QN}, s{sRS}, v{vQC}")
            o(f"ds_read_b128 {vr(Q,4)}, v{QN}")
            o(f"ds_read_b128 {vr(Q+4,4)}, v{QN} offset:128")
            o(f"ds_read_b128 {vr(R,4)}, v{vSLOT} offset:{so}")
            o(f"ds_read_b128 {vr(R+4,4)}, v{vSLOT} offset:{so+16}")
            if so == 96: o(f"v_add_u32 v{vSLOT}, 64, v{vSLOT}")
        for k in range(4):
            o(f"v_dot2_f32_bf16 v{TT+4+k}, v{P+4*i+k}, s{sK}, v{TT+4+k}")
        pk("add", TT, vr(P+4*i,2), vr(TT,2))
        pk("add", TT+2, vr(P+4*i+2,2), vr(TT+2,2))
        for k in range(8):
            o(f"v_exp_f32 v{EE+k}, v{TT+k}")
        if slow:
            for p in range(4):
                pk("add", EE+2*p, vr(EE+2*p,2), "1.0", mods="op_sel_hi:[1,0]")
            for k in range(8):
                o(f"v_rcp_f32 v{EE+k}, v{EE+k}")
            o("s_nop 0")
            for p in range(4):
                pk("fma", ACC+2*p, vr(T+2*p,2), vr(EE+2*p,2), vr(ACC+2*p,2))
        elif i == 0:
            for p in range(4):
                pk("add", D+2*p, vr(EE+2*p,2), "1.0", mods="op_sel_hi:[1,0]")
        else:
            for p in range(4):
                pk("fma", NN+2*p, vr(NN+2*p,2), vr(EE+2*p,2), vr(NN+2*p,2))
            for p in range(4):
                pk("fma", NN+2*p, vr(T+2*p,2), vr(D+2*p,2), vr(NN+2*p,2))
            for p in range(4):
                pk("fma", D+2*p, vr(D+2*p,2), vr(EE+2*p,2), vr(D+2*p,2))
    if not slow:
        for k in range(8):
            o(f"v_rcp_f32 v{EE+k}, v{D+k}")
        o("s_nop 0")
        for p in range(4):
            pk("fma", ACC+2*p, vr(NN+2*p,2), vr(EE+2*p,2), vr(ACC+2*p,2))
    o(f"ds_write_b128 v{vT0}, {vr(ACC,4)}")
    o(f"ds_write_b128 v{vT0}, {vr(ACC+4,4)} offset:128")

def gen_main(tag, slow):
    lab(f"K2_MAIN_{tag}")
    o(f"ds_read_b128 {vr(RA,4)}, v{vSLOT}")
    o(f"ds_read_b128 {vr(RA+4,4)}, v{vSLOT} offset:16")
    o(f"ds_read_b128 {vr(RB,4)}, v{vSLOT} offset:32")
    o(f"ds_read_b128 {vr(RB+4,4)}, v{vSLOT} offset:48")
    for p in range(4):
        o(f"v_mov_b64 {vr(ACC+2*p,2)}, 0")
    o(f"s_sub_u32 s{sCNT}, s{sRW}, 1")
    if PRIO: o("s_setprio 3")
    o("s_waitcnt lgkmcnt(2)")
    gathers(RA, PA)
    o(f"v_lshrrev_b32 v{vQA}, 24, v{RA}")
    o(f"v_mad_u32_u24 v{vQA}, v{vQA}, s{sRS}, v{vQC}")
    o(f"ds_read_b128 {vr(Q,4)}, v{vQA}")
    o(f"ds_read_b128 {vr(Q+4,4)}, v{vQA} offset:128")
    o("s_waitcnt lgkmcnt(0)")
    for (x, R, RN, P, PN, QA, QN, so) in (("A", RA, RB, PA, PB, vQA, vQAN, 64), ("B", RB, RA, PB, PA, vQAN, vQA, 96)):
        t = tag + x
        lab(f"K2_LOOP_{t}")
        o(f"s_cmp_eq_u32 s{sCNT}, 0")
        o(f"s_cbranch_scc1 K2_LAST_{t}")
        if PRIO:
            o(f"s_cmp_gt_u32 s{sCNT}, 2")
            o(f"s_cbranch_scc1 K2_PR_{t}")
            o("s_setprio 2")
            o(f"s_cmp_eq_u32 s{sCNT}, 2")
            o(f"s_cbranch_scc1 K2_PR_{t}")
            o("s_setprio 1")
            lab(f"K2_PR_{t}")
        o("s_waitcnt lgkmcnt(2)")
        gathers(RN, PN)
        o("s_waitcnt vmcnt(4)")
        o(f"s_branch K2_GO_{t}")
        lab(f"K2_LAST_{t}")
        if PRIO: o("s_setprio 0")
        o("s_waitcnt vmcnt(0) lgkmcnt(2)")
        lab(f"K2_GO_{t}")
        compute_quad(R, RN, P, slow, QA, QN, so)
        o(f"s_cmp_eq_u32 s{sCNT}, 0")
        o("s_cbranch_scc1 K2_MAIN_DONE")
        o(f"s_sub_u32 s{sCNT}, s{sCNT}, 1")
        o(f"v_cmp_ne_u32 vcc, v{vQAN}, v{vQA}")
        o("s_and_saveexec_b64 s[80:81], vcc")
        o(f"s_cbranch_execz K2_KEEP_{t}")
        for p in range(4):
            o(f"v_mov_b64 {vr(ACC+2*p,2)}, 0")
        lab(f"K2_KEEP_{t}")
        o("s_mov_b64 exec, -1")
        if x == "B":
            o(f"s_branch K2_LOOP_{tag}A")

def silu_f(dst, src):
    for k in range(8):
        o(f"v_exp_f32 v{dst+k}, v{src+k}")
    o("s_nop 0")
    for p in range(4):
        pk("add", dst+2*p, vr(dst+2*p,2), "1.0", mods="op_sel_hi:[1,0]")
    for k in range(8):
        o(f"v_rcp_f32 v{dst+k}, v{dst+k}")
    o("s_nop 0")
    for p in range(4):
        pk("mul", dst+2*p, vr(dst+2*p,2), vr(src+2*p,2))

def masked(i, tagp, instr):
    o(f"s_mov_b64 exec, {sr(sMASK+2*i,2)}")
    skip = (i % 2 == 1)
    if skip: o(f"s_cbranch_execz {tagp}{i}")
    o(instr)
    if skip: lab(f"{tagp}{i}")

def prefill():
    n = prefill.n
    o(f"v_mov_b32 v120, 0x{DUMMY:08x}")
    o("v_mov_b32 v121, 0")
    o("v_mov_b32 v122, v120")
    o("v_mov_b32 v123, 0")
    o("v_lshlrev_b32 v124, 4, v0")
    for m in range(2):
        o(f"ds_write_b128 v124, v[120:123] offset:{SLOT + m*16384}")
    o("s_cmp_gt_u32 s22, 3")
    o(f"s_cbranch_scc1 K2_PF1_{n}")
    o(f"ds_write_b128 v124, v[120:123] offset:{SLOT + 32768}")
    lab(f"K2_PF1_{n}")
    o("s_cmp_lg_u32 s22, 15")
    o(f"s_cbranch_scc1 K2_PF2_{n}")
    o("v_and_b32 v125, 63, v0")
    o("v_lshlrev_b32 v125, 3, v125")
    o("v_mov_b32 v120, 0")
    o(f"ds_write_b64 v125, v[120:121] offset:{CNT}")
    o(f"ds_write_b32 v121, v120 offset:{FLAGS+4}")
    lab(f"K2_PF2_{n}")
    prefill.n += 1
prefill.n = 0

def bulk_dma():
    srd(sWU, 14, size=128*128)
    o("v_lshlrev_b32 v124, 4, v0")
    o("s_lshl_b32 s52, s22, 10")
    o(f"s_add_u32 s53, s52, {RAWU}")
    o("s_mov_b32 m0, s53")
    o("v_add_u32 v125, 0x2000, v124")
    o(f"buffer_load_dwordx4 v124, {sr(sWU,4)}, 0 offen lds")
    o(f"s_add_u32 s53, s52, {RAW2}")
    o("s_mov_b32 m0, s53")
    o("v_lshlrev_b32 v126, 1, v0")
    o("v_and_b32 v126, 0x70, v126")
    o(f"buffer_load_dwordx4 v125, {sr(sWM,4)}, 0 offen lds")
    o("v_xor_b32 v126, v126, v124")
    o(f"s_mul_i32 s90, s{sBK}, 12544")
    o("v_add_u32 v126, s90, v126")
    o("s_cmp_gt_u32 s22, 13")
    o(f"s_cbranch_scc1 BD_{bulk_dma.n}")
    o(f"s_add_u32 s53, s52, {XT}")
    o("s_mov_b32 m0, s53")
    o("s_nop 0")
    o(f"buffer_load_dwordx4 v126, {sr(sX,4)}, 0 offen lds")
    lab(f"BD_{bulk_dma.n}")
    bulk_dma.n += 1
bulk_dma.n = 0

def gen():
    L.append(f".globl {KN}")
    L.append(".p2align 8")
    L.append(f".type {KN},@function")
    lab(KN)
    o(f"s_cmp_ge_u32 s2, {NBK}")
    o("s_cbranch_scc1 K2_EXIT")
    o("s_load_dwordx16 s[4:19], s[0:1], 0")
    o("s_load_dwordx2 s[20:21], s[0:1], 64")
    o("v_lshrrev_b32 v1, 6, v0")
    o("s_and_b32 s3, s2, 7")
    o("v_readfirstlane_b32 s22, v1")
    o("s_lshl_b32 s3, s3, 5")
    o(f"s_lshr_b32 s{sBK}, s2, 3")
    o(f"s_or_b32 s{sBK}, s{sBK}, s3")
    o(f"s_mov_b64 {sr(sVIO,2)}, 0")
    o("s_mul_i32 s3, s2, 3")
    o("s_add_u32 s3, s3, s22")
    o("s_sub_u32 s3, s3, 13")
    o("s_sub_u32 s23, s22, 10")
    o("s_cmp_ge_u32 s22, 13")
    o("s_cbranch_scc1 P_ROLE")
    o(f"s_cmp_lt_u32 s2, {NCH}")
    o("s_cbranch_scc1 SORT_ROLE")
    o("s_add_u32 s3, s3, 31")
    o("s_mov_b32 s23, s22")
    o("s_cmp_lt_u32 s22, 3")
    o("s_cbranch_scc1 P_ROLE")
    o("s_waitcnt lgkmcnt(0)")
    stamp(0)
    srd(sX, 4, size=N*128)
    srd(sWM, 12, size=129*128)
    o("s_barrier")
    stamp(1)
    o("s_barrier")
    bulk_dma()
    o("s_barrier")
    stamp(2)
    o("s_branch PH1_DONE")

    lab("SORT_ROLE")
    o("s_movk_i32 s3, 800")
    o("v_cmp_gt_u32 s[44:45], s3, v0")
    o("v_lshlrev_b32 v1, 4, v0")
    o("v_lshlrev_b32 v2, 3, v0")
    o("v_and_b32 v7, 63, v0")
    o("v_lshlrev_b32 v6, 4, v7")
    o("v_lshlrev_b32 v7, 1, v7")
    o("v_add_u32 v7, 0x4000, v7")
    o("s_mul_i32 s3, s2, 12800")
    o("s_mul_i32 s23, s2, 6400")
    o("s_waitcnt lgkmcnt(0)")
    stamp(0)
    srd(56, 10, off_s="s3", size=12800)
    o("buffer_load_dwordx4 v[16:19], v1, s[56:59], 0 offen")
    srd(60, 8, off_s="s3", size=12800)
    o("buffer_load_dwordx4 v[8:11], v1, s[60:63], 0 offen")
    srd(64, 6, off_s="s23", size=6400)
    o("buffer_load_dwordx2 v[24:25], v2, s[64:67], 0 offen")
    srd(sWM, 12, size=129*128)
    o(f"buffer_load_ushort v7, v7, {sr(sWM,4)}, 0 offen")
    o("s_cmp_lg_u32 s22, 0")
    o("s_cbranch_scc1 S1")
    o("v_mov_b64 v[28:29], 0")
    o("v_mov_b64 v[30:31], 0")
    o(f"ds_write_b128 v6, v[28:31] offset:{C1}")
    o("s_waitcnt lgkmcnt(0)")
    lab("S1")
    o("s_barrier")
    o("s_mul_i32 s3, s2, 25600")
    srd(68, 20, off=REC_OFF, off_s="s3", size=25600)
    srd(sX, 4, size=N*128)
    srd(sWS, 20, size=WS_SIZE)
    o("s_mov_b64 exec, s[44:45]")
    o("v_mov_b32 v5, 1")
    o("s_movk_i32 s46, 98")
    o("s_waitcnt vmcnt(3)")
    for i in range(4):
        d = 16 + i
        o(f"v_mul_u32_u24 v{32+i}, 0xa730, v{d}")
        o(f"v_lshrrev_b32 v{40+i}, 22, v{32+i}")
        o(f"v_lshlrev_b32 v{32+i}, 2, v{40+i}")
        o(f"v_mul_u32_u24 v28, s46, v{40+i}")
        o(f"ds_add_rtn_u32 v{40+i}, v{32+i}, v5 offset:{C1}")
        o(f"v_sub_u32 v{d}, v{d}, v28")
        o(f"v_lshlrev_b32 v{d}, 24, v{d}")
    o("s_waitcnt vmcnt(0)")
    stamp(1)
    for i in range(4):
        o(f"v_lshl_or_b32 v{48+2*i}, v{8+i}, 7, v{16+i}")
        ew = 24 + i // 2
        if i % 2 == 0: o(f"v_lshlrev_b32 v{49+2*i}, 16, v{ew}")
        else: o(f"v_and_b32 v{49+2*i}, 0xffff0000, v{ew}")
    o("v_max3_f32 v28, |v49|, |v51|, |v53|")
    o("v_max_f32 v28, |v55|, v28")
    o("s_mov_b64 exec, -1")
    o(f"s_mov_b32 s46, {R1}")
    o("s_waitcnt lgkmcnt(0)")
    o("s_barrier")
    o(f"ds_read_b128 v[8:11], v6 offset:{C1}")
    o("v_and_b32 v7, 0x7fff, v7")
    wave_scan(7, "max_u32")
    o("s_waitcnt lgkmcnt(0)")
    o("v_add_u32 v12, v8, v9")
    o("v_add_u32 v13, v12, v10")
    o("v_add_u32 v14, v13, v11")
    o("v_mov_b32 v15, v14")
    o("v_readlane_b32 s47, v7, 63")
    wave_scan(15)
    o("v_sub_u32 v15, v15, v14")
    o("v_add_u32 v16, v15, v8")
    o("v_add_u32 v17, v15, v12")
    o("v_add_u32 v18, v15, v13")
    for k in range(4):
        o(f"v_lshl_add_u32 v{20+k}, v{15+k}, 3, s46")
    o(f"ds_write_b128 v6, v[20:23] offset:{O1}")
    o("s_lshl_b32 s47, s47, 16")
    o("s_mov_b64 exec, s[44:45]")
    o("v_mul_f32 v28, s47, v28")
    o(f"v_cmp_ngt_f32 vcc, 0x40dd7fb6, v28")
    o(f"s_mov_b64 {sr(sVIO,2)}, vcc")
    o("s_waitcnt lgkmcnt(0)")
    for i in range(4):
        o(f"ds_read_b32 v{32+i}, v{32+i} offset:{O1}")
    for i in range(4):
        o(f"s_waitcnt lgkmcnt(3)")
        o(f"v_lshl_add_u32 v{32+i}, v{40+i}, 3, v{32+i}")
        o(f"ds_write_b64 v{32+i}, v[{48+2*i}:{49+2*i}]")
    o("s_mov_b64 exec, -1")
    o("v_add_u32 v2, 0x3400, v1")
    bulk_dma()
    o("s_waitcnt lgkmcnt(0)")
    o("s_barrier")
    stamp(2)
    o(f"ds_read_b128 v[24:27], v1 offset:{R1}")
    o(f"ds_read_b128 v[28:31], v1 offset:{R1+13312}")
    o("s_waitcnt lgkmcnt(1)")
    o(f"buffer_store_dwordx4 v[24:27], v1, s[68:71], 0 offen{SC1}")
    o("s_waitcnt lgkmcnt(0)")
    o(f"buffer_store_dwordx4 v[28:31], v2, s[68:71], 0 offen{SC1}")
    o("s_cmp_lg_u32 s22, 12")
    o("s_cbranch_scc1 S2")
    o("v_add_u32 v19, v18, v11")
    o("v_lshl_or_b32 v20, v16, 12, v15")
    o("v_lshl_or_b32 v20, v17, 24, v20")
    o("v_lshrrev_b32 v21, 8, v17")
    o("v_lshl_or_b32 v21, v18, 4, v21")
    o("v_lshl_or_b32 v21, v19, 16, v21")
    lab("S2")
    o("s_branch PH1_DONE")

    lab("P_ROLE")
    o("v_and_b32 v2, 63, v0")
    o("v_lshlrev_b32 v1, 4, v2")
    o("v_lshlrev_b32 v3, 1, v2")
    o("v_and_b32 v3, 0x70, v3")
    o("v_xor_b32 v3, v3, v1")
    o(f"s_mul_i32 s23, s23, {PSL}")
    o(f"s_add_u32 s23, s23, {PART}")
    o("s_lshl_b32 s46, s3, 12")
    o("v_add_u32 v2, s46, v1")
    o("v_add_u32 v4, s46, v3")
    o("s_add_u32 s47, s23, 8192")
    o("s_mov_b32 m0, s47")
    o("s_waitcnt lgkmcnt(0)")
    stamp(0)
    srd(sX, 4, size=N*128)
    for m in range(4):
        o(f"buffer_load_dwordx4 v4, {sr(sX,4)}, 0 offen offset:{m*1024} lds")
    srd(sWM, 12, size=129*128)
    o("s_mov_b32 m0, s23")
    o("v_add_u32 v5, 0x1000, v1")
    for m in range(4):
        o(f"buffer_load_dwordx4 v1, {sr(sWM,4)}, 0 offen offset:{m*1024} lds")
    o("s_add_u32 s52, s23, 4096")
    o("s_mov_b32 m0, s52")
    o("s_nop 0")
    for m in range(4):
        o(f"buffer_load_dwordx4 v5, {sr(sWM,4)}, 0 offen offset:{m*1024} lds")
    o("s_cmp_lg_u32 s22, 15")
    o("s_cbranch_scc1 P1")
    o("v_mov_b64 v[28:29], 0")
    o(f"ds_write_b64 v28, v[28:29] offset:{FLAGS}")
    o("s_cmp_lg_u32 s2, 0")
    o("s_cbranch_scc1 P0")
    o("s_memrealtime s[52:53]")
    o("s_waitcnt lgkmcnt(0)")
    o("s_or_b32 s52, s52, 1")
    o("v_mov_b32 v30, s52")
    o("v_mov_b32 v31, s53")
    o("s_mov_b64 exec, 1")
    o(f"global_store_dwordx2 v28, v[30:31], s[18:19] offset:{NONOFF} sc1")
    o("s_mov_b64 exec, -1")
    lab("P0")
    o("s_waitcnt lgkmcnt(0)")
    lab("P1")
    o("s_barrier")
    srd(sP, 20, size=P_SIZE)
    o("v_and_b32 v7, 31, v0")
    o("v_bfe_u32 v6, v0, 5, 1")
    o("v_add_u32 v5, s47, v3")
    o("v_lshlrev_b32 v4, 4, v0")
    o("v_and_b32 v4, 0x70, v4")
    o("v_lshl_add_u32 v4, v7, 7, v4")
    o("v_add_u32 v4, s47, v4")
    o("v_lshlrev_b32 v44, 4, v6")
    o("v_xor_b32 v44, v44, v4")
    for kc in range(1, 4):
        o(f"v_xor_b32 v{44+kc}, {32*kc}, v44")
    o("v_lshlrev_b32 v40, 6, v6")
    o("v_xor_b32 v40, v40, v4")
    for m in range(1, 4):
        o(f"v_xor_b32 v{40+m}, {16*m}, v40")
    o("v_bfe_u32 v48, v7, 2, 1")
    o("v_lshlrev_b32 v48, 4, v48")
    o("v_and_b32 v49, 3, v7")
    o("v_add_u32 v48, v48, v49")
    o("v_lshrrev_b32 v49, 3, v7")
    o("v_lshl_add_u32 v48, v49, 2, v48")
    o("v_lshlrev_b32 v48, 2, v48")
    o("v_lshl_add_u32 v48, v6, 10, v48")
    o("v_add_u32 v48, s23, v48")
    for kc in range(1, 4):
        o(f"v_add_u32 v{48+kc}, {2048*kc}, v48")
    o("s_mov_b32 s56, 0x05040100")
    o("s_mov_b32 s57, 0x07060302")
    o(f"s_mov_b32 s58, 0x{NLOG2E:08x}")
    o("s_mov_b32 s59, s58")
    o("s_mov_b32 s60, 0xffff0000")
    o("s_brev_b32 s61, 1")
    o("s_waitcnt vmcnt(0)")
    stamp(1)
    for kc in range(4):
        for m in range(4):
            o(f"ds_read2_b32 v[{96+8*kc+2*m}:{97+8*kc+2*m}], v{48+kc} offset0:{64*m} offset1:{64*m+32}")
        if kc == 2: o("s_waitcnt lgkmcnt(8)")
    for kc in range(4):
        o(f"s_waitcnt lgkmcnt({12-4*kc})")
        for m in range(4):
            a, b = 96 + 8*kc + 2*m, 97 + 8*kc + 2*m
            o(f"v_perm_b32 v{8+8*kc+m}, v{b}, v{a}, s56")
            o(f"v_perm_b32 v{12+8*kc+m}, v{b}, v{a}, s57")
        o(f"ds_read_b128 v[{72+4*kc}:{75+4*kc}], v{44+kc}")
    for kc in range(4):
        o(f"s_waitcnt lgkmcnt({3-kc})")
        cl = "0" if kc == 0 else "v[96:111]"
        ch = "0" if kc == 0 else "v[112:127]"
        o(f"v_mfma_f32_32x32x16_bf16 v[96:111], v[{8+8*kc}:{11+8*kc}], v[{72+4*kc}:{75+4*kc}], {cl}")
        o(f"v_mfma_f32_32x32x16_bf16 v[112:127], v[{12+8*kc}:{15+8*kc}], v[{72+4*kc}:{75+4*kc}], {ch}")
    o("v_mov_b32 v7, 0")
    o("s_barrier")
    o("s_cmp_lg_u32 s22, 14")
    o("s_cbranch_scc1 NONCE1")
    o("s_mov_b32 s52, 0x40000")
    lab("NONCE")
    o(f"global_load_dwordx2 v[8:9], v7, s[18:19] offset:{NONOFF} sc1")
    o("s_waitcnt vmcnt(0)")
    o("v_readfirstlane_b32 s53, v8")
    o("s_sub_u32 s52, s52, 1")
    o("s_cmp_eq_u32 s52, 0")
    o("s_cbranch_scc1 NONCE2")
    o("s_cmp_eq_u32 s53, 0")
    o("s_cbranch_scc1 NONCE")
    lab("NONCE2")
    o(f"ds_write_b64 v7, v[8:9] offset:{FLAGS+8}")
    lab("NONCE1")
    o("s_nop 7")
    o("s_nop 3")
    for r in range(0, 32, 2):
        o(f"v_pk_mul_f32 v[{96+r}:{97+r}], v[{96+r}:{97+r}], s[58:59]")
    for r in range(16):
        lo, hi, w = 96 + r, 112 + r, 48 + r
        o(f"v_cvt_pk_bf16_f32 v{w}, v{lo}, v{lo}")
        o(f"v_and_b32 v39, 0x7fffffff, v{hi}")
        o(f"v_add_u32 v39, 0x8000, v39")
        o(f"v_sub_u32_sdwa v39, v39, v{w} clamp dst_sel:DWORD dst_unused:UNUSED_PAD src0_sel:DWORD src1_sel:WORD_0")
        o(f"v_max3_f32 v7, |v{lo}|, |v{hi}|, v7")
        o(f"v_bfi_b32 v39, s61, v{hi}, v39")
        o(f"v_bfi_b32 v{w}, s60, v39, v{w}")
        if r % 4 == 3:
            m = r // 4
            o(f"ds_write_b128 v{40+m}, v[{48+4*m}:{51+4*m}]")
        if r == 9: o("s_barrier")
        if r == 15: bulk_dma()
    stamp(2)
    o(f"v_cmp_ngt_f32 vcc, 0x{TEN:08x}, v7")
    o(f"s_mov_b64 {sr(sVIO,2)}, vcc")
    o("s_waitcnt lgkmcnt(0)")
    for m in range(4):
        o(f"ds_read_b128 v[{64+4*m}:{67+4*m}], v5 offset:{m*1024}")
    for m in range(4):
        o(f"s_waitcnt lgkmcnt({3-m})")
        o(f"buffer_store_dwordx4 v[{64+4*m}:{67+4*m}], v2, {sr(sP,4)}, 0 offen offset:{1024*m}{SC1}")

    lab("PH1_DONE")
    o("v_mov_b32 v6, 0")
    o("v_mov_b32 v7, 1")
    o(f"s_cmp_eq_u64 {sr(sVIO,2)}, 0")
    o("s_cbranch_scc1 V1")
    o(f"ds_write_b32 v6, v7 offset:{FLAGS}")
    lab("V1")
    srd(sWS, 20, size=WS_SIZE)
    srd(sP, 20, size=P_SIZE)
    o(f"s_lshr_b32 s{sTILE}, s22, 1")
    o(f"s_and_b32 s{sHALF}, s22, 1")
    o(f"s_lshl_b32 s3, s{sTILE}, 11")
    o(f"s_add_u32 s{sROWB}, s90, s3")
    o(f"s_movk_i32 s{sK}, 0x3f80")
    o(f"s_movk_i32 s{sRS}, {RS}")
    o(f"s_mov_b32 s{sM24}, 0xffffff")
    o(f"s_mov_b32 s{sRND}, 0")
    o(f"s_mov_b32 s{sRDONE}, 0")
    o(f"s_mov_b32 s{sSTEP}, 32")
    o(f"s_mov_b32 s{sREC}, {REC_OFF}")
    o("v_and_b32 v40, 3, v0")
    o("v_bfe_u32 v41, v0, 2, 2")
    o("v_bfe_u32 v42, v0, 4, 2")
    o("v_lshlrev_b32 v42, 10, v42")
    o("v_lshl_add_u32 v42, v41, 4, v42")
    o("v_lshl_add_u32 v43, v40, 1, v42")
    o("v_lshl_add_u32 v42, v40, 2, v42")
    o("s_lshr_b32 s52, s22, 3")
    o("s_lshl_b32 s52, s52, 6")
    o("s_bfe_u32 s53, s22, 0x10002")
    o("s_lshl_b32 s53, s53, 3")
    o("s_add_u32 s52, s52, s53")
    o("s_and_b32 s53, s22, 3")
    o("s_lshl_b32 s53, s53, 12")
    o("s_add_u32 s52, s52, s53")
    o("v_add_u32 v43, s52, v43")
    o("s_bfe_u32 s52, s22, 0x10002")
    o("s_lshl_b32 s52, s52, 6")
    o("s_bfe_u32 s53, s22, 0x10001")
    o("s_lshl_b32 s53, s53, 1")
    o("s_sub_u32 s52, s52, s53")
    o("s_add_u32 s52, s52, 2")
    o("s_and_b32 s53, s22, 1")
    o("s_lshl_b32 s53, s53, 12")
    o("s_add_u32 s52, s52, s53")
    o("v_add_u32 v42, s52, v42")
    o(f"v_and_b32 v{vJ16}, 7, v0")
    o(f"v_lshlrev_b32 v{vJ16}, 4, v{vJ16}")
    o("s_waitcnt vmcnt(0) lgkmcnt(0)")
    o("s_barrier")
    stamp(3)
    o("s_cmp_lg_u32 s22, 12")
    o("s_cbranch_scc1 NODESC")
    o(f"s_cmp_ge_u32 s2, {NCH}")
    o("s_cbranch_scc1 NODESC")
    o(f"ds_read_b64 v[22:23], v6 offset:{FLAGS+8}")
    o("v_and_b32 v19, 63, v0")
    o("v_lshlrev_b32 v19, 12, v19")
    o("s_lshl_b32 s52, s2, 4")
    o(f"s_add_u32 s52, s52, {DESC_OFF}")
    o("s_waitcnt lgkmcnt(0)")
    o(f"buffer_store_dwordx4 v[20:23], v19, {sr(sWS,4)}, s52 offen{SC1}")
    lab("NODESC")
    o("s_cmp_lg_u32 s22, 15")
    o("s_cbranch_scc1 NOARR")
    o(f"ds_read_b32 v44, v6 offset:{FLAGS}")
    o("s_mul_i32 s52, s2, 62")
    o("s_lshr_b32 s52, s52, 8")
    o("s_lshl_b32 s52, s52, 2")
    o("v_mov_b32 v45, s52")
    o("s_mov_b64 exec, 1")
    o("s_waitcnt lgkmcnt(0)")
    o("v_lshl_or_b32 v44, v44, 16, 1")
    o("global_atomic_add v45, v44, s[18:19]")
    o("s_mov_b64 exec, -1")
    lab("NOARR")
    for t in range(8):
        o(f"ds_read_u16 v{56+t}, v43 offset:{RAWU + 128*t}")
    o(f"ds_read_b128 v[120:123], v{vJ16} offset:{RAW2 + 8192}")
    o("s_cmp_gt_u32 s22, 7")
    o("s_cbranch_scc1 NOW2")
    o("s_waitcnt lgkmcnt(4)")
    for t in range(8):
        o(f"ds_read_u16 v{64+t}, v42 offset:{RAW2 + 128*t}")
    o("s_waitcnt lgkmcnt(0)")
    for m in range(4):
        o(f"v_lshl_or_b32 v{76+m}, v{65+2*m}, 16, v{64+2*m}")
    o(f"ds_write_b128 v124, v[76:79] offset:{W2F}")
    lab("NOW2")
    o(f"v_add_u32 v125, {WUF}, v124")
    o(f"s_mov_b32 s90, 0x{NLOG2E:08x}")
    o("s_mov_b32 s91, s90")
    o("s_waitcnt lgkmcnt(0)")
    for m in range(4):
        o(f"v_lshl_or_b32 v{72+m}, v{57+2*m}, 16, v{56+2*m}")
    o("ds_write_b128 v125, v[72:75]")
    for k in range(4):
        o(f"v_and_b32 v{W+k}, 0xffff0000, v{120+k}")
        o(f"v_lshlrev_b32 v{W+4+k}, 16, v{120+k}")
    for p in range(4):
        pk("mul", W+2*p, vr(W+2*p,2), "s[90:91]")
    o(f"v_add_u32 v{vQC}, {QT}, v{vJ16}")
    o("v_lshrrev_b32 v125, 3, v0")
    o(f"v_mov_b32 v{vOC}, {(PART-QT) & 0xffffffff}")
    o(f"v_mad_u32_u24 v{vOC}, v125, s{sRS}, v{vOC}")
    o("v_and_b32 v72, 63, v0")
    o("v_lshlrev_b32 v72, 4, v72")
    o(f"s_lshl_b32 s52, s{sHALF}, 12")
    o("v_add_u32 v72, s52, v72")
    o("v_and_b32 v73, 15, v0")
    o(f"s_lshl_b32 s52, s{sTILE}, 4")
    o("v_add_u32 v73, s52, v73")
    o("v_and_b32 v74, 48, v0")
    o("v_lshlrev_b32 v75, 4, v0")
    o("v_and_b32 v75, 0x70, v75")
    o("v_xor_b32 v75, v75, v74")
    o("v_lshl_add_u32 v75, v73, 7, v75")
    o(f"v_add_u32 v75, {XT}, v75")
    o("v_xor_b32 v76, 64, v75")
    o(f"v_mad_u32_u24 v73, v73, s{sRS}, v74")
    o(f"s_lshl_b32 s3, s{sHALF}, 6")
    o(f"s_add_u32 s3, s3, {QT}")
    o("v_add_u32 v73, s3, v73")
    o("s_waitcnt lgkmcnt(0)")
    o("s_barrier")
    o(f"s_mov_b64 {sr(sVIO,2)}, 0")
    o("s_cmp_ge_u32 s22, 14")
    o("s_cbranch_scc1 NOQ")
    o("ds_read_b128 v[88:91], v75")
    o(f"ds_read_b128 v[96:99], v72 offset:{W2F}")
    o(f"ds_read_b128 v[104:107], v72 offset:{W2F+2048}")
    o("ds_read_b128 v[92:95], v76")
    o(f"ds_read_b128 v[100:103], v72 offset:{W2F+1024}")
    o(f"ds_read_b128 v[108:111], v72 offset:{W2F+3072}")
    o("s_waitcnt lgkmcnt(3)")
    o(f"v_mfma_f32_16x16x32_bf16 v[112:115], v[96:99], v[88:91], 0")
    o(f"v_mfma_f32_16x16x32_bf16 v[116:119], v[104:107], v[88:91], 0")
    o("s_waitcnt lgkmcnt(0)")
    o(f"v_mfma_f32_16x16x32_bf16 v[112:115], v[100:103], v[92:95], v[112:115]")
    o(f"v_mfma_f32_16x16x32_bf16 v[116:119], v[108:111], v[92:95], v[116:119]")
    o("s_nop 7")
    for p in range(4):
        pk("mul", 112+2*p, vr(112+2*p,2), "s[90:91]")
    o("ds_write_b128 v73, v[112:115]")
    o("ds_write_b128 v73, v[116:119] offset:128")
    o("v_max3_f32 v125, |v112|, |v113|, |v114|")
    o("v_max3_f32 v125, |v115|, |v116|, v125")
    o("v_max3_f32 v125, |v117|, |v118|, v125")
    o("v_max_f32 v125, |v119|, v125")
    o(f"v_cmp_ngt_f32 vcc, 0x{TEN:08x}, v125")
    o("s_cmp_eq_u64 vcc, 0")
    o("s_cbranch_scc1 NOQV")
    o(f"ds_write_b32 v6, v7 offset:{FLAGS}")
    lab("NOQV")
    silu_f(A, 112)
    lab("NOQ")
    prefill()
    o("v_and_b32 v7, 15, v0")
    o("v_add_u32 v6, 16, v7")
    o("v_lshrrev_b32 v72, 2, v0")
    o("v_and_b32 v72, 0xfc, v72")
    o("s_cmp_lg_u32 s22, 15")
    o("s_cbranch_scc1 DSKIP")
    o(f"ds_read_b64 v[74:75], v121 offset:{FLAGS+8}")
    o("v_lshlrev_b32 v76, 1, v125")
    o(f"s_lshr_b32 s3, s{sBK}, 2")
    o("s_lshl_b32 s3, s3, 12")
    o(f"s_add_u32 s3, s3, {DESC_OFF}")
    o(f"s_and_b32 s53, s{sBK}, 3")
    o("s_mul_i32 s54, s53, 12")
    o("s_cmp_eq_u32 s53, 3")
    o("s_cselect_b32 s54, 4, s54")
    o("v_mul_u32_u24 v73, 200, v76")
    o("s_mov_b32 s80, 0")
    o("s_mov_b32 s81, 0xfc000000")
    for i in range(4):
        o(f"s_mov_b64 {sr(sMASK+2*i,2)}, 0")
    o("s_mov_b32 s52, 0x40000")
    o("s_waitcnt lgkmcnt(0)")
    lab("DPOLL")
    for i in range(4):
        o(f"s_cmp_eq_u64 {sr(sMASK+2*i,2)}, -1")
        o(f"s_cbranch_scc1 DP{i}")
        o(f"buffer_load_dwordx4 {vr(56+4*i,4)}, v76, {sr(sWS,4)}, s3 offen offset:{1024*i}{SC1}")
        lab(f"DP{i}")
    o("s_waitcnt vmcnt(0)")
    for i in range(4):
        o(f"v_cmp_eq_u64 {sr(sMASK+2*i,2)}, v[74:75], {vr(58+4*i,2)}")
    o(f"s_or_b64 {sr(sMASK+6,2)}, {sr(sMASK+6,2)}, s[80:81]")
    o(f"s_and_b64 {sr(sMASK+8,2)}, {sr(sMASK,2)}, {sr(sMASK+2,2)}")
    o(f"s_and_b64 {sr(sMASK+10,2)}, {sr(sMASK+4,2)}, {sr(sMASK+6,2)}")
    o(f"s_and_b64 {sr(sMASK+8,2)}, {sr(sMASK+8,2)}, {sr(sMASK+10,2)}")
    o(f"s_cmp_eq_u64 {sr(sMASK+8,2)}, -1")
    o("s_cbranch_scc1 DOK")
    o("s_sub_u32 s52, s52, 1")
    o("s_cmp_eq_u32 s52, 0")
    o("s_cbranch_scc1 DOK")
    o(f"s_sleep {SLEEP}")
    o("s_branch DPOLL")
    lab("DOK")
    o("s_cmp_lg_u32 s53, 3")
    o("s_cbranch_scc1 DK3")
    for i in range(4):
        o(f"v_mov_b32 v{56+4*i}, v{57+4*i}")
    lab("DK3")
    o("v_lshrrev_b32 v76, 2, v76")
    for i in range(4):
        o(f"v_alignbit_b32 v{56+4*i}, v{57+4*i}, v{56+4*i}, s54")
        o(f"v_bfe_u32 v{57+4*i}, v{56+4*i}, 12, 12")
        o(f"v_and_b32 v{56+4*i}, 0xfff, v{56+4*i}")
        o(f"v_sub_u32 v{57+4*i}, v{57+4*i}, v{56+4*i}")
        o(f"v_add_u32 v{56+4*i}, v{56+4*i}, v73")
        if i: o(f"v_add_u32 v{56+4*i}, {204800*i}, v{56+4*i}")
        o(f"v_lshl_or_b32 v{56+4*i}, v{57+4*i}, 20, v{56+4*i}")
        if i == 3: o(f"v_cndmask_b32 v{56+4*i}, v{56+4*i}, 0, s[80:81]")
        o(f"ds_write_b32 v76, v{56+4*i} offset:{DLDS + 256*i}")
    lab("DSKIP")
    o("s_waitcnt lgkmcnt(0)")
    o("s_barrier")
    stamp(4)
    o(f"ds_read2st64_b32 {vr(DESC,2)}, v72 offset0:{DLDS//256} offset1:{DLDS//256+1}")
    o(f"ds_read2st64_b32 {vr(DESC+2,2)}, v72 offset0:{DLDS//256+2} offset1:{DLDS//256+3}")
    o("s_waitcnt lgkmcnt(0)")
    lab("K2_ROUND")
    o(f"s_add_u32 s90, s{sRND}, s{sSTEP}")
    o("s_mov_b32 s3, 0xfffff")
    for i in range(4):
        o(f"v_lshrrev_b32 v{80+i}, 20, v{DESC+i}")
        o(f"v_and_b32 v84, s3, v{DESC+i}")
        o(f"v_cmp_lt_u32 {sr(sMASK+4*i,2)}, v7, v{80+i}")
        o(f"v_cmp_lt_u32 {sr(sMASK+4*i+2,2)}, v6, v{80+i}")
        o(f"v_add_lshl_u32 v84, v84, v7, 3")
        o(f"s_mov_b64 exec, {sr(sMASK+4*i,2)}")
        o(f"buffer_load_dwordx2 {vr(56+4*i,2)}, v84, {sr(sWS,4)}, s{sREC} offen{SC1}")
        o(f"s_mov_b64 exec, {sr(sMASK+4*i+2,2)}")
        o(f"s_cbranch_execz K2_T2_{i}")
        o(f"buffer_load_dwordx2 {vr(58+4*i,2)}, v84, {sr(sWS,4)}, s{sREC} offen offset:128{SC1}")
        lab(f"K2_T2_{i}")
        o("s_mov_b64 exec, -1")
    o("v_max3_u32 v80, v80, v81, v82")
    o("v_max_u32 v80, v80, v83")
    o("v_cmp_lt_u32 s[54:55], s90, v80")
    o("v_mov_b32 v7, 1")
    o("v_mov_b32 v6, 0")
    o("s_cmp_eq_u64 s[54:55], 0")
    o("s_cbranch_scc1 K2_F2")
    o(f"ds_write_b32 v6, v7 offset:{FLAGS+4}")
    lab("K2_F2")
    o("v_and_b32 v5, 63, v0")
    o("v_lshlrev_b32 v5, 3, v5")
    o(f"s_movk_i32 s3, {SLOT}")
    o("s_waitcnt vmcnt(0)")
    stamp(5)
    for i in range(8):
        o(f"v_lshrrev_b32 v{100+i}, 22, v{56+2*i}")
    for i in range(8):
        masked(i, "K2_RK", f"ds_add_rtn_u32 v{80+i}, v{100+i}, v7 offset:{CNT}")
    o("s_mov_b64 exec, -1")
    o("s_waitcnt lgkmcnt(0)")
    o("s_barrier")
    stamp(6)
    o(f"ds_read_b64 v[88:89], v5 offset:{CNT}")
    o(f"ds_read_b64 v[90:91], v6 offset:{FLAGS}")
    o("s_waitcnt lgkmcnt(1)")
    o("v_add_u32 v92, 3, v88")
    o("v_add_u32 v93, 3, v89")
    o("v_lshrrev_b32 v92, 2, v92")
    o("v_lshrrev_b32 v93, 2, v93")
    o("v_add_u32 v94, v92, v93")
    o("v_mov_b32 v95, v94")
    wave_scan(95)
    o("v_sub_u32 v96, v95, v94")
    o("v_add_u32 v97, v96, v92")
    o("v_lshl_add_u32 v98, v96, 5, s3")
    o("v_lshl_add_u32 v99, v97, 5, s3")
    o(f"ds_write_b64 v5, v[98:99] offset:{OFFS}")
    o(f"v_readlane_b32 s{sQN}, v95, 63")
    o("s_waitcnt lgkmcnt(0)")
    for i in range(8):
        masked(i, "K2_OF", f"ds_read_b32 v{100+i}, v{100+i} offset:{OFFS}")
    o("s_mov_b64 exec, -1")
    o(f"s_cmp_gt_u32 s{sQN}, {NSLOT//4 - 12}")
    o("s_cbranch_scc1 K2_NARROW")
    o(f"v_readfirstlane_b32 s{sMORE}, v91")
    o(f"s_add_u32 s{sS}, s{sQN}, 7")
    o(f"s_lshr_b32 s{sS}, s{sS}, 3")
    o(f"s_lshr_b32 s{sBASE}, s{sS}, 4")
    o(f"s_and_b32 s{sREM}, s{sS}, 15")
    o(f"s_cmp_lt_u32 s22, s{sREM}")
    o(f"s_cselect_b32 s{sRW}, 1, 0")
    o(f"s_add_u32 s{sRW}, s{sRW}, s{sBASE}")
    o(f"s_mul_i32 s3, s{sBASE}, s22")
    o(f"s_min_u32 s90, s22, s{sREM}")
    o("s_add_u32 s3, s3, s90")
    o("s_lshl_b32 s3, s3, 8")
    o(f"s_add_u32 s3, s3, {SLOT}")
    o(f"s_lshl_b32 s90, s{sRW}, 5")
    o("v_bfe_u32 v7, v0, 3, 3")
    o(f"v_mov_b32 v{vSLOT}, s3")
    o(f"v_mad_u32_u24 v{vSLOT}, v7, s90, v{vSLOT}")
    o("s_waitcnt lgkmcnt(0)")
    for i in range(8):
        o(f"v_lshl_add_u32 v{100+i}, v{80+i}, 3, v{100+i}")
    for i in range(8):
        masked(i, "K2_SC", f"ds_write_b64 v{100+i}, {vr(56+2*i,2)}")
    o("s_mov_b64 exec, -1")
    o("s_cmp_lg_u32 s22, 15")
    o("s_cbranch_scc1 NOPOLL")
    o("v_and_b32 v44, 63, v0")
    o("v_lshlrev_b32 v44, 2, v44")
    o("s_mov_b32 exec_hi, 0x3fffffff")
    o("s_mov_b32 s52, 0x40000")
    lab("POLL")
    o("global_load_dword v45, v44, s[18:19] sc1")
    o("s_waitcnt vmcnt(0)")
    o("v_and_b32 v46, 0xffff, v45")
    o("v_mov_b32 v47, v46")
    wave_scan(47)
    o("s_nop 1")
    o("v_readlane_b32 s53, v47, 61")
    o("s_cmp_eq_u32 s53, 256")
    o("s_cbranch_scc1 POLLED")
    o("s_sub_u32 s52, s52, 1")
    o("s_cmp_eq_u32 s52, 0")
    o("s_cbranch_scc1 POLLED")
    o(f"s_sleep {SLEEP}")
    o("s_branch POLL")
    lab("POLLED")
    o("v_cmp_lt_u32 vcc, 0xffff, v45")
    o("s_mov_b64 exec, -1")
    o("s_cmp_eq_u64 vcc, 0")
    o("s_cbranch_scc1 NOPOLL")
    o("v_mov_b32 v45, 1")
    o(f"ds_write_b32 v6, v45 offset:{FLAGS}")
    lab("NOPOLL")
    o("s_waitcnt lgkmcnt(0)")
    o("s_barrier")
    stamp(7)
    o(f"ds_read_b32 v90, v6 offset:{FLAGS}")
    o("s_cmp_lg_u32 s22, 15")
    o("s_cbranch_scc1 K2_NONI")
    o(f"s_add_u32 s3, s{sBASE}, 1")
    o("v_cvt_f32_u32 v44, s3")
    o(f"v_cvt_f32_u32 v45, s{sBASE}")
    o("v_rcp_f32 v44, v44")
    o("v_rcp_f32 v45, v45")
    o(f"s_mul_i32 s3, s3, s{sREM}")
    o("s_lshl_b32 s3, s3, 3")
    o("v_cvt_f32_u32 v46, s3")
    o(f"s_lshl_b32 s90, s{sREM}, 3")
    o("v_add_u32 v100, -1, v97")
    o("v_add_u32 v101, -1, v95")
    for q in (96, 97, 100, 101):
        o(f"v_cvt_f32_u32 v48, v{q}")
        o("v_add_f32 v48, 0.5, v48")
        o("v_sub_f32 v49, v48, v46")
        o("v_mul_f32 v48, v48, v44")
        o("v_mul_f32 v49, v49, v45")
        o("v_cvt_u32_f32 v48, v48")
        o("v_cvt_u32_f32 v49, v49")
        o(f"v_cmp_gt_u32 vcc, s3, v{q}")
        o("v_add_u32 v49, s90, v49")
        o("s_nop 0")
        o(f"v_cndmask_b32 v{q}, v49, v48, vcc")
    for (rf, rl, nq, cn) in ((96, 100, 92, 88), (97, 101, 93, 89)):
        o(f"v_sub_u32 v{rl}, v{rl}, v{rf}")
        o(f"v_add_u32 v{rl}, 1, v{rl}")
        o(f"v_cmp_lt_u32 vcc, 0, v{nq}")
        o(f"v_lshlrev_b32 v{nq}, 2, v{nq}")
        o(f"v_sub_u32 v{nq}, v{nq}, v{cn}")
        o(f"v_cndmask_b32 v{rl}, 0, v{rl}, vcc")
        o(f"v_and_b32 v{rf}, 0xff, v{rf}")
        o(f"v_lshl_or_b32 v{rf}, v{rl}, 8, v{rf}")
        o(f"v_lshl_or_b32 v{rf}, v{nq}, 16, v{rf}")
    o(f"ds_write_b64 v5, v[96:97] offset:{NINFO}")
    lab("K2_NONI")
    o("s_waitcnt lgkmcnt(0)")
    o(f"v_readfirstlane_b32 s{sSLOW}, v90")
    o(f"s_cmp_eq_u32 s{sRW}, 0")
    o("s_cbranch_scc1 K2_MAIN_DONE")
    o(f"s_cmp_lg_u32 s{sSLOW}, 0")
    o("s_cbranch_scc1 K2_MAIN_S")
    gen_main("F", False)
    gen_main("S", True)
    lab("K2_MAIN_DONE")
    o("s_waitcnt lgkmcnt(0)")
    stamp(8)
    o("s_cmp_ge_u32 s22, 14")
    o("s_cbranch_scc1 K2_IDLE")
    o("v_and_b32 v6, 15, v0")
    o(f"s_lshl_b32 s3, s{sTILE}, 4")
    o("v_add_u32 v6, s3, v6")
    o("v_and_b32 v5, 48, v0")
    o("v_lshlrev_b32 v7, 2, v6")
    o(f"s_lshl_b32 s3, s{sHALF}, 6")
    o("v_add_u32 v36, s3, v5")
    o(f"v_mad_u32_u24 v37, v6, s{sRS}, v36")
    o(f"v_add_u32 v37, {PART}, v37")
    o(f"s_movk_i32 s3, {AGG_STRIDE}")
    o("v_mad_u32_u24 v41, v6, s3, v36")
    o("v_mad_u32_u24 v42, v6, s3, v5")
    o("v_lshlrev_b32 v40, 4, v0")
    o("v_and_b32 v40, 0x70, v40")
    o("v_xor_b32 v40, v40, v5")
    o("v_lshl_add_u32 v40, v6, 7, v40")
    o(f"v_add_u32 v40, {XT}, v40")
    o("v_xor_b32 v44, 64, v40")
    o("v_and_b32 v43, 63, v0")
    o("v_lshlrev_b32 v43, 4, v43")
    o(f"s_lshl_b32 s3, s{sHALF}, 13")
    o(f"s_add_u32 s3, s3, {WUF}")
    o("v_add_u32 v43, s3, v43")
    o("ds_read_b128 v[88:91], v40")
    o("ds_read_b128 v[92:95], v44")
    for ks in range(4):
        for sub in range(2):
            o(f"ds_read_b128 {vr(56+16*sub+4*ks,4)}, v43 offset:{4096*sub + 1024*ks}")
    srd(sOUT, 16, size=N*128)
    o(f"s_mov_b32 s90, 0x{NLN2:08x}")
    o("s_mov_b32 s91, s90")
    bop = ["v[88:91]", "v[92:95]", "v[96:99]", "v[100:103]"]
    def mm(ks):
        for sub in range(2):
            dd = vr(48+4*sub, 4)
            o(f"v_mfma_f32_16x16x32_bf16 {dd}, {vr(56+16*sub+4*ks,4)}, {bop[ks]}, {'0' if ks == 0 else dd}")
    o("s_waitcnt lgkmcnt(0)")
    mm(0); mm(1)
    o("s_barrier")
    stamp(9)
    o(f"ds_read_b32 v38, v7 offset:{NINFO}")
    o(f"s_cmp_eq_u32 s{sRDONE}, 0")
    o("s_cbranch_scc1 K2_R0")
    o(f"v_add_u32 v39, {(QT-PART) & 0xffffffff}, v37")
    o("ds_read_b128 v[104:107], v39")
    o("ds_read_b128 v[108:111], v39 offset:128")
    o("s_waitcnt lgkmcnt(0)")
    silu_f(96, 104)
    o("v_lshrrev_b32 v39, 16, v38")
    o("v_cvt_f32_u32 v39, v39")
    o("v_cmp_lt_f32 vcc, 0, v39")
    o("s_and_saveexec_b64 s[80:81], vcc")
    for k in range(8):
        o(f"v_fma_f32 v{A+k}, -v39, v{96+k}, v{A+k}")
    o("s_mov_b64 exec, -1")
    o("v_and_b32 v39, 0xff, v38")
    o(f"v_mad_u32_u24 v37, v39, s{sRS}, v37")
    o("v_bfe_u32 v38, v38, 8, 8")
    o("s_branch K2_RED")
    lab("K2_R0")
    o("s_waitcnt lgkmcnt(0)")
    o("v_and_b32 v39, 0xff, v38")
    o(f"v_mad_u32_u24 v37, v39, s{sRS}, v37")
    for m in range(3):
        o(f"ds_read_b128 {vr(96+8*m,4)}, v37 offset:{RS*m}")
        o(f"ds_read_b128 {vr(100+8*m,4)}, v37 offset:{RS*m+128}")
    o("v_cvt_f32_ubyte2 v44, v38")
    o("v_bfe_u32 v38, v38, 8, 8")
    for p in range(4):
        pk("mul", A+2*p, vr(A+2*p,2), "v[44:45]", mods="op_sel_hi:[1,0] neg_lo:[0,1] neg_hi:[0,1]")
    o(f"s_cmp_eq_u32 s{sSLOW}, 0")
    o("s_cbranch_scc1 K2_RED2")
    o("v_cmp_eq_f32 vcc, 0, v44")
    o("s_and_b64 exec, exec, vcc")
    for p in range(4):
        o(f"v_mov_b64 {vr(A+2*p,2)}, 0")
    o("s_mov_b64 exec, -1")
    o("s_branch K2_RED2")
    lab("K2_RED")
    for m in range(3):
        o(f"ds_read_b128 {vr(96+8*m,4)}, v37 offset:{RS*m}")
        o(f"ds_read_b128 {vr(100+8*m,4)}, v37 offset:{RS*m+128}")
    lab("K2_RED2")
    o(f"v_add_u32 v37, {3*RS}, v37")
    for m in range(3):
        o(f"v_cmp_lt_i32 vcc, {m}, v38")
        o("s_and_b64 exec, exec, vcc")
        o(f"s_waitcnt lgkmcnt({4-2*m})")
        for p in range(4):
            pk("add", A+2*p, vr(A+2*p,2), vr(96+8*m+2*p,2))
    o("v_cmp_lt_i32 vcc, 3, v38")
    o("v_subrev_u32 v38, 3, v38")
    o("s_and_b64 exec, exec, vcc")
    o("s_cbranch_execnz K2_RED")
    o("s_mov_b64 exec, -1")
    o(f"s_cmp_eq_u32 s{sMORE}, 0")
    o("s_cbranch_scc1 K2_FINAL")
    lab("K2_NEXT")
    o(f"s_add_u32 s{sRND}, s{sRND}, s{sSTEP}")
    o(f"s_add_u32 s{sRDONE}, s{sRDONE}, 1")
    lab("K2_REDO")
    o("s_waitcnt lgkmcnt(0)")
    o("s_barrier")
    prefill()
    o("v_and_b32 v7, 15, v0")
    o(f"v_add_u32 v7, s{sRND}, v7")
    o("v_add_u32 v6, 16, v7")
    o(f"s_cmp_eq_u32 s{sSTEP}, 32")
    o("s_cbranch_scc1 K2_WIDE")
    o("v_mov_b32 v6, 0x100000")
    lab("K2_WIDE")
    o("s_waitcnt lgkmcnt(0)")
    o("s_barrier")
    o("s_branch K2_ROUND")
    lab("K2_NARROW")
    o(f"s_mov_b32 s{sSTEP}, 16")
    o("s_branch K2_REDO")
    lab("K2_IDLE")
    o("s_barrier")
    o(f"s_cmp_eq_u32 s{sMORE}, 0")
    o("s_cbranch_scc0 K2_NEXT")
    o("s_branch K2_END")
    lab("K2_FINAL")
    for p in range(4):
        pk("mul", A+2*p, vr(A+2*p,2), "s[90:91]")
    for k in range(4):
        o(f"v_cvt_pk_bf16_f32 v{96+k}, v{A+4+k}, v{A+k}")
    o(f"ds_write_b128 v41, v[96:99] offset:{AGG}")
    o("s_mul_i32 s3, s22, 1280")
    o("v_and_b32 v36, 15, v0")
    o("v_mul_u32_u24 v36, 80, v36")
    o("v_add3_u32 v36, v36, v5, s3")
    o("v_bfe_u32 v37, v0, 2, 4")
    o("v_and_b32 v38, 3, v0")
    o("v_lshlrev_b32 v38, 4, v38")
    o("v_mul_u32_u24 v39, 80, v37")
    o("v_add3_u32 v39, v39, v38, s3")
    o("v_lshl_add_u32 v4, v37, 7, v38")
    o(f"s_lshl_b32 s3, s{sHALF}, 6")
    o(f"s_add_u32 s3, s3, s{sROWB}")
    o("v_add_u32 v4, s3, v4")
    o(f"s_lshl_b32 s3, s{sTILE}, 4")
    o("s_sub_u32 s3, 98, s3")
    o("v_cmp_gt_u32 vcc, s3, v37")
    o(f"s_mov_b32 s90, 0x{NLOG2E:08x}")
    o("s_mov_b32 s91, s90")
    o("s_waitcnt lgkmcnt(0)")
    o("s_barrier")
    stamp(10)
    o(f"ds_read_b128 v[96:99], v42 offset:{AGG}")
    o(f"ds_read_b128 v[100:103], v42 offset:{AGG+64}")
    o("s_waitcnt lgkmcnt(1)")
    mm(2)
    o("s_waitcnt lgkmcnt(0)")
    mm(3)
    o("s_nop 7")
    for p in range(4):
        pk("mul", 112+2*p, vr(48+2*p,2), "s[90:91]")
    for k in range(8):
        o(f"v_exp_f32 v{112+k}, v{112+k}")
    o("s_nop 0")
    for p in range(4):
        pk("add", 112+2*p, vr(112+2*p,2), "1.0", mods="op_sel_hi:[1,0]")
    for k in range(8):
        o(f"v_rcp_f32 v{112+k}, v{112+k}")
    o("s_nop 0")
    for p in range(4):
        pk("mul", 112+2*p, vr(112+2*p,2), vr(48+2*p,2))
    for k in range(4):
        o(f"v_cvt_pk_bf16_f32 v{120+k}, v{112+2*k}, v{113+2*k}")
    o(f"ds_write_b128 v36, v[120:123] offset:{OTR}")
    o("s_waitcnt lgkmcnt(0)")
    o(f"ds_read_b128 v[120:123], v39 offset:{OTR}")
    o("s_and_b64 exec, exec, vcc")
    o("s_cbranch_execz K2_END")
    o("s_waitcnt lgkmcnt(0)")
    o(f"buffer_store_dwordx4 v[120:123], v4, {sr(sOUT,4)}, 0 offen")
    lab("K2_END")
    if STAMP: o("s_waitcnt vmcnt(0)")
    stamp(11)
    stamp_flush(12)
    lab("K2_EXIT")
    o("s_endpgm")

def main(path):
    hdr = open("gather_scatter__mpnn_edge_mlp__graph.s.ref").read().split("\n")
    head = [h for h in hdr if h.startswith(";") and "@launch" not in h]
    L.extend(head)
    L.append(f"; @launch grid=({NBK},1,1) block=(1024,1,1) lds={LDS}")
    L.append('.amdgcn_target "amdgcn-amd-amdhsa--gfx950"')
    L.append(".text")
    gen()
    L.append('.section .rodata,"a"')
    L.append(".p2align 6")
    L.append(f".amdhsa_kernel {KN}")
    L.append("  .amdhsa_next_free_vgpr 128")
    L.append(f"  .amdhsa_next_free_sgpr {102 if STAMP else 100}")
    L.append("  .amdhsa_accum_offset 128")
    L.append("  .amdhsa_group_segment_fixed_size 0")
    L.append("  .amdhsa_kernarg_size 72")
    L.append("  .amdhsa_user_sgpr_count 2")
    L.append("  .amdhsa_user_sgpr_kernarg_segment_ptr 1")
    L.append("  .amdhsa_system_sgpr_workgroup_id_x 1")
    L.append("  .amdhsa_float_denorm_mode_32 3")
    L.append(".end_amdhsa_kernel")
    open(path, "w").write("\n".join(x for x in L if x is not None) + "\n")
    print(f"{KN}:{NBK}:1024:{LDS}")

if __name__ == "__main__":
    main(sys.argv[1] if len(sys.argv) > 1 else "v7.s")
```

```python
import sys, os

KN = "gather_scatter__mpnn_edge_mlp__graph_kernel"
N = 25000; E = 800000; NB = 98; NBK = 256; CH = 3200; NCH = 250
P_SIZE = N * 128
REC_OFF = 0x320000
DESC_OFF = 0x940000
WS_SIZE = 0x980000
NTILE = 782
NONOFF = 248
SPIN = 0x10000
NLOG2E = 0xbfb8aa3b
NLN2 = 0xbf317218
TEN = 0x41200000
DUMMY = 0x00FFFF80 | (98 << 24)
OOB = 0x7fffff00

CNT = 0
OFFS = 512
FLAGS = 1152
NINFO = 1280
SLOT = 1792
NSLOT = 4608
PART = SLOT + NSLOT * 8
RS = 272
QT = PART + 226 * RS
XT = (QT + 112 * RS + 127) & ~127
WUF = XT + 112 * 128
LDS = WUF + 16384
AGG = SLOT; AGG_STRIDE = 144
OTR = SLOT + 16384
C1 = PART; O1 = PART + 1024; R1 = PART + 2048; EF1 = PART + 27648
PTA = PART + 28672; PTB = PART
SYNC = FLAGS + 16
RAWU = SLOT; RAW2 = SLOT + 16384
W2F = PART
DLDS = PART + 8192 + 256
assert DLDS % 256 == 0 and DLDS // 256 + 3 < 256
assert PART % 128 == 0

STAMP = int(os.environ.get("STAMP", "0"))
ARR = os.environ.get("ARR", "atomic")
NSH = int(os.environ.get("NSH", "64"))
SHSTR = int(os.environ.get("SHSTR", "4"))
SLEEP = int(os.environ.get("SLEEP", "2"))
PFIRST = int(os.environ.get("PFIRST", "0"))
PRIO = int(os.environ.get("PRIO", "1"))
DBG_OFF = 0x1000000
STAMP_SG = [95, 98, 99, 100, 101, 36, 37, 38, 39, 40, 41, 42]

L = []
def o(s): L.append("    " + s)
def lab(s): L.append(s + ":")
def vr(a, n): return f"v[{a}:{a+n-1}]"
def sr(a, n): return f"s[{a}:{a+n-1}]"

def stamp(idx):
    if not STAMP: return
    o("s_memrealtime s[96:97]")
    o("s_waitcnt lgkmcnt(0)")
    o(f"s_mov_b32 s{STAMP_SG[idx]}, s96")
def stamp_flush(n):
    if not STAMP: return
    o("s_mov_b64 exec, -1")
    o("s_lshl_b32 s96, s2, 4")
    o("s_add_u32 s96, s96, s22")
    o("s_lshl_b32 s96, s96, 6")
    o(f"s_add_u32 s96, s96, {DBG_OFF + 0x100000}")
    o("s_add_u32 s96, s20, s96")
    o("s_addc_u32 s97, s21, 0")
    o("v_mov_b32 v1, 0")
    for i in range(n):
        o(f"v_mov_b32 v2, s{STAMP_SG[i]}")
        o(f"global_store_dword v1, v2, s[96:97] offset:{4*i}")

def srd(d, base_lo, off=None, size=None, off_s=None):
    if off is None and off_s is None:
        o(f"s_mov_b64 {sr(d,2)}, {sr(base_lo,2)}")
    else:
        first = True
        for x in (off, off_s):
            if x is None: continue
            src_lo = f"s{base_lo}" if first else f"s{d}"
            src_hi = f"s{base_lo+1}" if first else f"s{d+1}"
            o(f"s_add_u32 s{d}, {src_lo}, {x}")
            o(f"s_addc_u32 s{d+1}, {src_hi}, 0")
            first = False
    o(f"s_mov_b32 s{d+2}, {size}")
    o(f"s_mov_b32 s{d+3}, 0x20000")

def wave_scan(v, op="add_u32"):
    for sh in (1, 2, 4, 8):
        o("s_nop 1")
        o(f"v_{op}_dpp v{v}, v{v}, v{v} row_shr:{sh} row_mask:0xf bank_mask:0xf bound_ctrl:0")
    o("s_nop 1")
    o(f"v_{op}_dpp v{v}, v{v}, v{v} row_bcast:15 row_mask:0xa bank_mask:0xf")
    o("s_nop 1")
    o(f"v_{op}_dpp v{v}, v{v}, v{v} row_bcast:31 row_mask:0xc bank_mask:0xf")

def lds_sync(tag, idx, n, vz, v1, vt):
    o("s_waitcnt lgkmcnt(0)")
    o("s_mov_b64 exec, 1")
    o(f"ds_add_u32 v{vz}, v{v1} offset:{SYNC if idx is None else SYNC}+{idx}" if False else f"ds_add_u32 v{vz}, v{v1} offset:{SYNC}" if idx is None else f"ds_add_u32 v{vz}, v{v1} offset:{SYNC + 4*idx}")
    lab(f"LS_{tag}")
    o(f"ds_read_b32 v{vt}, v{vz} offset:{SYNC if idx is None else SYNC + 4*idx}")
    o("s_waitcnt lgkmcnt(0)")
    o(f"v_readfirstlane_b32 s53, v{vt}")
    o(f"s_cmp_ge_u32 s53, {n}")
    o(f"s_cbranch_scc1 LSX_{tag}")
    o("s_sleep 1")
    o(f"s_branch LS_{tag}")
    lab(f"LSX_{tag}")
    o("s_mov_b64 exec, -1")

def pk(op, d, *src, mods=""):
    o(f"v_pk_{op}_f32 {vr(d,2)}, " + ", ".join(src) + (" " + mods if mods else ""))

vJ16, vQC, vOC, vSLOT, vQA, vQAN, vT0 = 1, 2, 3, 4, 5, 6, 7
W, ACC, A, DESC, GA, RA, RB, PA, PB, Q, NN, D, T, EE = 8, 16, 24, 32, 36, 40, 48, 56, 72, 88, 96, 104, 112, 120
sX, sP, sWS, sWM, sWU, sOUT = 24, 28, 32, 36, 40, 44
sMASK = 56
sQN, sS, sBASE, sREM, sRW, sCNT, sK, sM24 = 72, 73, 74, 75, 76, 77, 78, 79
sVIO = 82
sSLOW, sMORE, sRND = 84, 85, 23
sTILE, sHALF, sROWB, sBK = 86, 87, 88, 89
sSTEP, sRDONE, sRS, sREC = 48, 49, 50, 93
SC1 = " sc1"
GSC = os.environ.get("GSC", " sc1")

def gathers(R, P):
    for i in range(4):
        o(f"v_and_or_b32 v{GA+i}, v{R+2*i}, s{sM24}, v{vJ16}")
        o(f"buffer_load_dwordx4 {vr(P+4*i,4)}, v{GA+i}, {sr(sP,4)}, 0 offen{GSC}")

def compute_quad(R, RN, P, slow, QA, QN, so):
    for i in range(4):
        TT = NN if (i == 0 and not slow) else T
        for p in range(4):
            pk("fma", TT+2*p, vr(R+2*i,2), vr(W+2*p,2), vr(Q+2*p,2), mods="op_sel:[1,0,0] op_sel_hi:[1,1,1]")
        if i == 3:
            o(f"v_add_u32 v{vT0}, v{QA}, v{vOC}")
            o(f"v_lshrrev_b32 v{QN}, 24, v{RN}")
            o(f"v_mad_u32_u24 v{QN}, v{QN}, s{sRS}, v{vQC}")
            o(f"ds_read_b128 {vr(Q,4)}, v{QN}")
            o(f"ds_read_b128 {vr(Q+4,4)}, v{QN} offset:128")
            o(f"ds_read_b128 {vr(R,4)}, v{vSLOT} offset:{so}")
            o(f"ds_read_b128 {vr(R+4,4)}, v{vSLOT} offset:{so+16}")
            if so == 96: o(f"v_add_u32 v{vSLOT}, 64, v{vSLOT}")
        for k in range(4):
            o(f"v_dot2_f32_bf16 v{TT+4+k}, v{P+4*i+k}, s{sK}, v{TT+4+k}")
        pk("add", TT, vr(P+4*i,2), vr(TT,2))
        pk("add", TT+2, vr(P+4*i+2,2), vr(TT+2,2))
        for k in range(8):
            o(f"v_exp_f32 v{EE+k}, v{TT+k}")
        if slow:
            for p in range(4):
                pk("add", EE+2*p, vr(EE+2*p,2), "1.0", mods="op_sel_hi:[1,0]")
            for k in range(8):
                o(f"v_rcp_f32 v{EE+k}, v{EE+k}")
            o("s_nop 0")
            for p in range(4):
                pk("fma", ACC+2*p, vr(T+2*p,2), vr(EE+2*p,2), vr(ACC+2*p,2))
        elif i == 0:
            for p in range(4):
                pk("add", D+2*p, vr(EE+2*p,2), "1.0", mods="op_sel_hi:[1,0]")
        else:
            for p in range(4):
                pk("fma", NN+2*p, vr(NN+2*p,2), vr(EE+2*p,2), vr(NN+2*p,2))
            for p in range(4):
                pk("fma", NN+2*p, vr(T+2*p,2), vr(D+2*p,2), vr(NN+2*p,2))
            for p in range(4):
                pk("fma", D+2*p, vr(D+2*p,2), vr(EE+2*p,2), vr(D+2*p,2))
    if not slow:
        for k in range(8):
            o(f"v_rcp_f32 v{EE+k}, v{D+k}")
        o("s_nop 0")
        for p in range(4):
            pk("fma", ACC+2*p, vr(NN+2*p,2), vr(EE+2*p,2), vr(ACC+2*p,2))
    o(f"ds_write_b128 v{vT0}, {vr(ACC,4)}")
    o(f"ds_write_b128 v{vT0}, {vr(ACC+4,4)} offset:128")

def gen_main(tag, slow):
    lab(f"K2_MAIN_{tag}")
    o(f"ds_read_b128 {vr(RA,4)}, v{vSLOT}")
    o(f"ds_read_b128 {vr(RA+4,4)}, v{vSLOT} offset:16")
    o(f"ds_read_b128 {vr(RB,4)}, v{vSLOT} offset:32")
    o(f"ds_read_b128 {vr(RB+4,4)}, v{vSLOT} offset:48")
    for p in range(4):
        o(f"v_mov_b64 {vr(ACC+2*p,2)}, 0")
    o(f"s_sub_u32 s{sCNT}, s{sRW}, 1")
    if PRIO: o("s_setprio 3")
    o("s_waitcnt lgkmcnt(2)")
    gathers(RA, PA)
    o(f"v_lshrrev_b32 v{vQA}, 24, v{RA}")
    o(f"v_mad_u32_u24 v{vQA}, v{vQA}, s{sRS}, v{vQC}")
    o(f"ds_read_b128 {vr(Q,4)}, v{vQA}")
    o(f"ds_read_b128 {vr(Q+4,4)}, v{vQA} offset:128")
    o("s_waitcnt lgkmcnt(0)")
    for (x, R, RN, P, PN, QA, QN, so) in (("A", RA, RB, PA, PB, vQA, vQAN, 64), ("B", RB, RA, PB, PA, vQAN, vQA, 96)):
        t = tag + x
        lab(f"K2_LOOP_{t}")
        o(f"s_cmp_eq_u32 s{sCNT}, 0")
        o(f"s_cbranch_scc1 K2_LAST_{t}")
        if PRIO:
            o(f"s_cmp_gt_u32 s{sCNT}, 2")
            o(f"s_cbranch_scc1 K2_PR_{t}")
            o("s_setprio 2")
            o(f"s_cmp_eq_u32 s{sCNT}, 2")
            o(f"s_cbranch_scc1 K2_PR_{t}")
            o("s_setprio 1")
            lab(f"K2_PR_{t}")
        o("s_waitcnt lgkmcnt(2)")
        gathers(RN, PN)
        o("s_waitcnt vmcnt(4)")
        o(f"s_branch K2_GO_{t}")
        lab(f"K2_LAST_{t}")
        if PRIO: o("s_setprio 0")
        o("s_waitcnt vmcnt(0) lgkmcnt(2)")
        lab(f"K2_GO_{t}")
        compute_quad(R, RN, P, slow, QA, QN, so)
        o(f"s_cmp_eq_u32 s{sCNT}, 0")
        o("s_cbranch_scc1 K2_MAIN_DONE")
        o(f"s_sub_u32 s{sCNT}, s{sCNT}, 1")
        o(f"v_cmp_ne_u32 vcc, v{vQAN}, v{vQA}")
        o("s_and_saveexec_b64 s[80:81], vcc")
        o(f"s_cbranch_execz K2_KEEP_{t}")
        for p in range(4):
            o(f"v_mov_b64 {vr(ACC+2*p,2)}, 0")
        lab(f"K2_KEEP_{t}")
        o("s_mov_b64 exec, -1")
        if x == "B":
            o(f"s_branch K2_LOOP_{tag}A")

def silu_f(dst, src):
    for k in range(8):
        o(f"v_exp_f32 v{dst+k}, v{src+k}")
    o("s_nop 0")
    for p in range(4):
        pk("add", dst+2*p, vr(dst+2*p,2), "1.0", mods="op_sel_hi:[1,0]")
    for k in range(8):
        o(f"v_rcp_f32 v{dst+k}, v{dst+k}")
    o("s_nop 0")
    for p in range(4):
        pk("mul", dst+2*p, vr(dst+2*p,2), vr(src+2*p,2))

def masked(i, tagp, instr):
    o(f"s_mov_b64 exec, {sr(sMASK+2*i,2)}")
    skip = (i % 2 == 1)
    if skip: o(f"s_cbranch_execz {tagp}{i}")
    o(instr)
    if skip: lab(f"{tagp}{i}")

def prefill():
    n = prefill.n
    o(f"v_mov_b32 v120, 0x{DUMMY:08x}")
    o("v_mov_b32 v121, 0")
    o("v_mov_b32 v122, v120")
    o("v_mov_b32 v123, 0")
    o("v_lshlrev_b32 v124, 4, v0")
    for m in range(2):
        o(f"ds_write_b128 v124, v[120:123] offset:{SLOT + m*16384}")
    o("s_cmp_gt_u32 s22, 3")
    o(f"s_cbranch_scc1 K2_PF1_{n}")
    o(f"ds_write_b128 v124, v[120:123] offset:{SLOT + 32768}")
    lab(f"K2_PF1_{n}")
    o("s_cmp_lg_u32 s22, 15")
    o(f"s_cbranch_scc1 K2_PF2_{n}")
    o("v_and_b32 v125, 63, v0")
    o("v_lshlrev_b32 v125, 3, v125")
    o("v_mov_b32 v120, 0")
    o(f"ds_write_b64 v125, v[120:121] offset:{CNT}")
    o(f"ds_write_b32 v121, v120 offset:{FLAGS+4}")
    lab(f"K2_PF2_{n}")
    prefill.n += 1
prefill.n = 0

def bulk_dma():
    srd(sWU, 14, size=128*128)
    o("v_lshlrev_b32 v124, 4, v0")
    o("s_lshl_b32 s52, s22, 10")
    o(f"s_add_u32 s53, s52, {RAWU}")
    o("s_mov_b32 m0, s53")
    o("v_add_u32 v125, 0x2000, v124")
    o(f"buffer_load_dwordx4 v124, {sr(sWU,4)}, 0 offen lds")
    o(f"s_add_u32 s53, s52, {RAW2}")
    o("s_mov_b32 m0, s53")
    o("v_lshlrev_b32 v126, 1, v0")
    o("v_and_b32 v126, 0x70, v126")
    o(f"buffer_load_dwordx4 v125, {sr(sWM,4)}, 0 offen lds")
    o("v_xor_b32 v126, v126, v124")
    o(f"s_mul_i32 s90, s{sBK}, 12544")
    o("v_add_u32 v126, s90, v126")
    o("s_cmp_gt_u32 s22, 13")
    o(f"s_cbranch_scc1 BD_{bulk_dma.n}")
    o(f"s_add_u32 s53, s52, {XT}")
    o("s_mov_b32 m0, s53")
    o("s_nop 0")
    o(f"buffer_load_dwordx4 v126, {sr(sX,4)}, 0 offen lds")
    lab(f"BD_{bulk_dma.n}")
    bulk_dma.n += 1
bulk_dma.n = 0

def gen():
    L.append(f".globl {KN}")
    L.append(".p2align 8")
    L.append(f".type {KN},@function")
    lab(KN)
    o(f"s_cmp_ge_u32 s2, {NBK}")
    o("s_cbranch_scc1 K2_EXIT")
    o("s_load_dwordx16 s[4:19], s[0:1], 0")
    o("s_load_dwordx2 s[20:21], s[0:1], 64")
    o("v_lshrrev_b32 v1, 6, v0")
    o("s_and_b32 s3, s2, 7")
    o("v_readfirstlane_b32 s22, v1")
    o("s_lshl_b32 s3, s3, 5")
    o(f"s_lshr_b32 s{sBK}, s2, 3")
    o(f"s_or_b32 s{sBK}, s{sBK}, s3")
    o(f"s_mov_b64 {sr(sVIO,2)}, 0")
    o("s_mul_i32 s3, s2, 3")
    o("s_add_u32 s3, s3, s22")
    o("s_sub_u32 s3, s3, 13")
    o("s_sub_u32 s23, s22, 13")
    o(f"s_mov_b32 s46, {PTA}")
    o("s_mov_b32 s47, 8")
    o("s_cmp_ge_u32 s22, 13")
    o("s_cbranch_scc1 P_ROLE")
    o(f"s_cmp_lt_u32 s2, {NCH}")
    o("s_cbranch_scc1 SORT_ROLE")
    o("s_add_u32 s3, s3, 31")
    o("s_mov_b32 s23, s22")
    o(f"s_mov_b32 s46, {PTB}")
    o("s_mov_b32 s47, 12")
    o("s_cmp_lt_u32 s22, 3")
    o("s_cbranch_scc1 P_ROLE")
    o("s_waitcnt lgkmcnt(0)")
    stamp(0)
    srd(sX, 4, size=N*128)
    srd(sWM, 12, size=129*128)
    o("s_barrier")
    stamp(1)
    o("v_mov_b32 v61, 0")
    o("v_mov_b32 v62, 0")
    o("s_cmp_lg_u32 s22, 11")
    o("s_cbranch_scc1 NONCE1I")
    o(f"s_mov_b32 s52, {SPIN}")
    o("v_mov_b32 v12, 0")
    lab("NONCEI")
    o("s_waitcnt vmcnt(0)")
    o("v_readfirstlane_b32 s53, v62")
    o("s_sub_u32 s52, s52, 1")
    o("s_cmp_eq_u32 s52, 0")
    o("s_cbranch_scc1 NONCE2I")
    o("s_cmp_lg_u32 s53, 0")
    o("s_cbranch_scc1 NONCE2I")
    o("s_sleep 8")
    o(f"global_load_dwordx2 v[62:63], v12, s[18:19] offset:{NONOFF} sc1")
    o("s_branch NONCEI")
    lab("NONCE2I")
    o(f"ds_write_b64 v12, v[62:63] offset:{FLAGS+8}")
    lab("NONCE1I")
    stamp(2)
    bulk_dma()
    o("s_branch PH1_DONE")

    lab("SORT_ROLE")
    o("s_movk_i32 s3, 800")
    o("v_cmp_gt_u32 s[44:45], s3, v0")
    o("v_lshlrev_b32 v1, 4, v0")
    o("v_lshlrev_b32 v2, 3, v0")
    o("v_and_b32 v7, 63, v0")
    o("v_lshlrev_b32 v6, 4, v7")
    o("v_lshlrev_b32 v7, 1, v7")
    o("v_add_u32 v7, 0x4000, v7")
    o("s_mul_i32 s3, s2, 12800")
    o("s_mul_i32 s23, s2, 6400")
    o("s_waitcnt lgkmcnt(0)")
    stamp(0)
    def sort_loads():
        o("buffer_load_dwordx4 v[16:19], v1, s[56:59], 0 offen")
        o("buffer_load_dwordx4 v[8:11], v1, s[60:63], 0 offen")
        o("buffer_load_dwordx2 v[24:25], v2, s[64:67], 0 offen")
        o(f"buffer_load_ushort v7, v7, {sr(sWM,4)}, 0 offen")
    srd(56, 10, off_s="s3", size=12800)
    srd(60, 8, off_s="s3", size=12800)
    srd(64, 6, off_s="s23", size=6400)
    srd(sWM, 12, size=129*128)
    if not PFIRST: sort_loads()
    o("s_cmp_lg_u32 s22, 0")
    o("s_cbranch_scc1 S1")
    o("v_mov_b64 v[28:29], 0")
    o("v_mov_b64 v[30:31], 0")
    o(f"ds_write_b128 v6, v[28:31] offset:{C1}")
    o("s_waitcnt lgkmcnt(0)")
    lab("S1")
    o("s_barrier")
    if PFIRST: sort_loads()
    o("s_mul_i32 s3, s2, 25600")
    srd(68, 20, off=REC_OFF, off_s="s3", size=25600)
    srd(sX, 4, size=N*128)
    srd(sWS, 20, size=WS_SIZE)
    o("s_mov_b64 exec, s[44:45]")
    o("v_mov_b32 v5, 1")
    o("s_movk_i32 s46, 98")
    o("s_waitcnt vmcnt(3)")
    for i in range(4):
        d = 16 + i
        o(f"v_mul_u32_u24 v{32+i}, 0xa730, v{d}")
        o(f"v_lshrrev_b32 v{40+i}, 22, v{32+i}")
        o(f"v_lshlrev_b32 v{32+i}, 2, v{40+i}")
        o(f"v_mul_u32_u24 v28, s46, v{40+i}")
        o(f"ds_add_rtn_u32 v{40+i}, v{32+i}, v5 offset:{C1}")
        o(f"v_sub_u32 v{d}, v{d}, v28")
        o(f"v_lshlrev_b32 v{d}, 24, v{d}")
    o("s_mov_b64 exec, -1")
    o("v_mov_b32 v5, 1")
    o("v_mov_b32 v61, 0")
    o(f"s_mov_b32 s46, {R1}")
    lds_sync("A", 0, 13, 61, 5, 60)
    o(f"ds_read_b128 v[64:67], v6 offset:{C1}")
    o("s_cmp_lg_u32 s22, 11")
    o("s_cbranch_scc1 NI1")
    o(f"global_load_dwordx2 v[62:63], v61, s[18:19] offset:{NONOFF} sc1")
    lab("NI1")
    o("s_waitcnt lgkmcnt(0)")
    o("v_add_u32 v12, v64, v65")
    o("v_add_u32 v13, v12, v66")
    o("v_add_u32 v14, v13, v67")
    o("v_mov_b32 v68, v14")
    wave_scan(68)
    o("v_sub_u32 v68, v68, v14")
    o("v_add_u32 v69, v68, v64")
    o("v_add_u32 v70, v68, v12")
    o("v_add_u32 v71, v68, v13")
    for k in range(4):
        o(f"v_lshl_add_u32 v{20+k}, v{68+k}, 3, s46")
    o(f"ds_write_b128 v6, v[20:23] offset:{O1}")
    o("s_mov_b64 exec, s[44:45]")
    o("s_waitcnt lgkmcnt(0)")
    for i in range(4):
        o(f"ds_read_b32 v{32+i}, v{32+i} offset:{O1}")
    o("s_cmp_eq_u32 s22, 11")
    o("s_cbranch_scc1 NI2")
    o("s_waitcnt vmcnt(0)")
    lab("NI2")
    o("s_waitcnt vmcnt(1)")
    stamp(1)
    for i in range(4):
        o(f"v_lshl_or_b32 v{48+2*i}, v{8+i}, 7, v{16+i}")
        ew = 24 + i // 2
        if i % 2 == 0: o(f"v_lshlrev_b32 v{49+2*i}, 16, v{ew}")
        else: o(f"v_and_b32 v{49+2*i}, 0xffff0000, v{ew}")
    o("s_waitcnt lgkmcnt(0)")
    for i in range(4):
        o(f"v_lshl_add_u32 v{32+i}, v{40+i}, 3, v{32+i}")
        o(f"ds_write_b64 v{32+i}, v[{48+2*i}:{49+2*i}]")
    o("v_max3_f32 v28, |v49|, |v51|, |v53|")
    o("v_max_f32 v28, |v55|, v28")
    o("s_mov_b64 exec, -1")
    o("v_add_u32 v2, 0x3400, v1")
    o("s_cmp_lg_u32 s22, 11")
    o("s_cbranch_scc1 NI3")
    o("s_waitcnt vmcnt(0)")
    lab("NI3")
    bulk_dma()
    lds_sync("B", 1, 13, 61, 5, 60)
    stamp(2)
    o("v_mov_b32 v60, v28")
    o(f"ds_read_b128 v[24:27], v1 offset:{R1}")
    o(f"ds_read_b128 v[28:31], v1 offset:{R1+13312}")
    o("s_waitcnt lgkmcnt(1)")
    o(f"buffer_store_dwordx4 v[24:27], v1, s[68:71], 0 offen{SC1}")
    o("s_waitcnt lgkmcnt(0)")
    o(f"buffer_store_dwordx4 v[28:31], v2, s[68:71], 0 offen{SC1}")
    o("v_and_b32 v7, 0x7fff, v7")
    wave_scan(7, "max_u32")
    o("s_nop 1")
    o("v_readlane_b32 s47, v7, 63")
    o("s_lshl_b32 s47, s47, 16")
    o("s_mov_b64 exec, s[44:45]")
    o("v_mul_f32 v60, s47, v60")
    o(f"v_cmp_ngt_f32 vcc, 0x40dd7fb6, v60")
    o(f"s_mov_b64 {sr(sVIO,2)}, vcc")
    o("s_mov_b64 exec, -1")
    o("s_cmp_lg_u32 s22, 11")
    o("s_cbranch_scc1 NONCE1S")
    o(f"s_mov_b32 s52, {SPIN}")
    lab("NONCES")
    o("v_readfirstlane_b32 s53, v62")
    o("s_sub_u32 s52, s52, 1")
    o("s_cmp_eq_u32 s52, 0")
    o("s_cbranch_scc1 NONCE2S")
    o("s_cmp_lg_u32 s53, 0")
    o("s_cbranch_scc1 NONCE2S")
    o(f"global_load_dwordx2 v[62:63], v61, s[18:19] offset:{NONOFF} sc1")
    o("s_waitcnt vmcnt(0)")
    o("s_branch NONCES")
    lab("NONCE2S")
    o(f"ds_write_b64 v61, v[62:63] offset:{FLAGS+8}")
    lab("NONCE1S")
    o("s_cmp_lg_u32 s22, 12")
    o("s_cbranch_scc1 S2")
    o("v_add_u32 v19, v71, v67")
    o("v_lshl_or_b32 v20, v69, 12, v68")
    o("v_lshl_or_b32 v20, v70, 24, v20")
    o("v_lshrrev_b32 v21, 8, v70")
    o("v_lshl_or_b32 v21, v71, 4, v21")
    o("v_lshl_or_b32 v21, v19, 16, v21")
    lab("S2")
    o("s_branch PH1_DONE")

    lab("P_ROLE")
    o("v_and_b32 v2, 63, v0")
    o("v_lshlrev_b32 v1, 4, v2")
    o("v_lshlrev_b32 v3, 1, v2")
    o("v_and_b32 v3, 0x70, v3")
    o("v_xor_b32 v3, v3, v1")
    o("v_mov_b32 v61, s47")
    o("s_lshl_b32 s47, s23, 10")
    o("v_add_u32 v5, s47, v1")
    o("v_add_u32 v6, 0x1800, v5")
    o("s_add_u32 s52, s46, s47")
    o("s_mov_b32 m0, s52")
    o("s_lshl_b32 s47, s23, 12")
    o("s_add_u32 s47, s47, s46")
    o("s_add_u32 s47, s47, 9216")
    o("s_mov_b32 s23, s46")
    o("s_lshl_b32 s46, s3, 12")
    o("v_add_u32 v2, s46, v1")
    o("v_add_u32 v4, s46, v3")
    o("s_waitcnt lgkmcnt(0)")
    stamp(0)
    srd(sWM, 12, size=129*128)
    o(f"buffer_load_dwordx4 v5, {sr(sWM,4)}, 0 offen lds")
    o(f"buffer_load_dwordx4 v5, {sr(sWM,4)}, 0 offen offset:3072 lds")
    o("s_add_u32 s52, s52, 0x1800")
    o("s_mov_b32 m0, s52")
    srd(sX, 4, size=N*128)
    o(f"buffer_load_dwordx4 v6, {sr(sWM,4)}, 0 offen lds")
    o("s_mov_b32 m0, s47")
    o("s_nop 0")
    for m in range(4):
        o(f"buffer_load_dwordx4 v4, {sr(sX,4)}, 0 offen offset:{m*1024} lds")
    o("s_cmp_lg_u32 s22, 15")
    o("s_cbranch_scc1 P1")
    o("v_mov_b64 v[28:29], 0")
    o("v_mov_b64 v[30:31], 0")
    o(f"ds_write_b64 v28, v[28:29] offset:{FLAGS}")
    o(f"ds_write_b128 v28, v[28:31] offset:{SYNC}")
    o("s_cmp_lg_u32 s2, 0")
    o("s_cbranch_scc1 P0")
    o("s_memrealtime s[52:53]")
    o("s_waitcnt lgkmcnt(0)")
    o("s_or_b32 s52, s52, 1")
    o("v_mov_b32 v30, s52")
    o("v_mov_b32 v31, s53")
    o("s_mov_b64 exec, 1")
    o(f"global_store_dwordx2 v28, v[30:31], s[18:19] offset:{NONOFF} sc1")
    o("s_mov_b64 exec, -1")
    lab("P0")
    o("s_waitcnt lgkmcnt(0)")
    lab("P1")
    o("s_barrier")
    srd(sP, 20, size=P_SIZE)
    o("v_and_b32 v7, 31, v0")
    o("v_bfe_u32 v6, v0, 5, 1")
    o("v_add_u32 v5, s47, v3")
    o("v_lshlrev_b32 v4, 4, v0")
    o("v_and_b32 v4, 0x70, v4")
    o("v_lshl_add_u32 v4, v7, 7, v4")
    o("v_add_u32 v4, s47, v4")
    o("v_lshlrev_b32 v44, 4, v6")
    o("v_xor_b32 v44, v44, v4")
    for kc in range(1, 4):
        o(f"v_xor_b32 v{44+kc}, {32*kc}, v44")
    o("v_lshlrev_b32 v40, 6, v6")
    o("v_xor_b32 v40, v40, v4")
    for m in range(1, 4):
        o(f"v_xor_b32 v{40+m}, {16*m}, v40")
    o("v_bfe_u32 v48, v7, 2, 1")
    o("v_lshlrev_b32 v48, 4, v48")
    o("v_and_b32 v49, 3, v7")
    o("v_add_u32 v48, v48, v49")
    o("v_lshrrev_b32 v49, 3, v7")
    o("v_lshl_add_u32 v48, v49, 2, v48")
    o("v_lshlrev_b32 v48, 2, v48")
    o("v_lshl_add_u32 v48, v6, 10, v48")
    o("v_add_u32 v48, s23, v48")
    for kc in range(1, 4):
        o(f"v_add_u32 v{48+kc}, {2048*kc}, v48")
    o("s_mov_b32 s56, 0x05040100")
    o("s_mov_b32 s57, 0x07060302")
    o(f"s_mov_b32 s58, 0x{NLOG2E:08x}")
    o("s_mov_b32 s59, s58")
    o("s_mov_b32 s60, 0xffff0000")
    o("s_brev_b32 s61, 1")
    o("v_mov_b32 v62, 1")
    o("s_waitcnt vmcnt(4)")
    lds_sync("W", None, 3, 61, 62, 60)
    for kc in range(4):
        for m in range(4):
            o(f"ds_read2_b32 v[{96+8*kc+2*m}:{97+8*kc+2*m}], v{48+kc} offset0:{64*m} offset1:{64*m+32}")
        if kc == 2: o("s_waitcnt lgkmcnt(8)")
    for kc in range(4):
        o(f"s_waitcnt lgkmcnt({12-4*kc})")
        for m in range(4):
            a, b = 96 + 8*kc + 2*m, 97 + 8*kc + 2*m
            o(f"v_perm_b32 v{8+8*kc+m}, v{b}, v{a}, s56")
            o(f"v_perm_b32 v{12+8*kc+m}, v{b}, v{a}, s57")
    o("s_waitcnt vmcnt(0)")
    stamp(1)
    for kc in range(4):
        o(f"ds_read_b128 v[{72+4*kc}:{75+4*kc}], v{44+kc}")
    for kc in range(4):
        o(f"s_waitcnt lgkmcnt({3-kc})")
        cl = "0" if kc == 0 else "v[96:111]"
        ch = "0" if kc == 0 else "v[112:127]"
        o(f"v_mfma_f32_32x32x16_bf16 v[96:111], v[{8+8*kc}:{11+8*kc}], v[{72+4*kc}:{75+4*kc}], {cl}")
        o(f"v_mfma_f32_32x32x16_bf16 v[112:127], v[{12+8*kc}:{15+8*kc}], v[{72+4*kc}:{75+4*kc}], {ch}")
    o("v_mov_b32 v7, 0")
    o("s_nop 7")
    o("s_nop 3")
    for r in range(0, 32, 2):
        o(f"v_pk_mul_f32 v[{96+r}:{97+r}], v[{96+r}:{97+r}], s[58:59]")
    for r in range(16):
        lo, hi, w = 96 + r, 112 + r, 48 + r
        o(f"v_cvt_pk_bf16_f32 v{w}, v{lo}, v{lo}")
        o(f"v_and_b32 v39, 0x7fffffff, v{hi}")
        o(f"v_add_u32 v39, 0x8000, v39")
        o(f"v_sub_u32_sdwa v39, v39, v{w} clamp dst_sel:DWORD dst_unused:UNUSED_PAD src0_sel:DWORD src1_sel:WORD_0")
        o(f"v_max3_f32 v7, |v{lo}|, |v{hi}|, v7")
        o(f"v_bfi_b32 v39, s61, v{hi}, v39")
        o(f"v_bfi_b32 v{w}, s60, v39, v{w}")
        if r % 4 == 3:
            m = r // 4
            o(f"ds_write_b128 v{40+m}, v[{48+4*m}:{51+4*m}]")
    stamp(2)
    o(f"v_cmp_ngt_f32 vcc, 0x{TEN:08x}, v7")
    o(f"s_mov_b64 {sr(sVIO,2)}, vcc")
    bulk_dma()
    o("s_waitcnt lgkmcnt(0)")
    for m in range(4):
        o(f"ds_read_b128 v[{64+4*m}:{67+4*m}], v5 offset:{m*1024}")
    for m in range(4):
        o(f"s_waitcnt lgkmcnt({3-m})")
        o(f"buffer_store_dwordx4 v[{64+4*m}:{67+4*m}], v2, {sr(sP,4)}, 0 offen offset:{1024*m}{SC1}")

    lab("PH1_DONE")
    o("v_mov_b32 v6, 0")
    o("v_mov_b32 v7, 1")
    o(f"s_cmp_eq_u64 {sr(sVIO,2)}, 0")
    o("s_cbranch_scc1 V1")
    o(f"ds_write_b32 v6, v7 offset:{FLAGS}")
    lab("V1")
    srd(sWS, 20, size=WS_SIZE)
    srd(sP, 20, size=P_SIZE)
    o(f"s_lshr_b32 s{sTILE}, s22, 1")
    o(f"s_and_b32 s{sHALF}, s22, 1")
    o(f"s_lshl_b32 s3, s{sTILE}, 11")
    o(f"s_add_u32 s{sROWB}, s90, s3")
    o(f"s_movk_i32 s{sK}, 0x3f80")
    o(f"s_movk_i32 s{sRS}, {RS}")
    o(f"s_mov_b32 s{sM24}, {os.environ.get('M24', '0xffffff')}")
    o(f"s_mov_b32 s{sRND}, 0")
    o(f"s_mov_b32 s{sRDONE}, 0")
    o(f"s_mov_b32 s{sSTEP}, 32")
    o(f"s_mov_b32 s{sREC}, {REC_OFF}")
    o("v_and_b32 v40, 3, v0")
    o("v_bfe_u32 v41, v0, 2, 2")
    o("v_bfe_u32 v42, v0, 4, 2")
    o("v_lshlrev_b32 v42, 10, v42")
    o("v_lshl_add_u32 v42, v41, 4, v42")
    o("v_lshl_add_u32 v43, v40, 1, v42")
    o("v_lshl_add_u32 v42, v40, 2, v42")
    o("s_lshr_b32 s52, s22, 3")
    o("s_lshl_b32 s52, s52, 6")
    o("s_bfe_u32 s53, s22, 0x10002")
    o("s_lshl_b32 s53, s53, 3")
    o("s_add_u32 s52, s52, s53")
    o("s_and_b32 s53, s22, 3")
    o("s_lshl_b32 s53, s53, 12")
    o("s_add_u32 s52, s52, s53")
    o("v_add_u32 v43, s52, v43")
    o("s_bfe_u32 s52, s22, 0x10002")
    o("s_lshl_b32 s52, s52, 6")
    o("s_bfe_u32 s53, s22, 0x10001")
    o("s_lshl_b32 s53, s53, 1")
    o("s_sub_u32 s52, s52, s53")
    o("s_add_u32 s52, s52, 2")
    o("s_and_b32 s53, s22, 1")
    o("s_lshl_b32 s53, s53, 12")
    o("s_add_u32 s52, s52, s53")
    o("v_add_u32 v42, s52, v42")
    o(f"v_and_b32 v{vJ16}, 7, v0")
    o(f"v_lshlrev_b32 v{vJ16}, 4, v{vJ16}")
    o("s_waitcnt vmcnt(0) lgkmcnt(0)")
    o("s_barrier")
    stamp(3)
    o("s_cmp_lg_u32 s22, 12")
    o("s_cbranch_scc1 NODESC")
    o(f"s_cmp_ge_u32 s2, {NCH}")
    o("s_cbranch_scc1 NODESC")
    o(f"ds_read_b64 v[22:23], v6 offset:{FLAGS+8}")
    o("v_and_b32 v19, 63, v0")
    o("v_lshlrev_b32 v19, 12, v19")
    o("s_lshl_b32 s52, s2, 4")
    o(f"s_add_u32 s52, s52, {DESC_OFF}")
    o("s_waitcnt lgkmcnt(0)")
    o(f"buffer_store_dwordx4 v[20:23], v19, {sr(sWS,4)}, s52 offen{SC1}")
    lab("NODESC")
    o("s_cmp_lg_u32 s22, 15")
    o("s_cbranch_scc1 NOARR")
    o(f"ds_read_b32 v44, v6 offset:{FLAGS}")
    o("s_mul_i32 s52, s2, 62")
    o("s_lshr_b32 s52, s52, 8")
    o("s_lshl_b32 s52, s52, 2")
    o("v_mov_b32 v45, s52")
    o("s_mov_b64 exec, 1")
    o("s_waitcnt lgkmcnt(0)")
    o("v_lshl_or_b32 v44, v44, 16, 1")
    o("global_atomic_add v45, v44, s[18:19]")
    o("s_mov_b64 exec, -1")
    lab("NOARR")
    for t in range(8):
        o(f"ds_read_u16 v{56+t}, v43 offset:{RAWU + 128*t}")
    o(f"ds_read_b128 v[120:123], v{vJ16} offset:{RAW2 + 8192}")
    o("s_cmp_gt_u32 s22, 7")
    o("s_cbranch_scc1 NOW2")
    o("s_waitcnt lgkmcnt(4)")
    for t in range(8):
        o(f"ds_read_u16 v{64+t}, v42 offset:{RAW2 + 128*t}")
    o("s_waitcnt lgkmcnt(0)")
    for m in range(4):
        o(f"v_lshl_or_b32 v{76+m}, v{65+2*m}, 16, v{64+2*m}")
    o(f"ds_write_b128 v124, v[76:79] offset:{W2F}")
    lab("NOW2")
    o(f"v_add_u32 v125, {WUF}, v124")
    o(f"s_mov_b32 s90, 0x{NLOG2E:08x}")
    o("s_mov_b32 s91, s90")
    o("s_waitcnt lgkmcnt(0)")
    for m in range(4):
        o(f"v_lshl_or_b32 v{72+m}, v{57+2*m}, 16, v{56+2*m}")
    o("ds_write_b128 v125, v[72:75]")
    for k in range(4):
        o(f"v_and_b32 v{W+k}, 0xffff0000, v{120+k}")
        o(f"v_lshlrev_b32 v{W+4+k}, 16, v{120+k}")
    for p in range(4):
        pk("mul", W+2*p, vr(W+2*p,2), "s[90:91]")
    o(f"v_add_u32 v{vQC}, {QT}, v{vJ16}")
    o("v_lshrrev_b32 v125, 3, v0")
    o(f"v_mov_b32 v{vOC}, {(PART-QT) & 0xffffffff}")
    o(f"v_mad_u32_u24 v{vOC}, v125, s{sRS}, v{vOC}")
    o("v_and_b32 v72, 63, v0")
    o("v_lshlrev_b32 v72, 4, v72")
    o(f"s_lshl_b32 s52, s{sHALF}, 12")
    o("v_add_u32 v72, s52, v72")
    o("v_and_b32 v73, 15, v0")
    o(f"s_lshl_b32 s52, s{sTILE}, 4")
    o("v_add_u32 v73, s52, v73")
    o("v_and_b32 v74, 48, v0")
    o("v_lshlrev_b32 v75, 4, v0")
    o("v_and_b32 v75, 0x70, v75")
    o("v_xor_b32 v75, v75, v74")
    o("v_lshl_add_u32 v75, v73, 7, v75")
    o(f"v_add_u32 v75, {XT}, v75")
    o("v_xor_b32 v76, 64, v75")
    o(f"v_mad_u32_u24 v73, v73, s{sRS}, v74")
    o(f"s_lshl_b32 s3, s{sHALF}, 6")
    o(f"s_add_u32 s3, s3, {QT}")
    o("v_add_u32 v73, s3, v73")
    o("s_waitcnt lgkmcnt(0)")
    o("s_barrier")
    o(f"s_mov_b64 {sr(sVIO,2)}, 0")
    o("s_cmp_ge_u32 s22, 14")
    o("s_cbranch_scc1 NOQ")
    o("ds_read_b128 v[88:91], v75")
    o(f"ds_read_b128 v[96:99], v72 offset:{W2F}")
    o(f"ds_read_b128 v[104:107], v72 offset:{W2F+2048}")
    o("ds_read_b128 v[92:95], v76")
    o(f"ds_read_b128 v[100:103], v72 offset:{W2F+1024}")
    o(f"ds_read_b128 v[108:111], v72 offset:{W2F+3072}")
    o("s_waitcnt lgkmcnt(3)")
    o(f"v_mfma_f32_16x16x32_bf16 v[112:115], v[96:99], v[88:91], 0")
    o(f"v_mfma_f32_16x16x32_bf16 v[116:119], v[104:107], v[88:91], 0")
    o("s_waitcnt lgkmcnt(0)")
    o(f"v_mfma_f32_16x16x32_bf16 v[112:115], v[100:103], v[92:95], v[112:115]")
    o(f"v_mfma_f32_16x16x32_bf16 v[116:119], v[108:111], v[92:95], v[116:119]")
    o("s_nop 7")
    for p in range(4):
        pk("mul", 112+2*p, vr(112+2*p,2), "s[90:91]")
    o("ds_write_b128 v73, v[112:115]")
    o("ds_write_b128 v73, v[116:119] offset:128")
    o("v_max3_f32 v125, |v112|, |v113|, |v114|")
    o("v_max3_f32 v125, |v115|, |v116|, v125")
    o("v_max3_f32 v125, |v117|, |v118|, v125")
    o("v_max_f32 v125, |v119|, v125")
    o(f"v_cmp_ngt_f32 vcc, 0x{TEN:08x}, v125")
    o("s_cmp_eq_u64 vcc, 0")
    o("s_cbranch_scc1 NOQV")
    o(f"ds_write_b32 v6, v7 offset:{FLAGS}")
    lab("NOQV")
    silu_f(A, 112)
    lab("NOQ")
    prefill()
    o("v_and_b32 v7, 15, v0")
    o("v_add_u32 v6, 16, v7")
    o("v_lshrrev_b32 v72, 2, v0")
    o("v_and_b32 v72, 0xfc, v72")
    o("s_cmp_lg_u32 s22, 15")
    o("s_cbranch_scc1 DSKIP")
    o(f"ds_read_b64 v[74:75], v121 offset:{FLAGS+8}")
    o("v_lshlrev_b32 v76, 1, v125")
    o(f"s_lshr_b32 s3, s{sBK}, 2")
    o("s_lshl_b32 s3, s3, 12")
    o(f"s_add_u32 s3, s3, {DESC_OFF}")
    o(f"s_and_b32 s53, s{sBK}, 3")
    o("s_mul_i32 s54, s53, 12")
    o("s_cmp_eq_u32 s53, 3")
    o("s_cselect_b32 s54, 4, s54")
    o("v_mul_u32_u24 v73, 200, v76")
    o("s_mov_b32 s80, 0")
    o("s_mov_b32 s81, 0xfc000000")
    for i in range(4):
        o(f"s_mov_b64 {sr(sMASK+2*i,2)}, 0")
    o(f"s_mov_b32 s52, {SPIN}")
    o("s_waitcnt lgkmcnt(0)")
    lab("DPOLL")
    for i in range(4):
        o(f"s_cmp_eq_u64 {sr(sMASK+2*i,2)}, -1")
        o(f"s_cbranch_scc1 DP{i}")
        o(f"buffer_load_dwordx4 {vr(56+4*i,4)}, v76, {sr(sWS,4)}, s3 offen offset:{1024*i}{SC1}")
        lab(f"DP{i}")
    o("s_waitcnt vmcnt(0)")
    for i in range(4):
        o(f"v_cmp_eq_u64 {sr(sMASK+2*i,2)}, v[74:75], {vr(58+4*i,2)}")
    o(f"s_or_b64 {sr(sMASK+6,2)}, {sr(sMASK+6,2)}, s[80:81]")
    o(f"s_and_b64 {sr(sMASK+8,2)}, {sr(sMASK,2)}, {sr(sMASK+2,2)}")
    o(f"s_and_b64 {sr(sMASK+10,2)}, {sr(sMASK+4,2)}, {sr(sMASK+6,2)}")
    o(f"s_and_b64 {sr(sMASK+8,2)}, {sr(sMASK+8,2)}, {sr(sMASK+10,2)}")
    o(f"s_cmp_eq_u64 {sr(sMASK+8,2)}, -1")
    o("s_cbranch_scc1 DOK")
    o("s_sub_u32 s52, s52, 1")
    o("s_cmp_eq_u32 s52, 0")
    o("s_cbranch_scc1 DOK")
    o(f"s_sleep {SLEEP}")
    o("s_branch DPOLL")
    lab("DOK")
    o("s_cmp_lg_u32 s53, 3")
    o("s_cbranch_scc1 DK3")
    for i in range(4):
        o(f"v_mov_b32 v{56+4*i}, v{57+4*i}")
    lab("DK3")
    o("v_lshrrev_b32 v76, 2, v76")
    for i in range(4):
        o(f"v_alignbit_b32 v{56+4*i}, v{57+4*i}, v{56+4*i}, s54")
        o(f"v_bfe_u32 v{57+4*i}, v{56+4*i}, 12, 12")
        o(f"v_and_b32 v{56+4*i}, 0xfff, v{56+4*i}")
        o(f"v_sub_u32 v{57+4*i}, v{57+4*i}, v{56+4*i}")
        o(f"v_add_u32 v{56+4*i}, v{56+4*i}, v73")
        if i: o(f"v_add_u32 v{56+4*i}, {204800*i}, v{56+4*i}")
        o(f"v_lshl_or_b32 v{56+4*i}, v{57+4*i}, 20, v{56+4*i}")
        if i == 3: o(f"v_cndmask_b32 v{56+4*i}, v{56+4*i}, 0, s[80:81]")
        o(f"ds_write_b32 v76, v{56+4*i} offset:{DLDS + 256*i}")
    lab("DSKIP")
    o("s_waitcnt lgkmcnt(0)")
    o("s_barrier")
    stamp(4)
    o(f"ds_read2st64_b32 {vr(DESC,2)}, v72 offset0:{DLDS//256} offset1:{DLDS//256+1}")
    o(f"ds_read2st64_b32 {vr(DESC+2,2)}, v72 offset0:{DLDS//256+2} offset1:{DLDS//256+3}")
    o("s_waitcnt lgkmcnt(0)")
    lab("K2_ROUND")
    o(f"s_add_u32 s90, s{sRND}, s{sSTEP}")
    o("s_mov_b32 s3, 0xfffff")
    for i in range(4):
        o(f"v_lshrrev_b32 v{80+i}, 20, v{DESC+i}")
        o(f"v_and_b32 v84, s3, v{DESC+i}")
        o(f"v_cmp_lt_u32 {sr(sMASK+4*i,2)}, v7, v{80+i}")
        o(f"v_cmp_lt_u32 {sr(sMASK+4*i+2,2)}, v6, v{80+i}")
        o(f"v_add_lshl_u32 v84, v84, v7, 3")
        o(f"s_mov_b64 exec, {sr(sMASK+4*i,2)}")
        o(f"buffer_load_dwordx2 {vr(56+4*i,2)}, v84, {sr(sWS,4)}, s{sREC} offen{SC1}")
        o(f"s_mov_b64 exec, {sr(sMASK+4*i+2,2)}")
        o(f"s_cbranch_execz K2_T2_{i}")
        o(f"buffer_load_dwordx2 {vr(58+4*i,2)}, v84, {sr(sWS,4)}, s{sREC} offen offset:128{SC1}")
        lab(f"K2_T2_{i}")
        o("s_mov_b64 exec, -1")
    o("v_max3_u32 v80, v80, v81, v82")
    o("v_max_u32 v80, v80, v83")
    o("v_cmp_lt_u32 s[54:55], s90, v80")
    o("v_mov_b32 v7, 1")
    o("v_mov_b32 v6, 0")
    o("s_cmp_eq_u64 s[54:55], 0")
    o("s_cbranch_scc1 K2_F2")
    o(f"ds_write_b32 v6, v7 offset:{FLAGS+4}")
    lab("K2_F2")
    o("v_and_b32 v5, 63, v0")
    o("v_lshlrev_b32 v5, 3, v5")
    o(f"s_movk_i32 s3, {SLOT}")
    o("s_waitcnt vmcnt(0)")
    stamp(5)
    o("s_cmp_lg_u32 s22, 15")
    o("s_cbranch_scc1 NOP0")
    o("v_lshrrev_b32 v44, 1, v5")
    o("global_load_dword v45, v44, s[18:19] sc1")
    lab("NOP0")
    for i in range(8):
        o(f"v_lshrrev_b32 v{100+i}, 22, v{56+2*i}")
    for i in range(8):
        masked(i, "K2_RK", f"ds_add_rtn_u32 v{80+i}, v{100+i}, v7 offset:{CNT}")
    o("s_mov_b64 exec, -1")
    o("s_waitcnt lgkmcnt(0)")
    o("s_barrier")
    stamp(6)
    o(f"ds_read_b64 v[88:89], v5 offset:{CNT}")
    o(f"ds_read_b64 v[90:91], v6 offset:{FLAGS}")
    o("s_waitcnt lgkmcnt(1)")
    o("v_add_u32 v92, 3, v88")
    o("v_add_u32 v93, 3, v89")
    o("v_lshrrev_b32 v92, 2, v92")
    o("v_lshrrev_b32 v93, 2, v93")
    o("v_add_u32 v94, v92, v93")
    o("v_mov_b32 v95, v94")
    wave_scan(95)
    o("v_sub_u32 v96, v95, v94")
    o("v_add_u32 v97, v96, v92")
    o("v_lshl_add_u32 v98, v96, 5, s3")
    o("v_lshl_add_u32 v99, v97, 5, s3")
    o(f"ds_write_b64 v5, v[98:99] offset:{OFFS}")
    o(f"v_readlane_b32 s{sQN}, v95, 63")
    o("s_waitcnt lgkmcnt(0)")
    for i in range(8):
        masked(i, "K2_OF", f"ds_read_b32 v{100+i}, v{100+i} offset:{OFFS}")
    o("s_mov_b64 exec, -1")
    o(f"s_cmp_gt_u32 s{sQN}, {NSLOT//4 - 12}")
    o("s_cbranch_scc1 K2_NARROW")
    o(f"v_readfirstlane_b32 s{sMORE}, v91")
    o(f"s_add_u32 s{sS}, s{sQN}, 7")
    o(f"s_lshr_b32 s{sS}, s{sS}, 3")
    o(f"s_lshr_b32 s{sBASE}, s{sS}, 4")
    o(f"s_and_b32 s{sREM}, s{sS}, 15")
    o(f"s_cmp_lt_u32 s22, s{sREM}")
    o(f"s_cselect_b32 s{sRW}, 1, 0")
    o(f"s_add_u32 s{sRW}, s{sRW}, s{sBASE}")
    o(f"s_mul_i32 s3, s{sBASE}, s22")
    o(f"s_min_u32 s90, s22, s{sREM}")
    o("s_add_u32 s3, s3, s90")
    o("s_lshl_b32 s3, s3, 8")
    o(f"s_add_u32 s3, s3, {SLOT}")
    o(f"s_lshl_b32 s90, s{sRW}, 5")
    o("v_bfe_u32 v7, v0, 3, 3")
    o(f"v_mov_b32 v{vSLOT}, s3")
    o(f"v_mad_u32_u24 v{vSLOT}, v7, s90, v{vSLOT}")
    o("s_waitcnt lgkmcnt(0)")
    for i in range(8):
        o(f"v_lshl_add_u32 v{100+i}, v{80+i}, 3, v{100+i}")
    for i in range(8):
        masked(i, "K2_SC", f"ds_write_b64 v{100+i}, {vr(56+2*i,2)}")
    o("s_mov_b64 exec, -1")
    o("s_cmp_lg_u32 s22, 15")
    o("s_cbranch_scc1 NOPOLL")
    o("v_lshrrev_b32 v44, 1, v5")
    o("s_mov_b32 exec_hi, 0x3fffffff")
    o(f"s_mov_b32 s52, {SPIN}")
    lab("POLL")
    o("s_waitcnt vmcnt(0)")
    o("v_and_b32 v47, 0xffff, v45")
    wave_scan(47)
    o("s_nop 1")
    o("v_readlane_b32 s53, v47, 61")
    o("s_cmp_ge_u32 s53, 256")
    o("s_cbranch_scc1 POLLED")
    o("s_sub_u32 s52, s52, 1")
    o("s_cmp_eq_u32 s52, 0")
    o("s_cbranch_scc1 POLLED")
    o(f"s_sleep {SLEEP}")
    o("global_load_dword v45, v44, s[18:19] sc1")
    o("s_branch POLL")
    lab("POLLED")
    o("v_cmp_lt_u32 vcc, 0xffff, v45")
    o("s_mov_b64 exec, -1")
    o("s_cmp_eq_u64 vcc, 0")
    o("s_cbranch_scc1 NOPOLL")
    o("v_mov_b32 v45, 1")
    o(f"ds_write_b32 v6, v45 offset:{FLAGS}")
    lab("NOPOLL")
    o("s_waitcnt lgkmcnt(0)")
    o("s_barrier")
    stamp(7)
    o(f"ds_read_b32 v90, v6 offset:{FLAGS}")
    o("s_cmp_lg_u32 s22, 15")
    o("s_cbranch_scc1 K2_NONI")
    o(f"s_add_u32 s3, s{sBASE}, 1")
    o("v_cvt_f32_u32 v44, s3")
    o(f"v_cvt_f32_u32 v45, s{sBASE}")
    o("v_rcp_f32 v44, v44")
    o("v_rcp_f32 v45, v45")
    o(f"s_mul_i32 s3, s3, s{sREM}")
    o("s_lshl_b32 s3, s3, 3")
    o("v_cvt_f32_u32 v46, s3")
    o(f"s_lshl_b32 s90, s{sREM}, 3")
    o("v_add_u32 v100, -1, v97")
    o("v_add_u32 v101, -1, v95")
    for q in (96, 97, 100, 101):
        o(f"v_cvt_f32_u32 v48, v{q}")
        o("v_add_f32 v48, 0.5, v48")
        o("v_sub_f32 v49, v48, v46")
        o("v_mul_f32 v48, v48, v44")
        o("v_mul_f32 v49, v49, v45")
        o("v_cvt_u32_f32 v48, v48")
        o("v_cvt_u32_f32 v49, v49")
        o(f"v_cmp_gt_u32 vcc, s3, v{q}")
        o("v_add_u32 v49, s90, v49")
        o("s_nop 0")
        o(f"v_cndmask_b32 v{q}, v49, v48, vcc")
    for (rf, rl, nq, cn) in ((96, 100, 92, 88), (97, 101, 93, 89)):
        o(f"v_sub_u32 v{rl}, v{rl}, v{rf}")
        o(f"v_add_u32 v{rl}, 1, v{rl}")
        o(f"v_cmp_lt_u32 vcc, 0, v{nq}")
        o(f"v_lshlrev_b32 v{nq}, 2, v{nq}")
        o(f"v_sub_u32 v{nq}, v{nq}, v{cn}")
        o(f"v_cndmask_b32 v{rl}, 0, v{rl}, vcc")
        o(f"v_and_b32 v{rf}, 0xff, v{rf}")
        o(f"v_lshl_or_b32 v{rf}, v{rl}, 8, v{rf}")
        o(f"v_lshl_or_b32 v{rf}, v{nq}, 16, v{rf}")
    o(f"ds_write_b64 v5, v[96:97] offset:{NINFO}")
    lab("K2_NONI")
    o("s_waitcnt lgkmcnt(0)")
    o(f"v_readfirstlane_b32 s{sSLOW}, v90")
    o(f"s_cmp_eq_u32 s{sRW}, 0")
    o("s_cbranch_scc1 K2_MAIN_DONE")
    o(f"s_cmp_lg_u32 s{sSLOW}, 0")
    o("s_cbranch_scc1 K2_MAIN_S")
    gen_main("F", False)
    gen_main("S", True)
    lab("K2_MAIN_DONE")
    o("s_waitcnt lgkmcnt(0)")
    stamp(8)
    o("s_cmp_ge_u32 s22, 14")
    o("s_cbranch_scc1 K2_IDLE")
    o("v_and_b32 v6, 15, v0")
    o(f"s_lshl_b32 s3, s{sTILE}, 4")
    o("v_add_u32 v6, s3, v6")
    o("v_and_b32 v5, 48, v0")
    o("v_lshlrev_b32 v7, 2, v6")
    o(f"s_lshl_b32 s3, s{sHALF}, 6")
    o("v_add_u32 v36, s3, v5")
    o(f"v_mad_u32_u24 v37, v6, s{sRS}, v36")
    o(f"v_add_u32 v37, {PART}, v37")
    o(f"s_movk_i32 s3, {AGG_STRIDE}")
    o("v_mad_u32_u24 v41, v6, s3, v36")
    o("v_mad_u32_u24 v42, v6, s3, v5")
    o("v_lshlrev_b32 v40, 4, v0")
    o("v_and_b32 v40, 0x70, v40")
    o("v_xor_b32 v40, v40, v5")
    o("v_lshl_add_u32 v40, v6, 7, v40")
    o(f"v_add_u32 v40, {XT}, v40")
    o("v_xor_b32 v44, 64, v40")
    o("v_and_b32 v43, 63, v0")
    o("v_lshlrev_b32 v43, 4, v43")
    o(f"s_lshl_b32 s3, s{sHALF}, 13")
    o(f"s_add_u32 s3, s3, {WUF}")
    o("v_add_u32 v43, s3, v43")
    o("ds_read_b128 v[88:91], v40")
    o("ds_read_b128 v[92:95], v44")
    for ks in range(4):
        for sub in range(2):
            o(f"ds_read_b128 {vr(56+16*sub+4*ks,4)}, v43 offset:{4096*sub + 1024*ks}")
    srd(sOUT, 16, size=N*128)
    o(f"s_mov_b32 s90, 0x{NLN2:08x}")
    o("s_mov_b32 s91, s90")
    bop = ["v[88:91]", "v[92:95]", "v[96:99]", "v[100:103]"]
    def mm(ks):
        for sub in range(2):
            dd = vr(48+4*sub, 4)
            o(f"v_mfma_f32_16x16x32_bf16 {dd}, {vr(56+16*sub+4*ks,4)}, {bop[ks]}, {'0' if ks == 0 else dd}")
    o("s_waitcnt lgkmcnt(0)")
    mm(0); mm(1)
    o("s_barrier")
    stamp(9)
    o(f"ds_read_b32 v38, v7 offset:{NINFO}")
    o(f"s_cmp_eq_u32 s{sRDONE}, 0")
    o("s_cbranch_scc1 K2_R0")
    o(f"v_add_u32 v39, {(QT-PART) & 0xffffffff}, v37")
    o("ds_read_b128 v[104:107], v39")
    o("ds_read_b128 v[108:111], v39 offset:128")
    o("s_waitcnt lgkmcnt(0)")
    silu_f(96, 104)
    o("v_lshrrev_b32 v39, 16, v38")
    o("v_cvt_f32_u32 v39, v39")
    o("v_cmp_lt_f32 vcc, 0, v39")
    o("s_and_saveexec_b64 s[80:81], vcc")
    for k in range(8):
        o(f"v_fma_f32 v{A+k}, -v39, v{96+k}, v{A+k}")
    o("s_mov_b64 exec, -1")
    o("v_and_b32 v39, 0xff, v38")
    o(f"v_mad_u32_u24 v37, v39, s{sRS}, v37")
    o("v_bfe_u32 v38, v38, 8, 8")
    o("s_branch K2_RED")
    lab("K2_R0")
    o("s_waitcnt lgkmcnt(0)")
    o("v_and_b32 v39, 0xff, v38")
    o(f"v_mad_u32_u24 v37, v39, s{sRS}, v37")
    for m in range(3):
        o(f"ds_read_b128 {vr(96+8*m,4)}, v37 offset:{RS*m}")
        o(f"ds_read_b128 {vr(100+8*m,4)}, v37 offset:{RS*m+128}")
    o("v_cvt_f32_ubyte2 v44, v38")
    o("v_bfe_u32 v38, v38, 8, 8")
    for p in range(4):
        pk("mul", A+2*p, vr(A+2*p,2), "v[44:45]", mods="op_sel_hi:[1,0] neg_lo:[0,1] neg_hi:[0,1]")
    o(f"s_cmp_eq_u32 s{sSLOW}, 0")
    o("s_cbranch_scc1 K2_RED2")
    o("v_cmp_eq_f32 vcc, 0, v44")
    o("s_and_b64 exec, exec, vcc")
    for p in range(4):
        o(f"v_mov_b64 {vr(A+2*p,2)}, 0")
    o("s_mov_b64 exec, -1")
    o("s_branch K2_RED2")
    lab("K2_RED")
    for m in range(3):
        o(f"ds_read_b128 {vr(96+8*m,4)}, v37 offset:{RS*m}")
        o(f"ds_read_b128 {vr(100+8*m,4)}, v37 offset:{RS*m+128}")
    lab("K2_RED2")
    o(f"v_add_u32 v37, {3*RS}, v37")
    for m in range(3):
        o(f"v_cmp_lt_i32 vcc, {m}, v38")
        o("s_and_b64 exec, exec, vcc")
        o(f"s_waitcnt lgkmcnt({4-2*m})")
        for p in range(4):
            pk("add", A+2*p, vr(A+2*p,2), vr(96+8*m+2*p,2))
    o("v_cmp_lt_i32 vcc, 3, v38")
    o("v_subrev_u32 v38, 3, v38")
    o("s_and_b64 exec, exec, vcc")
    o("s_cbranch_execnz K2_RED")
    o("s_mov_b64 exec, -1")
    o(f"s_cmp_eq_u32 s{sMORE}, 0")
    o("s_cbranch_scc1 K2_FINAL")
    lab("K2_NEXT")
    o(f"s_add_u32 s{sRND}, s{sRND}, s{sSTEP}")
    o(f"s_add_u32 s{sRDONE}, s{sRDONE}, 1")
    lab("K2_REDO")
    o("s_waitcnt lgkmcnt(0)")
    o("s_barrier")
    prefill()
    o("v_and_b32 v7, 15, v0")
    o(f"v_add_u32 v7, s{sRND}, v7")
    o("v_add_u32 v6, 16, v7")
    o(f"s_cmp_eq_u32 s{sSTEP}, 32")
    o("s_cbranch_scc1 K2_WIDE")
    o("v_mov_b32 v6, 0x100000")
    lab("K2_WIDE")
    o("s_waitcnt lgkmcnt(0)")
    o("s_barrier")
    o("s_branch K2_ROUND")
    lab("K2_NARROW")
    o(f"s_mov_b32 s{sSTEP}, 16")
    o("s_branch K2_REDO")
    lab("K2_IDLE")
    o("s_barrier")
    o(f"s_cmp_eq_u32 s{sMORE}, 0")
    o("s_cbranch_scc0 K2_NEXT")
    o("s_branch K2_END")
    lab("K2_FINAL")
    for p in range(4):
        pk("mul", A+2*p, vr(A+2*p,2), "s[90:91]")
    for k in range(4):
        o(f"v_cvt_pk_bf16_f32 v{96+k}, v{A+4+k}, v{A+k}")
    o(f"ds_write_b128 v41, v[96:99] offset:{AGG}")
    o("s_mul_i32 s3, s22, 1280")
    o("v_and_b32 v36, 15, v0")
    o("v_mul_u32_u24 v36, 80, v36")
    o("v_add3_u32 v36, v36, v5, s3")
    o("v_bfe_u32 v37, v0, 2, 4")
    o("v_and_b32 v38, 3, v0")
    o("v_lshlrev_b32 v38, 4, v38")
    o("v_mul_u32_u24 v39, 80, v37")
    o("v_add3_u32 v39, v39, v38, s3")
    o("v_lshl_add_u32 v4, v37, 7, v38")
    o(f"s_lshl_b32 s3, s{sHALF}, 6")
    o(f"s_add_u32 s3, s3, s{sROWB}")
    o("v_add_u32 v4, s3, v4")
    o(f"s_lshl_b32 s3, s{sTILE}, 4")
    o("s_sub_u32 s3, 98, s3")
    o("v_cmp_gt_u32 vcc, s3, v37")
    o(f"s_mov_b32 s90, 0x{NLOG2E:08x}")
    o("s_mov_b32 s91, s90")
    o("s_waitcnt lgkmcnt(0)")
    o("s_barrier")
    stamp(10)
    o(f"ds_read_b128 v[96:99], v42 offset:{AGG}")
    o(f"ds_read_b128 v[100:103], v42 offset:{AGG+64}")
    o("s_waitcnt lgkmcnt(1)")
    mm(2)
    o("s_waitcnt lgkmcnt(0)")
    mm(3)
    o("s_nop 7")
    for p in range(4):
        pk("mul", 112+2*p, vr(48+2*p,2), "s[90:91]")
    for k in range(8):
        o(f"v_exp_f32 v{112+k}, v{112+k}")
    o("s_nop 0")
    for p in range(4):
        pk("add", 112+2*p, vr(112+2*p,2), "1.0", mods="op_sel_hi:[1,0]")
    for k in range(8):
        o(f"v_rcp_f32 v{112+k}, v{112+k}")
    o("s_nop 0")
    for p in range(4):
        pk("mul", 112+2*p, vr(112+2*p,2), vr(48+2*p,2))
    for k in range(4):
        o(f"v_cvt_pk_bf16_f32 v{120+k}, v{112+2*k}, v{113+2*k}")
    o(f"ds_write_b128 v36, v[120:123] offset:{OTR}")
    o("s_waitcnt lgkmcnt(0)")
    o(f"ds_read_b128 v[120:123], v39 offset:{OTR}")
    o("s_and_b64 exec, exec, vcc")
    o("s_cbranch_execz K2_END")
    o("s_waitcnt lgkmcnt(0)")
    o(f"buffer_store_dwordx4 v[120:123], v4, {sr(sOUT,4)}, 0 offen")
    lab("K2_END")
    if STAMP: o("s_waitcnt vmcnt(0)")
    stamp(11)
    stamp_flush(12)
    lab("K2_EXIT")
    o("s_endpgm")

def main(path):
    hdr = open("gather_scatter__mpnn_edge_mlp__graph.s.ref").read().split("\n")
    head = [h for h in hdr if h.startswith(";") and "@launch" not in h]
    L.extend(head)
    L.append(f"; @launch grid=({NBK},1,1) block=(1024,1,1) lds={LDS}")
    L.append('.amdgcn_target "amdgcn-amd-amdhsa--gfx950"')
    L.append(".text")
    gen()
    L.append('.section .rodata,"a"')
    L.append(".p2align 6")
    L.append(f".amdhsa_kernel {KN}")
    L.append("  .amdhsa_next_free_vgpr 128")
    L.append(f"  .amdhsa_next_free_sgpr {102 if STAMP else 100}")
    L.append("  .amdhsa_accum_offset 128")
    L.append("  .amdhsa_group_segment_fixed_size 0")
    L.append("  .amdhsa_kernarg_size 72")
    L.append("  .amdhsa_user_sgpr_count 2")
    L.append("  .amdhsa_user_sgpr_kernarg_segment_ptr 1")
    L.append("  .amdhsa_system_sgpr_workgroup_id_x 1")
    L.append("  .amdhsa_float_denorm_mode_32 3")
    L.append(".end_amdhsa_kernel")
    open(path, "w").write("\n".join(x for x in L if x is not None) + "\n")
    print(f"{KN}:{NBK}:1024:{LDS}")

if __name__ == "__main__":
    main(sys.argv[1] if len(sys.argv) > 1 else "v7.s")
```

```python
import sys, os

KN = "gather_scatter__mpnn_edge_mlp__graph_kernel"
N = 25000; E = 800000; NB = 98; NBK = 256; CH = 3200; NCH = 250
P_SIZE = N * 128
REC_OFF = 0x320000
RECB_OFF = 0x640000
DESC_OFF = 0x940000
WS_SIZE = 0x980000
NTILE = 782
NONOFF = 248
SPIN = 0x10000
NLOG2E = 0xbfb8aa3b
NLN2 = 0xbf317218
TEN = 0x41200000
DUMMY = 0x00FFFF80 | (98 << 24)
OOB = 0x7fffff00

CNT = 0
OFFS = 512
FLAGS = 1152
NINFO = 1280
SLOT = 1792
NSLOT = 4608
PART = SLOT + NSLOT * 8
RS = 272
QT = PART + 226 * RS
XT = (QT + 112 * RS + 127) & ~127
WUF = XT + 112 * 128
LDS = WUF + 16384
AGG = SLOT; AGG_STRIDE = 144
OTR = SLOT + 16384
C1 = PART; O1 = PART + 1024; R1 = PART + 2048; EF1 = PART + 27648
PTA = PART + 28672; PTB = PART
SYNC = FLAGS + 16
RAWU = SLOT; RAW2 = SLOT + 16384
W2F = PART
DLDS = PART + 8192 + 256
assert DLDS % 256 == 0 and DLDS // 256 + 3 < 256
assert PART % 128 == 0

STAMP = int(os.environ.get("STAMP", "0"))
ARR = os.environ.get("ARR", "atomic")
NSH = int(os.environ.get("NSH", "64"))
SHSTR = int(os.environ.get("SHSTR", "4"))
SLEEP = int(os.environ.get("SLEEP", "2"))
PFIRST = int(os.environ.get("PFIRST", "0"))
NODOT = int(os.environ.get("NODOT", "0"))
PREF = int(os.environ.get("PREF", "0"))
PRIO = int(os.environ.get("PRIO", "1"))
DBG_OFF = 0x1000000
STAMP_SG = [95, 98, 99, 100, 101, 36, 37, 38, 39, 40, 41, 42]

L = []
def o(s): L.append("    " + s)
def lab(s): L.append(s + ":")
def vr(a, n): return f"v[{a}:{a+n-1}]"
def sr(a, n): return f"s[{a}:{a+n-1}]"

def stamp(idx):
    if not STAMP: return
    o("s_memrealtime s[96:97]")
    o("s_waitcnt lgkmcnt(0)")
    o(f"s_mov_b32 s{STAMP_SG[idx]}, s96")
CYC = os.environ.get("CYC", "")
def cstamp(where, idx):
    if not STAMP or where not in CYC.split(","): return
    o("s_memtime s[96:97]")
    o("s_waitcnt lgkmcnt(0)")
    o(f"s_mov_b32 s{STAMP_SG[idx]}, s96")
def stamp_flush(n):
    if not STAMP: return
    o("s_mov_b64 exec, -1")
    o("s_lshl_b32 s96, s2, 4")
    o("s_add_u32 s96, s96, s22")
    o("s_lshl_b32 s96, s96, 6")
    o(f"s_add_u32 s96, s96, {DBG_OFF + 0x100000}")
    o("s_add_u32 s96, s20, s96")
    o("s_addc_u32 s97, s21, 0")
    o("v_mov_b32 v1, 0")
    for i in range(n):
        o(f"v_mov_b32 v2, s{STAMP_SG[i]}")
        o(f"global_store_dword v1, v2, s[96:97] offset:{4*i}")

def srd(d, base_lo, off=None, size=None, off_s=None):
    if off is None and off_s is None:
        o(f"s_mov_b64 {sr(d,2)}, {sr(base_lo,2)}")
    else:
        first = True
        for x in (off, off_s):
            if x is None: continue
            src_lo = f"s{base_lo}" if first else f"s{d}"
            src_hi = f"s{base_lo+1}" if first else f"s{d+1}"
            o(f"s_add_u32 s{d}, {src_lo}, {x}")
            o(f"s_addc_u32 s{d+1}, {src_hi}, 0")
            first = False
    o(f"s_mov_b32 s{d+2}, {size}")
    o(f"s_mov_b32 s{d+3}, 0x20000")

def wave_scan(v, op="add_u32"):
    for sh in (1, 2, 4, 8):
        o("s_nop 1")
        o(f"v_{op}_dpp v{v}, v{v}, v{v} row_shr:{sh} row_mask:0xf bank_mask:0xf bound_ctrl:0")
    o("s_nop 1")
    o(f"v_{op}_dpp v{v}, v{v}, v{v} row_bcast:15 row_mask:0xa bank_mask:0xf")
    o("s_nop 1")
    o(f"v_{op}_dpp v{v}, v{v}, v{v} row_bcast:31 row_mask:0xc bank_mask:0xf")

def lds_sync(tag, idx, n, vz, v1, vt):
    o("s_waitcnt lgkmcnt(0)")
    o("s_mov_b64 exec, 1")
    o(f"ds_add_u32 v{vz}, v{v1} offset:{SYNC if idx is None else SYNC}+{idx}" if False else f"ds_add_u32 v{vz}, v{v1} offset:{SYNC}" if idx is None else f"ds_add_u32 v{vz}, v{v1} offset:{SYNC + 4*idx}")
    lab(f"LS_{tag}")
    o(f"ds_read_b32 v{vt}, v{vz} offset:{SYNC if idx is None else SYNC + 4*idx}")
    o("s_waitcnt lgkmcnt(0)")
    o(f"v_readfirstlane_b32 s53, v{vt}")
    o(f"s_cmp_ge_u32 s53, {n}")
    o(f"s_cbranch_scc1 LSX_{tag}")
    o("s_sleep 1")
    o(f"s_branch LS_{tag}")
    lab(f"LSX_{tag}")
    o("s_mov_b64 exec, -1")

def pk(op, d, *src, mods=""):
    o(f"v_pk_{op}_f32 {vr(d,2)}, " + ", ".join(src) + (" " + mods if mods else ""))

vJ16, vQC, vOC, vSLOT, vQA, vQAN, vT0 = 1, 2, 3, 4, 5, 6, 7
W, ACC, A, DESC, GA, RA, RB, PA, PB, Q, NN, D, T, EE = 8, 16, 24, 32, 36, 40, 48, 56, 72, 88, 96, 104, 112, 120
sX, sP, sWS, sWM, sWU, sOUT = 24, 28, 32, 36, 40, 44
sMASK = 56
sQN, sS, sBASE, sREM, sRW, sCNT, sK, sM24 = 72, 73, 74, 75, 76, 77, 78, 79
sVIO = 82
sSLOW, sMORE, sRND = 84, 85, 23
sTILE, sHALF, sROWB, sBK = 86, 87, 88, 89
sSTEP, sRDONE, sRS, sREC = 48, 49, 50, 93
SC1 = " sc1"
SST = os.environ.get("SST", " sc1")
GSC = os.environ.get("GSC", " sc1")

def gathers(R, P):
    for i in range(4):
        o(f"v_and_or_b32 v{GA+i}, v{R+2*i}, s{sM24}, v{vJ16}")
        o(f"buffer_load_dwordx4 {vr(P+4*i,4)}, v{GA+i}, {sr(sP,4)}, 0 offen{GSC}")

def compute_quad(R, RN, P, slow, QA, QN, so):
    for i in range(4):
        TT = NN if (i == 0 and not slow) else T
        for p in range(4):
            pk("fma", TT+2*p, vr(R+2*i,2), vr(W+2*p,2), vr(Q+2*p,2), mods="op_sel:[1,0,0] op_sel_hi:[1,1,1]")
        if i == 3:
            o(f"v_add_u32 v{vT0}, v{QA}, v{vOC}")
            o(f"v_lshrrev_b32 v{QN}, 24, v{RN}")
            o(f"v_mad_u32_u24 v{QN}, v{QN}, s{sRS}, v{vQC}")
            o(f"ds_read_b128 {vr(Q,4)}, v{QN}")
            o(f"ds_read_b128 {vr(Q+4,4)}, v{QN} offset:128")
            o(f"ds_read_b128 {vr(R,4)}, v{vSLOT} offset:{so}")
            o(f"ds_read_b128 {vr(R+4,4)}, v{vSLOT} offset:{so+16}")
            if so == 96: o(f"v_add_u32 v{vSLOT}, 64, v{vSLOT}")
        if NODOT:
            for k in range(4):
                o(f"v_lshlrev_b32 v{EE+k}, 16, v{P+4*i+k}")
            pk("add", TT, vr(P+4*i,2), vr(TT,2))
            pk("add", TT+2, vr(P+4*i+2,2), vr(TT+2,2))
            pk("add", TT+4, vr(EE,2), vr(TT+4,2))
            pk("add", TT+6, vr(EE+2,2), vr(TT+6,2))
        else:
            for k in range(4):
                o(f"v_dot2_f32_bf16 v{TT+4+k}, v{P+4*i+k}, s{sK}, v{TT+4+k}")
            pk("add", TT, vr(P+4*i,2), vr(TT,2))
            pk("add", TT+2, vr(P+4*i+2,2), vr(TT+2,2))
        for k in range(8):
            o(f"v_exp_f32 v{EE+k}, v{TT+k}")
        if slow:
            for p in range(4):
                pk("add", EE+2*p, vr(EE+2*p,2), "1.0", mods="op_sel_hi:[1,0]")
            for k in range(8):
                o(f"v_rcp_f32 v{EE+k}, v{EE+k}")
            o("s_nop 0")
            for p in range(4):
                pk("fma", ACC+2*p, vr(T+2*p,2), vr(EE+2*p,2), vr(ACC+2*p,2))
        elif i == 0:
            for p in range(4):
                pk("add", D+2*p, vr(EE+2*p,2), "1.0", mods="op_sel_hi:[1,0]")
        else:
            for p in range(4):
                pk("fma", NN+2*p, vr(NN+2*p,2), vr(EE+2*p,2), vr(NN+2*p,2))
            for p in range(4):
                pk("fma", NN+2*p, vr(T+2*p,2), vr(D+2*p,2), vr(NN+2*p,2))
            for p in range(4):
                pk("fma", D+2*p, vr(D+2*p,2), vr(EE+2*p,2), vr(D+2*p,2))
    if not slow:
        for k in range(8):
            o(f"v_rcp_f32 v{EE+k}, v{D+k}")
        o("s_nop 0")
        for p in range(4):
            pk("fma", ACC+2*p, vr(NN+2*p,2), vr(EE+2*p,2), vr(ACC+2*p,2))
    o(f"ds_write_b128 v{vT0}, {vr(ACC,4)}")
    o(f"ds_write_b128 v{vT0}, {vr(ACC+4,4)} offset:128")

def gen_main(tag, slow):
    lab(f"K2_MAIN_{tag}")
    o(f"ds_read_b128 {vr(RA,4)}, v{vSLOT}")
    o(f"ds_read_b128 {vr(RA+4,4)}, v{vSLOT} offset:16")
    o(f"ds_read_b128 {vr(RB,4)}, v{vSLOT} offset:32")
    o(f"ds_read_b128 {vr(RB+4,4)}, v{vSLOT} offset:48")
    for p in range(4):
        o(f"v_mov_b64 {vr(ACC+2*p,2)}, 0")
    o(f"s_sub_u32 s{sCNT}, s{sRW}, 1")
    if PRIO: o("s_setprio 3")
    o("s_waitcnt lgkmcnt(2)")
    gathers(RA, PA)
    o(f"v_lshrrev_b32 v{vQA}, 24, v{RA}")
    o(f"v_mad_u32_u24 v{vQA}, v{vQA}, s{sRS}, v{vQC}")
    o(f"ds_read_b128 {vr(Q,4)}, v{vQA}")
    o(f"ds_read_b128 {vr(Q+4,4)}, v{vQA} offset:128")
    o("s_waitcnt lgkmcnt(0)")
    for (x, R, RN, P, PN, QA, QN, so) in (("A", RA, RB, PA, PB, vQA, vQAN, 64), ("B", RB, RA, PB, PA, vQAN, vQA, 96)):
        t = tag + x
        lab(f"K2_LOOP_{t}")
        o(f"s_cmp_eq_u32 s{sCNT}, 0")
        o(f"s_cbranch_scc1 K2_LAST_{t}")
        if PRIO:
            o(f"s_cmp_gt_u32 s{sCNT}, 2")
            o(f"s_cbranch_scc1 K2_PR_{t}")
            o("s_setprio 2")
            o(f"s_cmp_eq_u32 s{sCNT}, 2")
            o(f"s_cbranch_scc1 K2_PR_{t}")
            o("s_setprio 1")
            lab(f"K2_PR_{t}")
        o("s_waitcnt lgkmcnt(2)")
        gathers(RN, PN)
        o("s_waitcnt vmcnt(4)")
        o(f"s_branch K2_GO_{t}")
        lab(f"K2_LAST_{t}")
        if PRIO: o("s_setprio 0")
        o("s_waitcnt vmcnt(0) lgkmcnt(2)")
        lab(f"K2_GO_{t}")
        compute_quad(R, RN, P, slow, QA, QN, so)
        o(f"s_cmp_eq_u32 s{sCNT}, 0")
        o("s_cbranch_scc1 K2_MAIN_DONE")
        o(f"s_sub_u32 s{sCNT}, s{sCNT}, 1")
        o(f"v_cmp_ne_u32 vcc, v{vQAN}, v{vQA}")
        o("s_and_saveexec_b64 s[80:81], vcc")
        o(f"s_cbranch_execz K2_KEEP_{t}")
        for p in range(4):
            o(f"v_mov_b64 {vr(ACC+2*p,2)}, 0")
        lab(f"K2_KEEP_{t}")
        o("s_mov_b64 exec, -1")
        if x == "B":
            o(f"s_branch K2_LOOP_{tag}A")

def silu_f(dst, src):
    for k in range(8):
        o(f"v_exp_f32 v{dst+k}, v{src+k}")
    o("s_nop 0")
    for p in range(4):
        pk("add", dst+2*p, vr(dst+2*p,2), "1.0", mods="op_sel_hi:[1,0]")
    for k in range(8):
        o(f"v_rcp_f32 v{dst+k}, v{dst+k}")
    o("s_nop 0")
    for p in range(4):
        pk("mul", dst+2*p, vr(dst+2*p,2), vr(src+2*p,2))

def masked(i, tagp, instr):
    o(f"s_mov_b64 exec, {sr(sMASK+2*i,2)}")
    skip = (i % 2 == 1)
    if skip: o(f"s_cbranch_execz {tagp}{i}")
    o(instr)
    if skip: lab(f"{tagp}{i}")

def prefill():
    n = prefill.n
    o(f"v_mov_b32 v120, 0x{DUMMY:08x}")
    o("v_mov_b32 v121, 0")
    o("v_mov_b32 v122, v120")
    o("v_mov_b32 v123, 0")
    o("v_lshlrev_b32 v124, 4, v0")
    for m in range(2):
        o(f"ds_write_b128 v124, v[120:123] offset:{SLOT + m*16384}")
    o("s_cmp_gt_u32 s22, 3")
    o(f"s_cbranch_scc1 K2_PF1_{n}")
    o(f"ds_write_b128 v124, v[120:123] offset:{SLOT + 32768}")
    lab(f"K2_PF1_{n}")
    o("s_cmp_lg_u32 s22, 15")
    o(f"s_cbranch_scc1 K2_PF2_{n}")
    o("v_and_b32 v125, 63, v0")
    o("v_lshlrev_b32 v125, 3, v125")
    o("v_mov_b32 v120, 0")
    o(f"ds_write_b64 v125, v[120:121] offset:{CNT}")
    o(f"ds_write_b32 v121, v120 offset:{FLAGS+4}")
    lab(f"K2_PF2_{n}")
    prefill.n += 1
prefill.n = 0

def bulk_dma():
    srd(sWU, 14, size=128*128)
    o("v_lshlrev_b32 v124, 4, v0")
    o("s_lshl_b32 s52, s22, 10")
    o(f"s_add_u32 s53, s52, {RAWU}")
    o("s_mov_b32 m0, s53")
    o("v_add_u32 v125, 0x2000, v124")
    o(f"buffer_load_dwordx4 v124, {sr(sWU,4)}, 0 offen lds")
    o(f"s_add_u32 s53, s52, {RAW2}")
    o("s_mov_b32 m0, s53")
    o("v_lshlrev_b32 v126, 1, v0")
    o("v_and_b32 v126, 0x70, v126")
    o(f"buffer_load_dwordx4 v125, {sr(sWM,4)}, 0 offen lds")
    o("v_xor_b32 v126, v126, v124")
    o(f"s_mul_i32 s90, s{sBK}, 12544")
    o("v_add_u32 v126, s90, v126")
    o("s_and_b32 s53, s22, 14")
    o("s_cmp_lg_u32 s53, 12")
    o(f"s_cbranch_scc1 BD_{bulk_dma.n}")
    o(f"s_add_u32 s53, s52, {XT}")
    o("s_mov_b32 m0, s53")
    o("s_nop 0")
    o(f"buffer_load_dwordx4 v126, {sr(sX,4)}, 0 offen lds")
    lab(f"BD_{bulk_dma.n}")
    bulk_dma.n += 1
bulk_dma.n = 0

def gen():
    L.append(f".globl {KN}")
    L.append(".p2align 8")
    L.append(f".type {KN},@function")
    lab(KN)
    o(f"s_cmp_ge_u32 s2, {NBK}")
    o("s_cbranch_scc1 K2_EXIT")
    o("s_load_dwordx16 s[4:19], s[0:1], 0")
    o("s_load_dwordx2 s[20:21], s[0:1], 64")
    o("v_lshrrev_b32 v1, 6, v0")
    o("s_and_b32 s3, s2, 7")
    o("v_readfirstlane_b32 s22, v1")
    o("s_lshl_b32 s3, s3, 5")
    o(f"s_lshr_b32 s{sBK}, s2, 3")
    o(f"s_or_b32 s{sBK}, s{sBK}, s3")
    o(f"s_mov_b64 {sr(sVIO,2)}, 0")
    o("s_mov_b32 s3, -1")
    o("s_sub_u32 s23, s22, 13")
    o(f"s_mov_b32 s46, {PTA}")
    o("s_mov_b32 s47, 8")
    o("s_cmp_ge_u32 s22, 13")
    o("s_cbranch_scc1 P_ROLE")
    o(f"s_cmp_lt_u32 s2, {NCH}")
    o("s_cbranch_scc1 SORT_ROLE")
    o("s_mul_i32 s3, s2, 3")
    o("s_add_u32 s3, s3, s22")
    o("s_sub_u32 s3, s3, 750")
    o("s_mov_b32 s23, s22")
    o(f"s_mov_b32 s46, {PTB}")
    o("s_mov_b32 s47, 12")
    o("s_cmp_lt_u32 s22, 3")
    o("s_cbranch_scc1 P_ROLE")
    o("s_waitcnt lgkmcnt(0)")
    stamp(0)
    srd(sX, 4, size=N*128)
    srd(sWM, 12, size=129*128)
    o("s_barrier")
    stamp(1)
    o("v_mov_b32 v61, 0")
    o("v_mov_b32 v62, 0")
    o("v_mov_b64 v[20:21], 0")
    o("s_cmp_lg_u32 s22, 11")
    o("s_cbranch_scc1 NONCE1I")
    o(f"s_mov_b32 s52, {SPIN}")
    o("v_mov_b32 v12, 0")
    lab("NONCEI")
    o("s_waitcnt vmcnt(0)")
    o("v_readfirstlane_b32 s53, v62")
    o("s_sub_u32 s52, s52, 1")
    o("s_cmp_eq_u32 s52, 0")
    o("s_cbranch_scc1 NONCE2I")
    o("s_cmp_lg_u32 s53, 0")
    o("s_cbranch_scc1 NONCE2I")
    o("s_sleep 8")
    o(f"global_load_dwordx2 v[62:63], v12, s[18:19] offset:{NONOFF} sc1")
    o("s_branch NONCEI")
    lab("NONCE2I")
    o(f"ds_write_b64 v12, v[62:63] offset:{FLAGS+8}")
    lab("NONCE1I")
    stamp(2)
    bulk_dma()
    o("s_branch PH1_DONE")

    lab("SORT_ROLE")
    o("s_movk_i32 s3, 800")
    o("v_cmp_gt_u32 s[44:45], s3, v0")
    o("v_lshlrev_b32 v1, 4, v0")
    o("v_lshlrev_b32 v2, 3, v0")
    o("v_and_b32 v7, 63, v0")
    o("v_lshlrev_b32 v6, 4, v7")
    o("v_lshlrev_b32 v7, 1, v7")
    o("v_add_u32 v7, 0x4000, v7")
    o("s_mul_i32 s3, s2, 12800")
    o("s_mul_i32 s23, s2, 6400")
    o("s_waitcnt lgkmcnt(0)")
    stamp(0)
    def sort_loads():
        o("buffer_load_dwordx4 v[16:19], v1, s[56:59], 0 offen")
        o("buffer_load_dwordx4 v[8:11], v1, s[60:63], 0 offen")
        o("buffer_load_dwordx2 v[24:25], v2, s[64:67], 0 offen")
        o(f"buffer_load_ushort v7, v7, {sr(sWM,4)}, 0 offen")
    srd(56, 10, off_s="s3", size=12800)
    srd(60, 8, off_s="s3", size=12800)
    srd(64, 6, off_s="s23", size=6400)
    srd(sWM, 12, size=129*128)
    if not PFIRST: sort_loads()
    o("s_cmp_lg_u32 s22, 0")
    o("s_cbranch_scc1 S1")
    o("v_mov_b64 v[28:29], 0")
    o("v_mov_b64 v[30:31], 0")
    o(f"ds_write_b128 v6, v[28:31] offset:{C1}")
    o("s_waitcnt lgkmcnt(0)")
    lab("S1")
    o("s_barrier")
    if PFIRST: sort_loads()
    srd(68, 20, off=REC_OFF, off_s="s3", size=12800)
    o("s_mul_i32 s3, s2, 3200")
    srd(72, 20, off=RECB_OFF, off_s="s3", size=3200)
    srd(sX, 4, size=N*128)
    srd(sWS, 20, size=WS_SIZE)
    o("s_mov_b64 exec, s[44:45]")
    o("v_mov_b32 v5, 1")
    o("s_movk_i32 s46, 98")
    o("s_waitcnt vmcnt(3)")
    for i in range(4):
        d = 16 + i
        o(f"v_mul_u32_u24 v{32+i}, 0xa730, v{d}")
        o(f"v_lshrrev_b32 v{40+i}, 22, v{32+i}")
        o(f"v_lshlrev_b32 v{32+i}, 2, v{40+i}")
        o(f"v_mul_u32_u24 v28, s46, v{40+i}")
        o(f"ds_add_rtn_u32 v{40+i}, v{32+i}, v5 offset:{C1}")
        o(f"v_sub_u32 v{d}, v{d}, v28")
    o("s_mov_b64 exec, -1")
    o("v_mov_b32 v5, 1")
    o("v_mov_b32 v61, 0")
    o(f"s_mov_b32 s46, {R1}")
    lds_sync("A", 0, 13, 61, 5, 60)
    o(f"ds_read_b128 v[64:67], v6 offset:{C1}")
    o("s_cmp_lg_u32 s22, 11")
    o("s_cbranch_scc1 NI1")
    o(f"global_load_dwordx2 v[62:63], v61, s[18:19] offset:{NONOFF} sc1")
    lab("NI1")
    o("s_waitcnt lgkmcnt(0)")
    o("v_add_u32 v12, v64, v65")
    o("v_add_u32 v13, v12, v66")
    o("v_add_u32 v14, v13, v67")
    o("v_mov_b32 v68, v14")
    wave_scan(68)
    o("v_sub_u32 v68, v68, v14")
    o("v_add_u32 v69, v68, v64")
    o("v_add_u32 v70, v68, v12")
    o("v_add_u32 v71, v68, v13")
    for k in range(4):
        o(f"v_lshl_add_u32 v{20+k}, v{68+k}, 2, s46")
    o(f"ds_write_b128 v6, v[20:23] offset:{O1}")
    o("s_mov_b64 exec, s[44:45]")
    o("s_waitcnt lgkmcnt(0)")
    for i in range(4):
        o(f"ds_read_b32 v{32+i}, v{32+i} offset:{O1}")
    o("s_cmp_eq_u32 s22, 11")
    o("s_cbranch_scc1 NI2")
    o("s_waitcnt vmcnt(0)")
    lab("NI2")
    o("s_waitcnt vmcnt(1)")
    stamp(1)
    o("s_mov_b32 s3, 0xffff0000")
    for i in range(4):
        ew = 24 + i // 2
        if i % 2 == 0: o(f"v_lshl_or_b32 v{48+i}, v{ew}, 16, v{8+i}")
        else: o(f"v_and_or_b32 v{48+i}, v{ew}, s3, v{8+i}")
    o("s_waitcnt lgkmcnt(0)")
    for i in range(4):
        o(f"v_lshl_add_u32 v{32+i}, v{40+i}, 2, v{32+i}")
        o(f"ds_write_b32 v{32+i}, v{48+i}")
        o(f"v_lshrrev_b32 v{36+i}, 2, v{32+i}")
        o(f"ds_write_b8 v{36+i}, v{16+i} offset:{R1 + 12800 - R1//4}")
    o("v_max3_f32 v28, |v48|, |v49|, |v50|")
    o("v_max_f32 v28, |v51|, v28")
    o("s_mov_b64 exec, -1")
    o("s_cmp_lg_u32 s22, 11")
    o("s_cbranch_scc1 NI3")
    o("s_waitcnt vmcnt(0)")
    lab("NI3")
    bulk_dma()
    lds_sync("B", 1, 13, 61, 5, 60)
    stamp(2)
    o("v_mov_b32 v60, v28")
    o(f"ds_read_b128 v[24:27], v1 offset:{R1}")
    o("s_cmp_gt_u32 s22, 3")
    o("s_cbranch_scc1 CO1")
    o(f"ds_read_b128 v[28:31], v1 offset:{R1+12800}")
    o("s_waitcnt lgkmcnt(0)")
    o(f"buffer_store_dwordx4 v[28:31], v1, s[72:75], 0 offen{SST}")
    lab("CO1")
    o("s_waitcnt lgkmcnt(0)")
    o(f"buffer_store_dwordx4 v[24:27], v1, s[68:71], 0 offen{SST}")
    o("v_and_b32 v7, 0x7fff, v7")
    wave_scan(7, "max_u32")
    o("s_nop 1")
    o("v_readlane_b32 s47, v7, 63")
    o("s_lshl_b32 s47, s47, 16")
    o("s_mov_b64 exec, s[44:45]")
    o("v_mul_f32 v60, s47, v60")
    o(f"v_cmp_ngt_f32 vcc, 0x40dd7fb6, v60")
    o(f"s_mov_b64 {sr(sVIO,2)}, vcc")
    o("s_mov_b64 exec, -1")
    o("s_cmp_lg_u32 s22, 11")
    o("s_cbranch_scc1 NONCE1S")
    o(f"s_mov_b32 s52, {SPIN}")
    lab("NONCES")
    o("v_readfirstlane_b32 s53, v62")
    o("s_sub_u32 s52, s52, 1")
    o("s_cmp_eq_u32 s52, 0")
    o("s_cbranch_scc1 NONCE2S")
    o("s_cmp_lg_u32 s53, 0")
    o("s_cbranch_scc1 NONCE2S")
    o(f"global_load_dwordx2 v[62:63], v61, s[18:19] offset:{NONOFF} sc1")
    o("s_waitcnt vmcnt(0)")
    o("s_branch NONCES")
    lab("NONCE2S")
    o(f"ds_write_b64 v61, v[62:63] offset:{FLAGS+8}")
    lab("NONCE1S")
    o("s_cmp_lg_u32 s22, 12")
    o("s_cbranch_scc1 S2")
    o("v_add_u32 v19, v71, v67")
    o("v_lshl_or_b32 v20, v69, 12, v68")
    o("v_lshl_or_b32 v20, v70, 24, v20")
    o("v_lshrrev_b32 v21, 8, v70")
    o("v_lshl_or_b32 v21, v71, 4, v21")
    o("v_lshl_or_b32 v21, v19, 16, v21")
    lab("S2")
    o("s_branch PH1_DONE")

    lab("P_ROLE")
    o("v_and_b32 v2, 63, v0")
    o("v_lshlrev_b32 v1, 4, v2")
    o("v_lshlrev_b32 v3, 1, v2")
    o("v_and_b32 v3, 0x70, v3")
    o("v_xor_b32 v3, v3, v1")
    o("v_mov_b32 v61, s47")
    o("s_lshl_b32 s47, s23, 10")
    o("v_add_u32 v5, s47, v1")
    o("v_add_u32 v6, 0x1800, v5")
    o("s_add_u32 s52, s46, s47")
    o("s_mov_b32 m0, s52")
    o("s_lshl_b32 s62, s23, 12")
    o("s_add_u32 s47, s62, s46")
    o("s_add_u32 s47, s47, 9216")
    o("s_mov_b32 s23, s46")
    o("s_cmp_lg_u32 s3, -1")
    o("s_cbranch_scc1 PX")
    o(f"s_mul_i32 s46, s{sBK}, 12544")
    o("s_add_u32 s46, s46, s62")
    o(f"s_add_u32 s62, s62, {XT}")
    for m in range(4):
        o(f"v_add_u32 v{88+m}, s46, v3")
        o(f"v_add_u32 v{92+m}, s46, v1")
    o("s_branch PY")
    lab("PX")
    o("s_mov_b32 s62, s47")
    o("s_mul_i32 s46, s3, 200704")
    o("s_add_u32 s46, s46, 12288")
    o("v_bfe_u32 v4, v0, 4, 2")
    o("s_movk_i32 s53, 12544")
    o("v_mul_u32_u24 v4, s53, v4")
    o("v_add_u32 v4, s46, v4")
    o("v_and_b32 v7, 0xf0, v3")
    o("v_add_u32 v88, v4, v7")
    o("v_and_b32 v7, 0xf0, v1")
    o("v_add_u32 v92, v4, v7")
    for m in range(1, 4):
        o(f"v_add_u32 v{88+m}, {m*(4*12544-1024)}, v88")
        o(f"v_add_u32 v{92+m}, {m*(4*12544-1024)}, v92")
    lab("PY")
    o("s_waitcnt lgkmcnt(0)")
    stamp(0)
    srd(sWM, 12, size=129*128)
    o(f"buffer_load_dwordx4 v5, {sr(sWM,4)}, 0 offen lds")
    o(f"buffer_load_dwordx4 v5, {sr(sWM,4)}, 0 offen offset:3072 lds")
    o("s_add_u32 s52, s52, 0x1800")
    o("s_mov_b32 m0, s52")
    srd(sX, 4, size=N*128)
    o(f"buffer_load_dwordx4 v6, {sr(sWM,4)}, 0 offen lds")
    o("s_mov_b32 m0, s62")
    o("s_nop 0")
    for m in range(4):
        o(f"buffer_load_dwordx4 v{88+m}, {sr(sX,4)}, 0 offen offset:{m*1024} lds")
    o("s_cmp_lg_u32 s22, 15")
    o("s_cbranch_scc1 P1")
    o("v_mov_b64 v[28:29], 0")
    o("v_mov_b64 v[30:31], 0")
    o(f"ds_write_b64 v28, v[28:29] offset:{FLAGS}")
    o(f"ds_write_b128 v28, v[28:31] offset:{SYNC}")
    o("s_cmp_lg_u32 s2, 0")
    o("s_cbranch_scc1 P0")
    o("s_memrealtime s[52:53]")
    o("s_waitcnt lgkmcnt(0)")
    o("s_or_b32 s52, s52, 1")
    o("v_mov_b32 v30, s52")
    o("v_mov_b32 v31, s53")
    o("s_mov_b64 exec, 1")
    o(f"global_store_dwordx2 v28, v[30:31], s[18:19] offset:{NONOFF} sc1")
    o("s_mov_b64 exec, -1")
    lab("P0")
    o("s_waitcnt lgkmcnt(0)")
    lab("P1")
    o("s_barrier")
    srd(sP, 20, size=P_SIZE)
    o("v_and_b32 v7, 31, v0")
    o("v_bfe_u32 v6, v0, 5, 1")
    o("v_add_u32 v5, s47, v3")
    o("v_lshlrev_b32 v4, 4, v0")
    o("v_and_b32 v4, 0x70, v4")
    o("v_lshl_add_u32 v4, v7, 7, v4")
    o("v_add_u32 v45, s62, v4")
    o("v_add_u32 v4, s47, v4")
    o("v_lshlrev_b32 v44, 4, v6")
    o("v_xor_b32 v44, v44, v45")
    for kc in range(1, 4):
        o(f"v_xor_b32 v{44+kc}, {32*kc}, v44")
    o("v_lshlrev_b32 v40, 6, v6")
    o("v_xor_b32 v40, v40, v4")
    for m in range(1, 4):
        o(f"v_xor_b32 v{40+m}, {16*m}, v40")
    o("v_bfe_u32 v48, v7, 2, 1")
    o("v_lshlrev_b32 v48, 4, v48")
    o("v_and_b32 v49, 3, v7")
    o("v_add_u32 v48, v48, v49")
    o("v_lshrrev_b32 v49, 3, v7")
    o("v_lshl_add_u32 v48, v49, 2, v48")
    o("v_lshlrev_b32 v48, 2, v48")
    o("v_lshl_add_u32 v48, v6, 10, v48")
    o("v_add_u32 v48, s23, v48")
    for kc in range(1, 4):
        o(f"v_add_u32 v{48+kc}, {2048*kc}, v48")
    o("s_mov_b32 s56, 0x05040100")
    o("s_mov_b32 s57, 0x07060302")
    o(f"s_mov_b32 s58, 0x{NLOG2E:08x}")
    o("s_mov_b32 s59, s58")
    o("s_mov_b32 s60, 0xffff0000")
    o("s_brev_b32 s61, 1")
    o("v_mov_b32 v62, 1")
    o("s_waitcnt vmcnt(4)")
    lds_sync("W", None, 3, 61, 62, 60)
    for kc in range(4):
        for m in range(4):
            o(f"ds_read2_b32 v[{96+8*kc+2*m}:{97+8*kc+2*m}], v{48+kc} offset0:{64*m} offset1:{64*m+32}")
        if kc == 2: o("s_waitcnt lgkmcnt(8)")
    for kc in range(4):
        o(f"s_waitcnt lgkmcnt({12-4*kc})")
        for m in range(4):
            a, b = 96 + 8*kc + 2*m, 97 + 8*kc + 2*m
            o(f"v_perm_b32 v{8+8*kc+m}, v{b}, v{a}, s56")
            o(f"v_perm_b32 v{12+8*kc+m}, v{b}, v{a}, s57")
    o("s_waitcnt vmcnt(0)")
    stamp(1)
    for kc in range(4):
        o(f"ds_read_b128 v[{72+4*kc}:{75+4*kc}], v{44+kc}")
    for kc in range(4):
        o(f"s_waitcnt lgkmcnt({3-kc})")
        cl = "0" if kc == 0 else "v[96:111]"
        ch = "0" if kc == 0 else "v[112:127]"
        o(f"v_mfma_f32_32x32x16_bf16 v[96:111], v[{8+8*kc}:{11+8*kc}], v[{72+4*kc}:{75+4*kc}], {cl}")
        o(f"v_mfma_f32_32x32x16_bf16 v[112:127], v[{12+8*kc}:{15+8*kc}], v[{72+4*kc}:{75+4*kc}], {ch}")
    o("v_mov_b32 v7, 0")
    o("s_nop 7")
    o("s_nop 3")
    for r in range(0, 32, 2):
        o(f"v_pk_mul_f32 v[{96+r}:{97+r}], v[{96+r}:{97+r}], s[58:59]")
    for r in range(16):
        lo, hi, w = 96 + r, 112 + r, 48 + r
        o(f"v_cvt_pk_bf16_f32 v{w}, v{lo}, v{lo}")
        o(f"v_and_b32 v39, 0x7fffffff, v{hi}")
        o(f"v_add_u32 v39, 0x8000, v39")
        o(f"v_sub_u32_sdwa v39, v39, v{w} clamp dst_sel:DWORD dst_unused:UNUSED_PAD src0_sel:DWORD src1_sel:WORD_0")
        o(f"v_max3_f32 v7, |v{lo}|, |v{hi}|, v7")
        o(f"v_bfi_b32 v39, s61, v{hi}, v39")
        o(f"v_bfi_b32 v{w}, s60, v39, v{w}")
        if r % 4 == 3:
            m = r // 4
            o(f"ds_write_b128 v{40+m}, v[{48+4*m}:{51+4*m}]")
    stamp(2)
    o(f"v_cmp_ngt_f32 vcc, 0x{TEN:08x}, v7")
    o(f"s_mov_b64 {sr(sVIO,2)}, vcc")
    bulk_dma()
    o("s_waitcnt lgkmcnt(0)")
    for m in range(4):
        o(f"ds_read_b128 v[{64+4*m}:{67+4*m}], v5 offset:{m*1024}")
    for m in range(4):
        o(f"s_waitcnt lgkmcnt({3-m})")
        o(f"buffer_store_dwordx4 v[{64+4*m}:{67+4*m}], v{92+m}, {sr(sP,4)}, 0 offen offset:{1024*m}{SST}")

    lab("PH1_DONE")
    o("v_mov_b32 v6, 0")
    o("v_mov_b32 v7, 1")
    o(f"s_cmp_eq_u64 {sr(sVIO,2)}, 0")
    o("s_cbranch_scc1 V1")
    o(f"ds_write_b32 v6, v7 offset:{FLAGS}")
    lab("V1")
    srd(sWS, 20, size=WS_SIZE)
    srd(sP, 20, size=P_SIZE)
    o(f"s_lshr_b32 s{sTILE}, s22, 1")
    o(f"s_and_b32 s{sHALF}, s22, 1")
    o(f"s_lshl_b32 s3, s{sTILE}, 11")
    o(f"s_add_u32 s{sROWB}, s90, s3")
    o(f"s_movk_i32 s{sK}, 0x3f80")
    o(f"s_movk_i32 s{sRS}, {RS}")
    o(f"s_mov_b32 s{sM24}, {os.environ.get('M24', '0xffffff')}")
    o(f"s_mov_b32 s{sRND}, 0")
    o(f"s_mov_b32 s{sRDONE}, 0")
    o(f"s_mov_b32 s{sSTEP}, 32")
    o(f"s_mov_b32 s{sREC}, {REC_OFF}")
    o("v_and_b32 v40, 3, v0")
    o("v_bfe_u32 v41, v0, 2, 2")
    o("v_bfe_u32 v42, v0, 4, 2")
    o("v_lshlrev_b32 v42, 10, v42")
    o("v_lshl_add_u32 v42, v41, 4, v42")
    o("v_lshl_add_u32 v43, v40, 1, v42")
    o("v_lshl_add_u32 v42, v40, 2, v42")
    o("s_lshr_b32 s52, s22, 3")
    o("s_lshl_b32 s52, s52, 6")
    o("s_bfe_u32 s53, s22, 0x10002")
    o("s_lshl_b32 s53, s53, 3")
    o("s_add_u32 s52, s52, s53")
    o("s_and_b32 s53, s22, 3")
    o("s_lshl_b32 s53, s53, 12")
    o("s_add_u32 s52, s52, s53")
    o("v_add_u32 v43, s52, v43")
    o("s_bfe_u32 s52, s22, 0x10002")
    o("s_lshl_b32 s52, s52, 6")
    o("s_bfe_u32 s53, s22, 0x10001")
    o("s_lshl_b32 s53, s53, 1")
    o("s_sub_u32 s52, s52, s53")
    o("s_add_u32 s52, s52, 2")
    o("s_and_b32 s53, s22, 1")
    o("s_lshl_b32 s53, s53, 12")
    o("s_add_u32 s52, s52, s53")
    o("v_add_u32 v42, s52, v42")
    o(f"v_and_b32 v{vJ16}, 7, v0")
    o(f"v_lshlrev_b32 v{vJ16}, 4, v{vJ16}")
    o("s_waitcnt vmcnt(0) lgkmcnt(0)")
    o("s_barrier")
    stamp(3)
    cstamp("a", 1)
    o("s_cmp_lg_u32 s22, 12")
    o("s_cbranch_scc1 NODESC")
    o(f"ds_read_b128 v[44:47], v6 offset:{FLAGS}")
    o("v_and_b32 v19, 63, v0")
    o("v_lshlrev_b32 v19, 12, v19")
    o("s_lshl_b32 s52, s2, 4")
    o(f"s_add_u32 s52, s52, {DESC_OFF}")
    o("s_waitcnt lgkmcnt(0)")
    o("v_lshl_or_b32 v21, v44, 31, v21")
    o("v_mov_b32 v22, v46")
    o("v_mov_b32 v23, v47")
    o(f"buffer_store_dwordx4 v[20:23], v19, {sr(sWS,4)}, s52 offen{SC1}")
    lab("NODESC")
    for t in range(8):
        o(f"ds_read_u16 v{56+t}, v43 offset:{RAWU + 128*t}")
    o(f"ds_read_b128 v[120:123], v{vJ16} offset:{RAW2 + 8192}")
    o("s_cmp_gt_u32 s22, 7")
    o("s_cbranch_scc1 NOW2")
    o("s_waitcnt lgkmcnt(4)")
    for t in range(8):
        o(f"ds_read_u16 v{64+t}, v42 offset:{RAW2 + 128*t}")
    o("s_waitcnt lgkmcnt(0)")
    for m in range(4):
        o(f"v_lshl_or_b32 v{76+m}, v{65+2*m}, 16, v{64+2*m}")
    o(f"ds_write_b128 v124, v[76:79] offset:{W2F}")
    lab("NOW2")
    o(f"v_add_u32 v125, {WUF}, v124")
    o(f"s_mov_b32 s90, 0x{NLOG2E:08x}")
    o("s_mov_b32 s91, s90")
    o("s_waitcnt lgkmcnt(0)")
    for m in range(4):
        o(f"v_lshl_or_b32 v{72+m}, v{57+2*m}, 16, v{56+2*m}")
    o("ds_write_b128 v125, v[72:75]")
    for k in range(4):
        o(f"v_and_b32 v{W+k}, 0xffff0000, v{120+k}")
        o(f"v_lshlrev_b32 v{W+4+k}, 16, v{120+k}")
    for p in range(4):
        pk("mul", W+2*p, vr(W+2*p,2), "s[90:91]")
    o(f"v_add_u32 v{vQC}, {QT}, v{vJ16}")
    o("v_lshrrev_b32 v125, 3, v0")
    o(f"v_mov_b32 v{vOC}, {(PART-QT) & 0xffffffff}")
    o(f"v_mad_u32_u24 v{vOC}, v125, s{sRS}, v{vOC}")
    o("v_and_b32 v72, 63, v0")
    o("v_lshlrev_b32 v72, 4, v72")
    o(f"s_lshl_b32 s52, s{sHALF}, 12")
    o("v_add_u32 v72, s52, v72")
    o("v_and_b32 v73, 15, v0")
    o(f"s_lshl_b32 s52, s{sTILE}, 4")
    o("v_add_u32 v73, s52, v73")
    o("v_and_b32 v74, 48, v0")
    o("v_lshlrev_b32 v75, 4, v0")
    o("v_and_b32 v75, 0x70, v75")
    o("v_xor_b32 v75, v75, v74")
    o("v_lshl_add_u32 v75, v73, 7, v75")
    o(f"v_add_u32 v75, {XT}, v75")
    o("v_xor_b32 v76, 64, v75")
    o(f"v_mad_u32_u24 v73, v73, s{sRS}, v74")
    o(f"s_lshl_b32 s3, s{sHALF}, 6")
    o(f"s_add_u32 s3, s3, {QT}")
    o("v_add_u32 v73, s3, v73")
    o("s_waitcnt lgkmcnt(0)")
    o("s_barrier")
    o(f"s_mov_b64 {sr(sVIO,2)}, 0")
    o("s_cmp_ge_u32 s22, 14")
    o("s_cbranch_scc1 NOQ")
    o("ds_read_b128 v[88:91], v75")
    o(f"ds_read_b128 v[96:99], v72 offset:{W2F}")
    o(f"ds_read_b128 v[104:107], v72 offset:{W2F+2048}")
    o("ds_read_b128 v[92:95], v76")
    o(f"ds_read_b128 v[100:103], v72 offset:{W2F+1024}")
    o(f"ds_read_b128 v[108:111], v72 offset:{W2F+3072}")
    o("s_waitcnt lgkmcnt(3)")
    o(f"v_mfma_f32_16x16x32_bf16 v[112:115], v[96:99], v[88:91], 0")
    o(f"v_mfma_f32_16x16x32_bf16 v[116:119], v[104:107], v[88:91], 0")
    o("s_waitcnt lgkmcnt(0)")
    o(f"v_mfma_f32_16x16x32_bf16 v[112:115], v[100:103], v[92:95], v[112:115]")
    o(f"v_mfma_f32_16x16x32_bf16 v[116:119], v[108:111], v[92:95], v[116:119]")
    o("s_nop 7")
    for p in range(4):
        pk("mul", 112+2*p, vr(112+2*p,2), "s[90:91]")
    o("ds_write_b128 v73, v[112:115]")
    o("ds_write_b128 v73, v[116:119] offset:128")
    o("v_max3_f32 v125, |v112|, |v113|, |v114|")
    o("v_max3_f32 v125, |v115|, |v116|, v125")
    o("v_max3_f32 v125, |v117|, |v118|, v125")
    o("v_max_f32 v125, |v119|, v125")
    o(f"v_cmp_ngt_f32 vcc, 0x{TEN:08x}, v125")
    o("s_cmp_eq_u64 vcc, 0")
    o("s_cbranch_scc1 NOQV")
    o(f"ds_write_b32 v6, v7 offset:{FLAGS}")
    lab("NOQV")
    silu_f(A, 112)
    lab("NOQ")
    prefill()
    o("v_and_b32 v7, 15, v0")
    o("v_add_u32 v6, 16, v7")
    o("v_lshrrev_b32 v72, 2, v0")
    o("v_and_b32 v72, 0xfc, v72")
    o("s_cmp_lg_u32 s22, 15")
    o("s_cbranch_scc1 DSKIP")
    o(f"ds_read_b64 v[74:75], v121 offset:{FLAGS+8}")
    o("v_lshlrev_b32 v76, 1, v125")
    o(f"s_lshr_b32 s3, s{sBK}, 2")
    o("s_lshl_b32 s3, s3, 12")
    o(f"s_add_u32 s3, s3, {DESC_OFF}")
    o(f"s_and_b32 s53, s{sBK}, 3")
    o("s_mul_i32 s54, s53, 12")
    o("s_cmp_eq_u32 s53, 3")
    o("s_cselect_b32 s54, 4, s54")
    o("v_mul_u32_u24 v73, 200, v76")
    for i in range(4):
        o(f"s_mov_b64 {sr(sMASK+2*i,2)}, 0")
    o(f"s_mov_b32 s52, {SPIN}")
    o("s_waitcnt lgkmcnt(0)")
    lab("DPOLL")
    for i in range(4):
        o(f"s_not_b64 exec, {sr(sMASK+2*i,2)}")
        o(f"s_cbranch_execz DP{i}")
        o(f"buffer_load_dwordx4 {vr(56+4*i,4)}, v76, {sr(sWS,4)}, s3 offen offset:{1024*i}{SC1}")
        lab(f"DP{i}")
    o("s_mov_b64 exec, -1")
    o("s_waitcnt vmcnt(0)")
    for i in range(4):
        o(f"v_cmp_eq_u64 {sr(sMASK+2*i,2)}, v[74:75], {vr(58+4*i,2)}")
    o(f"s_and_b64 {sr(sMASK+8,2)}, {sr(sMASK,2)}, {sr(sMASK+2,2)}")
    o(f"s_and_b64 {sr(sMASK+10,2)}, {sr(sMASK+4,2)}, {sr(sMASK+6,2)}")
    o(f"s_and_b64 {sr(sMASK+8,2)}, {sr(sMASK+8,2)}, {sr(sMASK+10,2)}")
    o(f"s_cmp_eq_u64 {sr(sMASK+8,2)}, -1")
    o("s_cbranch_scc1 DOK")
    o("s_sub_u32 s52, s52, 1")
    o("s_cmp_eq_u32 s52, 0")
    o("s_cbranch_scc1 DOK")
    o(f"s_sleep {SLEEP}")
    o("s_branch DPOLL")
    lab("DOK")
    o("v_or3_b32 v77, v57, v61, v65")
    o("v_or_b32 v77, v77, v69")
    o("v_cmp_gt_i32 vcc, 0, v77")
    o("s_cmp_eq_u64 vcc, 0")
    o("s_cbranch_scc1 DNF")
    o("v_mov_b32 v77, 1")
    o(f"ds_write_b32 v121, v77 offset:{FLAGS}")
    lab("DNF")
    o("s_cmp_lg_u32 s53, 3")
    o("s_cbranch_scc1 DK3")
    for i in range(4):
        o(f"v_mov_b32 v{56+4*i}, v{57+4*i}")
    lab("DK3")
    o("v_lshrrev_b32 v76, 2, v76")
    for i in range(4):
        o(f"v_alignbit_b32 v{56+4*i}, v{57+4*i}, v{56+4*i}, s54")
        o(f"v_bfe_u32 v{57+4*i}, v{56+4*i}, 12, 12")
        o(f"v_and_b32 v{56+4*i}, 0xfff, v{56+4*i}")
        o(f"v_sub_u32 v{57+4*i}, v{57+4*i}, v{56+4*i}")
        o(f"v_add_u32 v{56+4*i}, v{56+4*i}, v73")
        if i: o(f"v_add_u32 v{56+4*i}, {204800*i}, v{56+4*i}")
        o(f"v_lshl_or_b32 v{56+4*i}, v{57+4*i}, 20, v{56+4*i}")
        o(f"ds_write_b32 v76, v{56+4*i} offset:{DLDS + 256*i}")
    lab("DSKIP")
    o("s_waitcnt lgkmcnt(0)")
    o("s_barrier")
    stamp(4)
    cstamp("a", 2)
    o(f"ds_read2st64_b32 {vr(DESC,2)}, v72 offset0:{DLDS//256} offset1:{DLDS//256+1}")
    o(f"ds_read2st64_b32 {vr(DESC+2,2)}, v72 offset0:{DLDS//256+2} offset1:{DLDS//256+3}")
    o("s_waitcnt lgkmcnt(0)")
    lab("K2_ROUND")
    o(f"s_add_u32 s90, s{sRND}, s{sSTEP}")
    o("s_mov_b32 s3, 0xfffff")
    o(f"s_mov_b32 s52, {RECB_OFF}")
    for i in range(4):
        o(f"v_lshrrev_b32 v{80+i}, 20, v{DESC+i}")
        o(f"v_and_b32 v84, s3, v{DESC+i}")
        o(f"v_cmp_lt_u32 {sr(sMASK+4*i,2)}, v7, v{80+i}")
        o(f"v_cmp_lt_u32 {sr(sMASK+4*i+2,2)}, v6, v{80+i}")
        o(f"v_add_u32 v84, v84, v7")
        o(f"v_lshlrev_b32 v85, 2, v84")
        o(f"s_mov_b64 exec, {sr(sMASK+4*i,2)}")
        o(f"buffer_load_ubyte v{56+4*i}, v84, {sr(sWS,4)}, s52 offen{SC1}")
        o(f"buffer_load_dword v{57+4*i}, v85, {sr(sWS,4)}, s{sREC} offen{SC1}")
        o(f"s_mov_b64 exec, {sr(sMASK+4*i+2,2)}")
        o(f"s_cbranch_execz K2_T2_{i}")
        o(f"buffer_load_ubyte v{58+4*i}, v84, {sr(sWS,4)}, s52 offen offset:16{SC1}")
        o(f"buffer_load_dword v{59+4*i}, v85, {sr(sWS,4)}, s{sREC} offen offset:64{SC1}")
        lab(f"K2_T2_{i}")
        o("s_mov_b64 exec, -1")
    o("v_max3_u32 v80, v80, v81, v82")
    o("v_max_u32 v80, v80, v83")
    o("v_cmp_lt_u32 s[54:55], s90, v80")
    o("v_mov_b32 v7, 1")
    o("v_mov_b32 v6, 0")
    o("s_cmp_eq_u64 s[54:55], 0")
    o("s_cbranch_scc1 K2_F2")
    o(f"ds_write_b32 v6, v7 offset:{FLAGS+4}")
    lab("K2_F2")
    o("v_and_b32 v5, 63, v0")
    o("v_lshlrev_b32 v5, 3, v5")
    o(f"s_movk_i32 s3, {SLOT}")
    o("s_waitcnt vmcnt(0)")
    stamp(5)
    if PREF:
        o(f"s_cmp_lg_u32 s{sRND}, 0")
        o("s_cbranch_scc1 NOPF")
        o("s_cmp_gt_u32 s22, 12")
        o("s_cbranch_scc1 NOPF")
        o("s_lshr_b32 s52, s2, 3")
        o("s_mul_i32 s52, s52, 102400")
        o("v_lshlrev_b32 v44, 7, v0")
        o(f"buffer_load_dword v127, v44, {sr(sP,4)}, s52 offen{SC1}")
        lab("NOPF")
    for i in range(8):
        o(f"v_lshlrev_b32 v{100+i}, 2, v{56+2*i}")
    for i in range(8):
        masked(i, "K2_RK", f"ds_add_rtn_u32 v{80+i}, v{100+i}, v7 offset:{CNT}")
    o("s_mov_b64 exec, -1")
    for i in range(8):
        o(f"v_lshlrev_b32_sdwa v108, 7, v{57+2*i} dst_sel:DWORD dst_unused:UNUSED_PAD src0_sel:DWORD src1_sel:WORD_0")
        o(f"v_and_b32 v{57+2*i}, 0xffff0000, v{57+2*i}")
        o(f"v_lshl_or_b32 v{56+2*i}, v{56+2*i}, 24, v108")
    o("s_waitcnt lgkmcnt(0)")
    o("s_barrier")
    stamp(6)
    o(f"ds_read_b64 v[88:89], v5 offset:{CNT}")
    o(f"ds_read_b64 v[90:91], v6 offset:{FLAGS}")
    o("s_waitcnt lgkmcnt(1)")
    o("v_add_u32 v92, 3, v88")
    o("v_add_u32 v93, 3, v89")
    o("v_lshrrev_b32 v92, 2, v92")
    o("v_lshrrev_b32 v93, 2, v93")
    o("v_add_u32 v94, v92, v93")
    o("v_mov_b32 v95, v94")
    wave_scan(95)
    o("v_sub_u32 v96, v95, v94")
    o("v_add_u32 v97, v96, v92")
    o("v_lshl_add_u32 v98, v96, 5, s3")
    o("v_lshl_add_u32 v99, v97, 5, s3")
    o(f"ds_write_b64 v5, v[98:99] offset:{OFFS}")
    o(f"v_readlane_b32 s{sQN}, v95, 63")
    o("s_waitcnt lgkmcnt(0)")
    for i in range(8):
        masked(i, "K2_OF", f"ds_read_b32 v{100+i}, v{100+i} offset:{OFFS}")
    o("s_mov_b64 exec, -1")
    o(f"s_cmp_gt_u32 s{sQN}, {NSLOT//4 - 12}")
    o("s_cbranch_scc1 K2_NARROW")
    o(f"v_readfirstlane_b32 s{sSLOW}, v90")
    o(f"v_readfirstlane_b32 s{sMORE}, v91")
    o(f"s_add_u32 s{sS}, s{sQN}, 7")
    o(f"s_lshr_b32 s{sS}, s{sS}, 3")
    o(f"s_lshr_b32 s{sBASE}, s{sS}, 4")
    o(f"s_and_b32 s{sREM}, s{sS}, 15")
    o(f"s_cmp_lt_u32 s22, s{sREM}")
    o(f"s_cselect_b32 s{sRW}, 1, 0")
    o(f"s_add_u32 s{sRW}, s{sRW}, s{sBASE}")
    o(f"s_mul_i32 s3, s{sBASE}, s22")
    o(f"s_min_u32 s90, s22, s{sREM}")
    o("s_add_u32 s3, s3, s90")
    o("s_lshl_b32 s3, s3, 8")
    o(f"s_add_u32 s3, s3, {SLOT}")
    o(f"s_lshl_b32 s90, s{sRW}, 5")
    o("v_bfe_u32 v7, v0, 3, 3")
    o(f"v_mov_b32 v{vSLOT}, s3")
    o(f"v_mad_u32_u24 v{vSLOT}, v7, s90, v{vSLOT}")
    o("s_waitcnt lgkmcnt(0)")
    for i in range(8):
        o(f"v_lshl_add_u32 v{100+i}, v{80+i}, 3, v{100+i}")
    for i in range(8):
        masked(i, "K2_SC", f"ds_write_b64 v{100+i}, {vr(56+2*i,2)}")
    o("s_mov_b64 exec, -1")
    o("s_waitcnt lgkmcnt(0)")
    o("s_barrier")
    stamp(7)
    cstamp("b", 1)

    o("s_cmp_lg_u32 s22, 15")
    o("s_cbranch_scc1 K2_NONI")
    o(f"s_add_u32 s3, s{sBASE}, 1")
    o("v_cvt_f32_u32 v44, s3")
    o(f"v_cvt_f32_u32 v45, s{sBASE}")
    o("v_rcp_f32 v44, v44")
    o("v_rcp_f32 v45, v45")
    o(f"s_mul_i32 s3, s3, s{sREM}")
    o("s_lshl_b32 s3, s3, 3")
    o("v_cvt_f32_u32 v46, s3")
    o(f"s_lshl_b32 s90, s{sREM}, 3")
    o("v_add_u32 v100, -1, v97")
    o("v_add_u32 v101, -1, v95")
    for q in (96, 97, 100, 101):
        o(f"v_cvt_f32_u32 v48, v{q}")
        o("v_add_f32 v48, 0.5, v48")
        o("v_sub_f32 v49, v48, v46")
        o("v_mul_f32 v48, v48, v44")
        o("v_mul_f32 v49, v49, v45")
        o("v_cvt_u32_f32 v48, v48")
        o("v_cvt_u32_f32 v49, v49")
        o(f"v_cmp_gt_u32 vcc, s3, v{q}")
        o("v_add_u32 v49, s90, v49")
        o("s_nop 0")
        o(f"v_cndmask_b32 v{q}, v49, v48, vcc")
    for (rf, rl, nq, cn) in ((96, 100, 92, 88), (97, 101, 93, 89)):
        o(f"v_sub_u32 v{rl}, v{rl}, v{rf}")
        o(f"v_add_u32 v{rl}, 1, v{rl}")
        o(f"v_cmp_lt_u32 vcc, 0, v{nq}")
        o(f"v_lshlrev_b32 v{nq}, 2, v{nq}")
        o(f"v_sub_u32 v{nq}, v{nq}, v{cn}")
        o(f"v_cndmask_b32 v{rl}, 0, v{rl}, vcc")
        o(f"v_and_b32 v{rf}, 0xff, v{rf}")
        o(f"v_lshl_or_b32 v{rf}, v{rl}, 8, v{rf}")
        o(f"v_lshl_or_b32 v{rf}, v{nq}, 16, v{rf}")
    o(f"ds_write_b64 v5, v[96:97] offset:{NINFO}")
    lab("K2_NONI")
    o(f"s_cmp_eq_u32 s{sRW}, 0")
    o("s_cbranch_scc1 K2_MAIN_DONE")
    o(f"s_cmp_lg_u32 s{sSLOW}, 0")
    o("s_cbranch_scc1 K2_MAIN_S")
    gen_main("F", False)
    gen_main("S", True)
    lab("K2_MAIN_DONE")
    o("s_waitcnt lgkmcnt(0)")
    stamp(8)
    cstamp("b", 2)
    o("s_cmp_ge_u32 s22, 14")
    o("s_cbranch_scc1 K2_IDLE")
    o("v_and_b32 v6, 15, v0")
    o(f"s_lshl_b32 s3, s{sTILE}, 4")
    o("v_add_u32 v6, s3, v6")
    o("v_and_b32 v5, 48, v0")
    o("v_lshlrev_b32 v7, 2, v6")
    o(f"s_lshl_b32 s3, s{sHALF}, 6")
    o("v_add_u32 v36, s3, v5")
    o(f"v_mad_u32_u24 v37, v6, s{sRS}, v36")
    o(f"v_add_u32 v37, {PART}, v37")
    o(f"s_movk_i32 s3, {AGG_STRIDE}")
    o("v_mad_u32_u24 v41, v6, s3, v36")
    o("v_mad_u32_u24 v42, v6, s3, v5")
    o("v_lshlrev_b32 v40, 4, v0")
    o("v_and_b32 v40, 0x70, v40")
    o("v_xor_b32 v40, v40, v5")
    o("v_lshl_add_u32 v40, v6, 7, v40")
    o(f"v_add_u32 v40, {XT}, v40")
    o("v_xor_b32 v44, 64, v40")
    o("v_and_b32 v43, 63, v0")
    o("v_lshlrev_b32 v43, 4, v43")
    o(f"s_lshl_b32 s3, s{sHALF}, 13")
    o(f"s_add_u32 s3, s3, {WUF}")
    o("v_add_u32 v43, s3, v43")
    o("ds_read_b128 v[88:91], v40")
    o("ds_read_b128 v[92:95], v44")
    for ks in range(4):
        for sub in range(2):
            o(f"ds_read_b128 {vr(56+16*sub+4*ks,4)}, v43 offset:{4096*sub + 1024*ks}")
    srd(sOUT, 16, size=N*128)
    o(f"s_mov_b32 s90, 0x{NLN2:08x}")
    o("s_mov_b32 s91, s90")
    bop = ["v[88:91]", "v[92:95]", "v[96:99]", "v[100:103]"]
    def mm(ks):
        for sub in range(2):
            dd = vr(48+4*sub, 4)
            o(f"v_mfma_f32_16x16x32_bf16 {dd}, {vr(56+16*sub+4*ks,4)}, {bop[ks]}, {'0' if ks == 0 else dd}")
    o("s_waitcnt lgkmcnt(0)")
    mm(0); mm(1)
    o("s_barrier")
    stamp(9)
    o(f"ds_read_b32 v38, v7 offset:{NINFO}")
    o(f"s_cmp_eq_u32 s{sRDONE}, 0")
    o("s_cbranch_scc1 K2_R0")
    o(f"v_add_u32 v39, {(QT-PART) & 0xffffffff}, v37")
    o("ds_read_b128 v[104:107], v39")
    o("ds_read_b128 v[108:111], v39 offset:128")
    o("s_waitcnt lgkmcnt(0)")
    silu_f(96, 104)
    o("v_lshrrev_b32 v39, 16, v38")
    o("v_cvt_f32_u32 v39, v39")
    o("v_cmp_lt_f32 vcc, 0, v39")
    o("s_and_saveexec_b64 s[80:81], vcc")
    for k in range(8):
        o(f"v_fma_f32 v{A+k}, -v39, v{96+k}, v{A+k}")
    o("s_mov_b64 exec, -1")
    o("v_and_b32 v39, 0xff, v38")
    o(f"v_mad_u32_u24 v37, v39, s{sRS}, v37")
    o("v_bfe_u32 v38, v38, 8, 8")
    o("s_branch K2_RED")
    lab("K2_R0")
    o("s_waitcnt lgkmcnt(0)")
    o("v_and_b32 v39, 0xff, v38")
    o(f"v_mad_u32_u24 v37, v39, s{sRS}, v37")
    for m in range(3):
        o(f"ds_read_b128 {vr(96+8*m,4)}, v37 offset:{RS*m}")
        o(f"ds_read_b128 {vr(100+8*m,4)}, v37 offset:{RS*m+128}")
    o("v_cvt_f32_ubyte2 v44, v38")
    o("v_bfe_u32 v38, v38, 8, 8")
    for p in range(4):
        pk("mul", A+2*p, vr(A+2*p,2), "v[44:45]", mods="op_sel_hi:[1,0] neg_lo:[0,1] neg_hi:[0,1]")
    o(f"s_cmp_eq_u32 s{sSLOW}, 0")
    o("s_cbranch_scc1 K2_RED2")
    o("v_cmp_eq_f32 vcc, 0, v44")
    o("s_and_b64 exec, exec, vcc")
    for p in range(4):
        o(f"v_mov_b64 {vr(A+2*p,2)}, 0")
    o("s_mov_b64 exec, -1")
    o("s_branch K2_RED2")
    lab("K2_RED")
    for m in range(3):
        o(f"ds_read_b128 {vr(96+8*m,4)}, v37 offset:{RS*m}")
        o(f"ds_read_b128 {vr(100+8*m,4)}, v37 offset:{RS*m+128}")
    lab("K2_RED2")
    o(f"v_add_u32 v37, {3*RS}, v37")
    for m in range(3):
        o(f"v_cmp_lt_i32 vcc, {m}, v38")
        o("s_and_b64 exec, exec, vcc")
        o(f"s_waitcnt lgkmcnt({4-2*m})")
        for p in range(4):
            pk("add", A+2*p, vr(A+2*p,2), vr(96+8*m+2*p,2))
    o("v_cmp_lt_i32 vcc, 3, v38")
    o("v_subrev_u32 v38, 3, v38")
    o("s_and_b64 exec, exec, vcc")
    o("s_cbranch_execnz K2_RED")
    o("s_mov_b64 exec, -1")
    o(f"s_cmp_eq_u32 s{sMORE}, 0")
    o("s_cbranch_scc1 K2_FINAL")
    lab("K2_NEXT")
    o(f"s_add_u32 s{sRND}, s{sRND}, s{sSTEP}")
    o(f"s_add_u32 s{sRDONE}, s{sRDONE}, 1")
    lab("K2_REDO")
    o("s_waitcnt lgkmcnt(0)")
    o("s_barrier")
    prefill()
    o("v_and_b32 v7, 15, v0")
    o(f"v_add_u32 v7, s{sRND}, v7")
    o("v_add_u32 v6, 16, v7")
    o(f"s_cmp_eq_u32 s{sSTEP}, 32")
    o("s_cbranch_scc1 K2_WIDE")
    o("v_mov_b32 v6, 0x100000")
    lab("K2_WIDE")
    o("s_waitcnt lgkmcnt(0)")
    o("s_barrier")
    o("s_branch K2_ROUND")
    lab("K2_NARROW")
    o(f"s_mov_b32 s{sSTEP}, 16")
    o("s_branch K2_REDO")
    lab("K2_IDLE")
    o("s_barrier")
    o(f"s_cmp_eq_u32 s{sMORE}, 0")
    o("s_cbranch_scc0 K2_NEXT")
    o("s_branch K2_END")
    lab("K2_FINAL")
    for p in range(4):
        pk("mul", A+2*p, vr(A+2*p,2), "s[90:91]")
    for k in range(4):
        o(f"v_cvt_pk_bf16_f32 v{96+k}, v{A+4+k}, v{A+k}")
    o(f"ds_write_b128 v41, v[96:99] offset:{AGG}")
    o("s_mul_i32 s3, s22, 1280")
    o("v_and_b32 v36, 15, v0")
    o("v_mul_u32_u24 v36, 80, v36")
    o("v_add3_u32 v36, v36, v5, s3")
    o("v_bfe_u32 v37, v0, 2, 4")
    o("v_and_b32 v38, 3, v0")
    o("v_lshlrev_b32 v38, 4, v38")
    o("v_mul_u32_u24 v39, 80, v37")
    o("v_add3_u32 v39, v39, v38, s3")
    o("v_lshl_add_u32 v4, v37, 7, v38")
    o(f"s_lshl_b32 s3, s{sHALF}, 6")
    o(f"s_add_u32 s3, s3, s{sROWB}")
    o("v_add_u32 v4, s3, v4")
    o(f"s_lshl_b32 s3, s{sTILE}, 4")
    o("s_sub_u32 s3, 98, s3")
    o("v_cmp_gt_u32 vcc, s3, v37")
    o(f"s_mov_b32 s90, 0x{NLOG2E:08x}")
    o("s_mov_b32 s91, s90")
    o("s_waitcnt lgkmcnt(0)")
    o("s_barrier")
    stamp(10)
    o(f"ds_read_b128 v[96:99], v42 offset:{AGG}")
    o(f"ds_read_b128 v[100:103], v42 offset:{AGG+64}")
    o("s_waitcnt lgkmcnt(1)")
    mm(2)
    o("s_waitcnt lgkmcnt(0)")
    mm(3)
    o("s_nop 7")
    for p in range(4):
        pk("mul", 112+2*p, vr(48+2*p,2), "s[90:91]")
    for k in range(8):
        o(f"v_exp_f32 v{112+k}, v{112+k}")
    o("s_nop 0")
    for p in range(4):
        pk("add", 112+2*p, vr(112+2*p,2), "1.0", mods="op_sel_hi:[1,0]")
    for k in range(8):
        o(f"v_rcp_f32 v{112+k}, v{112+k}")
    o("s_nop 0")
    for p in range(4):
        pk("mul", 112+2*p, vr(112+2*p,2), vr(48+2*p,2))
    for k in range(4):
        o(f"v_cvt_pk_bf16_f32 v{120+k}, v{112+2*k}, v{113+2*k}")
    o(f"ds_write_b128 v36, v[120:123] offset:{OTR}")
    o("s_waitcnt lgkmcnt(0)")
    o(f"ds_read_b128 v[120:123], v39 offset:{OTR}")
    o("s_and_b64 exec, exec, vcc")
    o("s_cbranch_execz K2_END")
    o("s_waitcnt lgkmcnt(0)")
    o(f"buffer_store_dwordx4 v[120:123], v4, {sr(sOUT,4)}, 0 offen")
    lab("K2_END")
    if STAMP: o("s_waitcnt vmcnt(0)")
    stamp(11)
    stamp_flush(12)
    lab("K2_EXIT")
    o("s_endpgm")

def main(path):
    hdr = open("gather_scatter__mpnn_edge_mlp__graph.s.ref").read().split("\n")
    head = [h for h in hdr if h.startswith(";") and "@launch" not in h]
    L.extend(head)
    L.append(f"; @launch grid=({NBK},1,1) block=(1024,1,1) lds={LDS}")
    L.append('.amdgcn_target "amdgcn-amd-amdhsa--gfx950"')
    L.append(".text")
    gen()
    L.append('.section .rodata,"a"')
    L.append(".p2align 6")
    L.append(f".amdhsa_kernel {KN}")
    L.append("  .amdhsa_next_free_vgpr 128")
    L.append(f"  .amdhsa_next_free_sgpr {102 if STAMP else 100}")
    L.append("  .amdhsa_accum_offset 128")
    L.append("  .amdhsa_group_segment_fixed_size 0")
    L.append("  .amdhsa_kernarg_size 72")
    L.append("  .amdhsa_user_sgpr_count 2")
    L.append("  .amdhsa_user_sgpr_kernarg_segment_ptr 1")
    L.append("  .amdhsa_system_sgpr_workgroup_id_x 1")
    L.append("  .amdhsa_float_denorm_mode_32 3")
    L.append(".end_amdhsa_kernel")
    open(path, "w").write("\n".join(x for x in L if x is not None) + "\n")
    print(f"{KN}:{NBK}:1024:{LDS}")

if __name__ == "__main__":
    main(sys.argv[1] if len(sys.argv) > 1 else "v7.s")
```

```python
import sys, os

KN = "gather_scatter__mpnn_edge_mlp__graph_kernel"
N = 25000; E = 800000; NB = 98; NBK = 256; CH = 3200; NCH = 250
P_SIZE = N * 128
REC_OFF = 0x320000
RECB_OFF = 0x640000
DESC_OFF = 0x940000
WS_SIZE = 0x980000
NTILE = 782
NONOFF = 248
SPIN = 0x10000
NLOG2E = 0xbfb8aa3b
NLN2 = 0xbf317218
TEN = 0x41200000
DUMMY = 0x00FFFF80 | (98 << 24)
OOB = 0x7fffff00

CNT = 0
OFFS = 512
FLAGS = 1152
NINFO = 1280
SLOT = 1792
NSLOT = 4608
PART = SLOT + NSLOT * 8
RS = 272
QT = PART + 226 * RS
XT = (QT + 112 * RS + 127) & ~127
WUF = XT + 112 * 128
LDS = WUF + 16384
AGG = SLOT; AGG_STRIDE = 144
OTR = SLOT + 16384
C1 = PART; O1 = PART + 1024; R1 = PART + 2048; EF1 = PART + 27648
PTA = PART + 28672; PTB = PART
SYNC = FLAGS + 16
RAWU = SLOT; RAW2 = SLOT + 16384
W2F = PART
DLDS = PART + 8192 + 256
assert DLDS % 256 == 0 and DLDS // 256 + 3 < 256
assert PART % 128 == 0

STAMP = int(os.environ.get("STAMP", "0"))
ARR = os.environ.get("ARR", "atomic")
NSH = int(os.environ.get("NSH", "64"))
SHSTR = int(os.environ.get("SHSTR", "4"))
SLEEP = int(os.environ.get("SLEEP", "2"))
PFIRST = int(os.environ.get("PFIRST", "0"))
NODOT = int(os.environ.get("NODOT", "0"))
PREF = int(os.environ.get("PREF", "0"))
PRIO = int(os.environ.get("PRIO", "1"))
DBG_OFF = 0x1000000
STAMP_SG = [95, 98, 99, 100, 101, 36, 37, 38, 39, 40, 41, 42]

L = []
def o(s): L.append("    " + s)
def lab(s): L.append(s + ":")
def vr(a, n): return f"v[{a}:{a+n-1}]"
def sr(a, n): return f"s[{a}:{a+n-1}]"

def stamp(idx):
    if not STAMP: return
    o("s_memrealtime s[96:97]")
    o("s_waitcnt lgkmcnt(0)")
    o(f"s_mov_b32 s{STAMP_SG[idx]}, s96")
CYC = os.environ.get("CYC", "")
def cstamp(where, idx):
    if not STAMP or where not in CYC.split(","): return
    o("s_memtime s[96:97]")
    o("s_waitcnt lgkmcnt(0)")
    o(f"s_mov_b32 s{STAMP_SG[idx]}, s96")
def stamp_flush(n):
    if not STAMP: return
    o("s_mov_b64 exec, -1")
    o("s_lshl_b32 s96, s2, 4")
    o("s_add_u32 s96, s96, s22")
    o("s_lshl_b32 s96, s96, 6")
    o(f"s_add_u32 s96, s96, {DBG_OFF + 0x100000}")
    o("s_add_u32 s96, s20, s96")
    o("s_addc_u32 s97, s21, 0")
    o("v_mov_b32 v1, 0")
    for i in range(n):
        o(f"v_mov_b32 v2, s{STAMP_SG[i]}")
        o(f"global_store_dword v1, v2, s[96:97] offset:{4*i}")

def srd(d, base_lo, off=None, size=None, off_s=None):
    if off is None and off_s is None:
        o(f"s_mov_b64 {sr(d,2)}, {sr(base_lo,2)}")
    else:
        first = True
        for x in (off, off_s):
            if x is None: continue
            src_lo = f"s{base_lo}" if first else f"s{d}"
            src_hi = f"s{base_lo+1}" if first else f"s{d+1}"
            o(f"s_add_u32 s{d}, {src_lo}, {x}")
            o(f"s_addc_u32 s{d+1}, {src_hi}, 0")
            first = False
    o(f"s_mov_b32 s{d+2}, {size}")
    o(f"s_mov_b32 s{d+3}, 0x20000")

def wave_scan(v, op="add_u32"):
    for sh in (1, 2, 4, 8):
        o("s_nop 1")
        o(f"v_{op}_dpp v{v}, v{v}, v{v} row_shr:{sh} row_mask:0xf bank_mask:0xf bound_ctrl:0")
    o("s_nop 1")
    o(f"v_{op}_dpp v{v}, v{v}, v{v} row_bcast:15 row_mask:0xa bank_mask:0xf")
    o("s_nop 1")
    o(f"v_{op}_dpp v{v}, v{v}, v{v} row_bcast:31 row_mask:0xc bank_mask:0xf")

def lds_sync(tag, idx, n, vz, v1, vt):
    o("s_waitcnt lgkmcnt(0)")
    o("s_mov_b64 exec, 1")
    o(f"ds_add_u32 v{vz}, v{v1} offset:{SYNC if idx is None else SYNC}+{idx}" if False else f"ds_add_u32 v{vz}, v{v1} offset:{SYNC}" if idx is None else f"ds_add_u32 v{vz}, v{v1} offset:{SYNC + 4*idx}")
    lab(f"LS_{tag}")
    o(f"ds_read_b32 v{vt}, v{vz} offset:{SYNC if idx is None else SYNC + 4*idx}")
    o("s_waitcnt lgkmcnt(0)")
    o(f"v_readfirstlane_b32 s53, v{vt}")
    o(f"s_cmp_ge_u32 s53, {n}")
    o(f"s_cbranch_scc1 LSX_{tag}")
    o("s_sleep 1")
    o(f"s_branch LS_{tag}")
    lab(f"LSX_{tag}")
    o("s_mov_b64 exec, -1")

def pk(op, d, *src, mods=""):
    o(f"v_pk_{op}_f32 {vr(d,2)}, " + ", ".join(src) + (" " + mods if mods else ""))

vJ16, vQC, vOC, vSLOT, vQA, vQAN, vT0 = 1, 2, 3, 4, 5, 6, 7
W, ACC, A, DESC, GA, RA, RB, PA, PB, Q, NN, D, T, EE = 8, 16, 24, 32, 36, 40, 48, 56, 72, 88, 96, 104, 112, 120
sX, sP, sWS, sWM, sWU, sOUT = 24, 28, 32, 36, 40, 44
sMASK = 56
sQN, sS, sBASE, sREM, sRW, sCNT, sK, sM24 = 72, 73, 74, 75, 76, 77, 78, 79
sVIO = 82
sSLOW, sMORE, sRND = 84, 85, 23
sTILE, sHALF, sROWB, sBK = 86, 87, 88, 89
sSTEP, sRDONE, sRS, sREC = 48, 49, 50, 93
SC1 = " sc1"
SST = os.environ.get("SST", " sc1")
GSC = os.environ.get("GSC", " sc1")

def gathers(R, P):
    for i in range(4):
        o(f"v_and_or_b32 v{GA+i}, v{R+2*i}, s{sM24}, v{vJ16}")
        o(f"buffer_load_dwordx4 {vr(P+4*i,4)}, v{GA+i}, {sr(sP,4)}, 0 offen{GSC}")

def compute_quad(R, RN, P, slow, QA, QN, so):
    for i in range(4):
        TT = NN if (i == 0 and not slow) else T
        for p in range(4):
            pk("fma", TT+2*p, vr(R+2*i,2), vr(W+2*p,2), vr(Q+2*p,2), mods="op_sel:[1,0,0] op_sel_hi:[1,1,1]")
        if i == 3:
            o(f"v_add_u32 v{vT0}, v{QA}, v{vOC}")
            o(f"v_lshrrev_b32 v{QN}, 24, v{RN}")
            o(f"v_mad_u32_u24 v{QN}, v{QN}, s{sRS}, v{vQC}")
            o(f"ds_read_b128 {vr(Q,4)}, v{QN}")
            o(f"ds_read_b128 {vr(Q+4,4)}, v{QN} offset:128")
            o(f"ds_read_b128 {vr(R,4)}, v{vSLOT} offset:{so}")
            o(f"ds_read_b128 {vr(R+4,4)}, v{vSLOT} offset:{so+16}")
            if so == 96: o(f"v_add_u32 v{vSLOT}, 64, v{vSLOT}")
        if NODOT:
            for k in range(4):
                o(f"v_lshlrev_b32 v{EE+k}, 16, v{P+4*i+k}")
            pk("add", TT, vr(P+4*i,2), vr(TT,2))
            pk("add", TT+2, vr(P+4*i+2,2), vr(TT+2,2))
            pk("add", TT+4, vr(EE,2), vr(TT+4,2))
            pk("add", TT+6, vr(EE+2,2), vr(TT+6,2))
        else:
            for k in range(4):
                o(f"v_dot2_f32_bf16 v{TT+4+k}, v{P+4*i+k}, s{sK}, v{TT+4+k}")
            pk("add", TT, vr(P+4*i,2), vr(TT,2))
            pk("add", TT+2, vr(P+4*i+2,2), vr(TT+2,2))
        for k in range(8):
            o(f"v_exp_f32 v{EE+k}, v{TT+k}")
        if slow:
            for p in range(4):
                pk("add", EE+2*p, vr(EE+2*p,2), "1.0", mods="op_sel_hi:[1,0]")
            for k in range(8):
                o(f"v_rcp_f32 v{EE+k}, v{EE+k}")
            o("s_nop 0")
            for p in range(4):
                pk("fma", ACC+2*p, vr(T+2*p,2), vr(EE+2*p,2), vr(ACC+2*p,2))
        elif i == 0:
            for p in range(4):
                pk("add", D+2*p, vr(EE+2*p,2), "1.0", mods="op_sel_hi:[1,0]")
        else:
            for p in range(4):
                pk("fma", NN+2*p, vr(NN+2*p,2), vr(EE+2*p,2), vr(NN+2*p,2))
            for p in range(4):
                pk("fma", NN+2*p, vr(T+2*p,2), vr(D+2*p,2), vr(NN+2*p,2))
            for p in range(4):
                pk("fma", D+2*p, vr(D+2*p,2), vr(EE+2*p,2), vr(D+2*p,2))
    if not slow:
        for k in range(8):
            o(f"v_rcp_f32 v{EE+k}, v{D+k}")
        o("s_nop 0")
        for p in range(4):
            pk("fma", ACC+2*p, vr(NN+2*p,2), vr(EE+2*p,2), vr(ACC+2*p,2))
    o(f"ds_write_b128 v{vT0}, {vr(ACC,4)}")
    o(f"ds_write_b128 v{vT0}, {vr(ACC+4,4)} offset:128")

def gen_main(tag, slow):
    lab(f"K2_MAIN_{tag}")
    o(f"ds_read_b128 {vr(RA,4)}, v{vSLOT}")
    o(f"ds_read_b128 {vr(RA+4,4)}, v{vSLOT} offset:16")
    o(f"ds_read_b128 {vr(RB,4)}, v{vSLOT} offset:32")
    o(f"ds_read_b128 {vr(RB+4,4)}, v{vSLOT} offset:48")
    for p in range(4):
        o(f"v_mov_b64 {vr(ACC+2*p,2)}, 0")
    o(f"s_sub_u32 s{sCNT}, s{sRW}, 1")
    if PRIO: o("s_setprio 3")
    o("s_waitcnt lgkmcnt(2)")
    gathers(RA, PA)
    o(f"v_lshrrev_b32 v{vQA}, 24, v{RA}")
    o(f"v_mad_u32_u24 v{vQA}, v{vQA}, s{sRS}, v{vQC}")
    o(f"ds_read_b128 {vr(Q,4)}, v{vQA}")
    o(f"ds_read_b128 {vr(Q+4,4)}, v{vQA} offset:128")
    o("s_waitcnt lgkmcnt(0)")
    for (x, R, RN, P, PN, QA, QN, so) in (("A", RA, RB, PA, PB, vQA, vQAN, 64), ("B", RB, RA, PB, PA, vQAN, vQA, 96)):
        t = tag + x
        lab(f"K2_LOOP_{t}")
        o(f"s_cmp_eq_u32 s{sCNT}, 0")
        o(f"s_cbranch_scc1 K2_LAST_{t}")
        if PRIO:
            o(f"s_cmp_gt_u32 s{sCNT}, 2")
            o(f"s_cbranch_scc1 K2_PR_{t}")
            o("s_setprio 2")
            o(f"s_cmp_eq_u32 s{sCNT}, 2")
            o(f"s_cbranch_scc1 K2_PR_{t}")
            o("s_setprio 1")
            lab(f"K2_PR_{t}")
        o("s_waitcnt lgkmcnt(2)")
        gathers(RN, PN)
        o("s_waitcnt vmcnt(4)")
        o(f"s_branch K2_GO_{t}")
        lab(f"K2_LAST_{t}")
        if PRIO: o("s_setprio 0")
        o("s_waitcnt vmcnt(0) lgkmcnt(2)")
        lab(f"K2_GO_{t}")
        compute_quad(R, RN, P, slow, QA, QN, so)
        o(f"s_cmp_eq_u32 s{sCNT}, 0")
        o("s_cbranch_scc1 K2_MAIN_DONE")
        o(f"s_sub_u32 s{sCNT}, s{sCNT}, 1")
        o(f"v_cmp_ne_u32 vcc, v{vQAN}, v{vQA}")
        o("s_and_saveexec_b64 s[80:81], vcc")
        o(f"s_cbranch_execz K2_KEEP_{t}")
        for p in range(4):
            o(f"v_mov_b64 {vr(ACC+2*p,2)}, 0")
        lab(f"K2_KEEP_{t}")
        o("s_mov_b64 exec, -1")
        if x == "B":
            o(f"s_branch K2_LOOP_{tag}A")

def silu_f(dst, src):
    for k in range(8):
        o(f"v_exp_f32 v{dst+k}, v{src+k}")
    o("s_nop 0")
    for p in range(4):
        pk("add", dst+2*p, vr(dst+2*p,2), "1.0", mods="op_sel_hi:[1,0]")
    for k in range(8):
        o(f"v_rcp_f32 v{dst+k}, v{dst+k}")
    o("s_nop 0")
    for p in range(4):
        pk("mul", dst+2*p, vr(dst+2*p,2), vr(src+2*p,2))

def masked(i, tagp, instr):
    o(f"s_mov_b64 exec, {sr(sMASK+2*i,2)}")
    skip = (i % 2 == 1)
    if skip: o(f"s_cbranch_execz {tagp}{i}")
    o(instr)
    if skip: lab(f"{tagp}{i}")

def prefill():
    n = prefill.n
    o(f"v_mov_b32 v120, 0x{DUMMY:08x}")
    o("v_mov_b32 v121, 0")
    o("v_mov_b32 v122, v120")
    o("v_mov_b32 v123, 0")
    o("v_lshlrev_b32 v124, 4, v0")
    for m in range(2):
        o(f"ds_write_b128 v124, v[120:123] offset:{SLOT + m*16384}")
    o("s_cmp_gt_u32 s22, 3")
    o(f"s_cbranch_scc1 K2_PF1_{n}")
    o(f"ds_write_b128 v124, v[120:123] offset:{SLOT + 32768}")
    lab(f"K2_PF1_{n}")
    o("s_cmp_lg_u32 s22, 15")
    o(f"s_cbranch_scc1 K2_PF2_{n}")
    o("v_and_b32 v125, 63, v0")
    o("v_lshlrev_b32 v125, 3, v125")
    o("v_mov_b32 v120, 0")
    o(f"ds_write_b64 v125, v[120:121] offset:{CNT}")
    o(f"ds_write_b32 v121, v120 offset:{FLAGS+4}")
    lab(f"K2_PF2_{n}")
    prefill.n += 1
prefill.n = 0

def bulk_dma():
    srd(sWU, 14, size=128*128)
    o("v_lshlrev_b32 v124, 4, v0")
    o("s_lshl_b32 s52, s22, 10")
    o(f"s_add_u32 s53, s52, {RAWU}")
    o("s_mov_b32 m0, s53")
    o("v_add_u32 v125, 0x2000, v124")
    o(f"buffer_load_dwordx4 v124, {sr(sWU,4)}, 0 offen lds")
    o(f"s_add_u32 s53, s52, {RAW2}")
    o("s_mov_b32 m0, s53")
    o("v_lshlrev_b32 v126, 1, v0")
    o("v_and_b32 v126, 0x70, v126")
    o(f"buffer_load_dwordx4 v125, {sr(sWM,4)}, 0 offen lds")
    o("v_xor_b32 v126, v126, v124")
    o(f"s_mul_i32 s90, s{sBK}, 12544")
    o("v_add_u32 v126, s90, v126")
    o("s_and_b32 s53, s22, 14")
    o("s_cmp_lg_u32 s53, 12")
    o(f"s_cbranch_scc1 BD_{bulk_dma.n}")
    o(f"s_add_u32 s53, s52, {XT}")
    o("s_mov_b32 m0, s53")
    o("s_nop 0")
    o(f"buffer_load_dwordx4 v126, {sr(sX,4)}, 0 offen lds")
    lab(f"BD_{bulk_dma.n}")
    bulk_dma.n += 1
bulk_dma.n = 0

def gen():
    L.append(f".globl {KN}")
    L.append(".p2align 8")
    L.append(f".type {KN},@function")
    lab(KN)
    o(f"s_cmp_ge_u32 s2, {NBK}")
    o("s_cbranch_scc1 K2_EXIT")
    o("s_load_dwordx16 s[4:19], s[0:1], 0")
    o("s_load_dwordx2 s[20:21], s[0:1], 64")
    o("v_lshrrev_b32 v1, 6, v0")
    o("s_and_b32 s3, s2, 7")
    o("v_readfirstlane_b32 s22, v1")
    o("s_lshl_b32 s3, s3, 5")
    o(f"s_lshr_b32 s{sBK}, s2, 3")
    o(f"s_or_b32 s{sBK}, s{sBK}, s3")
    o(f"s_mov_b64 {sr(sVIO,2)}, 0")
    o("s_mov_b32 s3, -1")
    o("s_sub_u32 s23, s22, 13")
    o(f"s_mov_b32 s46, {PTA}")
    o("s_mov_b32 s47, 8")
    o("s_cmp_ge_u32 s22, 13")
    o("s_cbranch_scc1 P_ROLE")
    o(f"s_cmp_lt_u32 s2, {NCH}")
    o("s_cbranch_scc1 SORT_ROLE")
    o("s_mul_i32 s3, s2, 3")
    o("s_add_u32 s3, s3, s22")
    o("s_sub_u32 s3, s3, 750")
    o("s_mov_b32 s23, s22")
    o(f"s_mov_b32 s46, {PTB}")
    o("s_mov_b32 s47, 12")
    o("s_cmp_lt_u32 s22, 3")
    o("s_cbranch_scc1 P_ROLE")
    o("s_waitcnt lgkmcnt(0)")
    stamp(0)
    srd(sX, 4, size=N*128)
    srd(sWM, 12, size=129*128)
    o("s_barrier")
    stamp(1)
    o("v_mov_b32 v61, 0")
    o("v_mov_b32 v62, 0")
    o("v_mov_b64 v[20:21], 0")
    o("s_cmp_lg_u32 s22, 11")
    o("s_cbranch_scc1 NONCE1I")
    o(f"s_mov_b32 s52, {SPIN}")
    o("v_mov_b32 v12, 0")
    lab("NONCEI")
    o("s_waitcnt vmcnt(0)")
    o("v_readfirstlane_b32 s53, v62")
    o("s_sub_u32 s52, s52, 1")
    o("s_cmp_eq_u32 s52, 0")
    o("s_cbranch_scc1 NONCE2I")
    o("s_cmp_lg_u32 s53, 0")
    o("s_cbranch_scc1 NONCE2I")
    o("s_sleep 8")
    o(f"global_load_dwordx2 v[62:63], v12, s[18:19] offset:{NONOFF} sc1")
    o("s_branch NONCEI")
    lab("NONCE2I")
    o(f"ds_write_b64 v12, v[62:63] offset:{FLAGS+8}")
    lab("NONCE1I")
    stamp(2)
    bulk_dma()
    o("s_branch PH1_DONE")

    lab("SORT_ROLE")
    o("s_movk_i32 s3, 800")
    o("v_cmp_gt_u32 s[44:45], s3, v0")
    o("v_lshlrev_b32 v1, 4, v0")
    o("v_lshlrev_b32 v2, 3, v0")
    o("v_and_b32 v7, 63, v0")
    o("v_lshlrev_b32 v6, 4, v7")
    o("v_lshlrev_b32 v7, 1, v7")
    o("v_add_u32 v7, 0x4000, v7")
    o("s_mul_i32 s3, s2, 12800")
    o("s_mul_i32 s23, s2, 6400")
    o("s_waitcnt lgkmcnt(0)")
    stamp(0)
    def sort_loads():
        o("buffer_load_dwordx4 v[16:19], v1, s[56:59], 0 offen")
        o("buffer_load_dwordx4 v[8:11], v1, s[60:63], 0 offen")
        o("buffer_load_dwordx2 v[24:25], v2, s[64:67], 0 offen")
        o(f"buffer_load_ushort v7, v7, {sr(sWM,4)}, 0 offen")
    srd(56, 10, off_s="s3", size=12800)
    srd(60, 8, off_s="s3", size=12800)
    srd(64, 6, off_s="s23", size=6400)
    srd(sWM, 12, size=129*128)
    if not PFIRST: sort_loads()
    o("s_cmp_lg_u32 s22, 0")
    o("s_cbranch_scc1 S1")
    o("v_mov_b64 v[28:29], 0")
    o("v_mov_b64 v[30:31], 0")
    o(f"ds_write_b128 v6, v[28:31] offset:{C1}")
    o("s_waitcnt lgkmcnt(0)")
    lab("S1")
    o("s_barrier")
    if PFIRST: sort_loads()
    srd(68, 20, off=REC_OFF, off_s="s3", size=12800)
    o("s_mul_i32 s3, s2, 3200")
    srd(72, 20, off=RECB_OFF, off_s="s3", size=3200)
    srd(sX, 4, size=N*128)
    srd(sWS, 20, size=WS_SIZE)
    o("s_mov_b64 exec, s[44:45]")
    o("v_mov_b32 v5, 1")
    o("s_movk_i32 s46, 98")
    o("s_waitcnt vmcnt(3)")
    for i in range(4):
        d = 16 + i
        o(f"v_mul_u32_u24 v{32+i}, 0xa730, v{d}")
        o(f"v_lshrrev_b32 v{40+i}, 22, v{32+i}")
        o(f"v_lshlrev_b32 v{32+i}, 2, v{40+i}")
        o(f"v_mul_u32_u24 v28, s46, v{40+i}")
        o(f"ds_add_rtn_u32 v{40+i}, v{32+i}, v5 offset:{C1}")
        o(f"v_sub_u32 v{d}, v{d}, v28")
    o("s_mov_b64 exec, -1")
    o("v_mov_b32 v5, 1")
    o("v_mov_b32 v61, 0")
    o(f"s_mov_b32 s46, {R1}")
    lds_sync("A", 0, 13, 61, 5, 60)
    o(f"ds_read_b128 v[64:67], v6 offset:{C1}")
    o("s_cmp_lg_u32 s22, 11")
    o("s_cbranch_scc1 NI1")
    o(f"global_load_dwordx2 v[62:63], v61, s[18:19] offset:{NONOFF} sc1")
    lab("NI1")
    o("s_waitcnt lgkmcnt(0)")
    o("v_add_u32 v12, v64, v65")
    o("v_add_u32 v13, v12, v66")
    o("v_add_u32 v14, v13, v67")
    o("v_mov_b32 v68, v14")
    wave_scan(68)
    o("v_sub_u32 v68, v68, v14")
    o("v_add_u32 v69, v68, v64")
    o("v_add_u32 v70, v68, v12")
    o("v_add_u32 v71, v68, v13")
    for k in range(4):
        o(f"v_lshl_add_u32 v{20+k}, v{68+k}, 2, s46")
    o(f"ds_write_b128 v6, v[20:23] offset:{O1}")
    o("s_mov_b64 exec, s[44:45]")
    o("s_waitcnt lgkmcnt(0)")
    for i in range(4):
        o(f"ds_read_b32 v{32+i}, v{32+i} offset:{O1}")
    o("s_cmp_eq_u32 s22, 11")
    o("s_cbranch_scc1 NI2")
    o("s_waitcnt vmcnt(0)")
    lab("NI2")
    o("s_waitcnt vmcnt(1)")
    stamp(1)
    o("s_mov_b32 s3, 0xffff0000")
    for i in range(4):
        ew = 24 + i // 2
        if i % 2 == 0: o(f"v_lshl_or_b32 v{48+i}, v{ew}, 16, v{8+i}")
        else: o(f"v_and_or_b32 v{48+i}, v{ew}, s3, v{8+i}")
    o("s_waitcnt lgkmcnt(0)")
    for i in range(4):
        o(f"v_lshl_add_u32 v{32+i}, v{40+i}, 2, v{32+i}")
        o(f"ds_write_b32 v{32+i}, v{48+i}")
        o(f"v_lshrrev_b32 v{36+i}, 2, v{32+i}")
        o(f"ds_write_b8 v{36+i}, v{16+i} offset:{R1 + 12800 - R1//4}")
    o("v_max3_f32 v28, |v48|, |v49|, |v50|")
    o("v_max_f32 v28, |v51|, v28")
    o("s_mov_b64 exec, -1")
    o("s_cmp_lg_u32 s22, 11")
    o("s_cbranch_scc1 NI3")
    o("s_waitcnt vmcnt(0)")
    lab("NI3")
    bulk_dma()
    lds_sync("B", 1, 13, 61, 5, 60)
    stamp(2)
    o("v_mov_b32 v60, v28")
    o(f"ds_read_b128 v[24:27], v1 offset:{R1}")
    o("s_cmp_gt_u32 s22, 3")
    o("s_cbranch_scc1 CO1")
    o(f"ds_read_b128 v[28:31], v1 offset:{R1+12800}")
    o("s_waitcnt lgkmcnt(0)")
    o(f"buffer_store_dwordx4 v[28:31], v1, s[72:75], 0 offen{SST}")
    lab("CO1")
    o("s_waitcnt lgkmcnt(0)")
    o(f"buffer_store_dwordx4 v[24:27], v1, s[68:71], 0 offen{SST}")
    o("v_and_b32 v7, 0x7fff, v7")
    wave_scan(7, "max_u32")
    o("s_nop 1")
    o("v_readlane_b32 s47, v7, 63")
    o("s_lshl_b32 s47, s47, 16")
    o("s_mov_b64 exec, s[44:45]")
    o("v_mul_f32 v60, s47, v60")
    o(f"v_cmp_ngt_f32 vcc, 0x40dd7fb6, v60")
    o(f"s_mov_b64 {sr(sVIO,2)}, vcc")
    o("s_mov_b64 exec, -1")
    o("s_cmp_lg_u32 s22, 11")
    o("s_cbranch_scc1 NONCE1S")
    o(f"s_mov_b32 s52, {SPIN}")
    lab("NONCES")
    o("v_readfirstlane_b32 s53, v62")
    o("s_sub_u32 s52, s52, 1")
    o("s_cmp_eq_u32 s52, 0")
    o("s_cbranch_scc1 NONCE2S")
    o("s_cmp_lg_u32 s53, 0")
    o("s_cbranch_scc1 NONCE2S")
    o(f"global_load_dwordx2 v[62:63], v61, s[18:19] offset:{NONOFF} sc1")
    o("s_waitcnt vmcnt(0)")
    o("s_branch NONCES")
    lab("NONCE2S")
    o(f"ds_write_b64 v61, v[62:63] offset:{FLAGS+8}")
    lab("NONCE1S")
    o("s_cmp_lg_u32 s22, 12")
    o("s_cbranch_scc1 S2")
    o("v_add_u32 v19, v71, v67")
    o("v_lshl_or_b32 v20, v69, 12, v68")
    o("v_lshl_or_b32 v20, v70, 24, v20")
    o("v_lshrrev_b32 v21, 8, v70")
    o("v_lshl_or_b32 v21, v71, 4, v21")
    o("v_lshl_or_b32 v21, v19, 16, v21")
    lab("S2")
    o("s_branch PH1_DONE")

    lab("P_ROLE")
    o("v_and_b32 v2, 63, v0")
    o("v_lshlrev_b32 v1, 4, v2")
    o("v_lshlrev_b32 v3, 1, v2")
    o("v_and_b32 v3, 0x70, v3")
    o("v_xor_b32 v3, v3, v1")
    o("v_mov_b32 v61, s47")
    o("s_lshl_b32 s47, s23, 10")
    o("v_add_u32 v5, s47, v1")
    o("v_add_u32 v6, 0x1800, v5")
    o("s_add_u32 s52, s46, s47")
    o("s_mov_b32 m0, s52")
    o("s_lshl_b32 s62, s23, 12")
    o("s_add_u32 s47, s62, s46")
    o("s_add_u32 s47, s47, 9216")
    o("s_mov_b32 s23, s46")
    o("s_cmp_lg_u32 s3, -1")
    o("s_cbranch_scc1 PX")
    o(f"s_mul_i32 s46, s{sBK}, 12544")
    o("s_add_u32 s46, s46, s62")
    o(f"s_add_u32 s62, s62, {XT}")
    for m in range(4):
        o(f"v_add_u32 v{88+m}, s46, v3")
        o(f"v_add_u32 v{92+m}, s46, v1")
    o("s_branch PY")
    lab("PX")
    o("s_mov_b32 s62, s47")
    o("s_mul_i32 s46, s3, 200704")
    o("s_add_u32 s46, s46, 12288")
    o("v_bfe_u32 v4, v0, 4, 2")
    o("s_movk_i32 s53, 12544")
    o("v_mul_u32_u24 v4, s53, v4")
    o("v_add_u32 v4, s46, v4")
    o("v_and_b32 v7, 0xf0, v3")
    o("v_add_u32 v88, v4, v7")
    o("v_and_b32 v7, 0xf0, v1")
    o("v_add_u32 v92, v4, v7")
    for m in range(1, 4):
        o(f"v_add_u32 v{88+m}, {m*(4*12544-1024)}, v88")
        o(f"v_add_u32 v{92+m}, {m*(4*12544-1024)}, v92")
    lab("PY")
    o("s_waitcnt lgkmcnt(0)")
    stamp(0)
    srd(sWM, 12, size=129*128)
    o(f"buffer_load_dwordx4 v5, {sr(sWM,4)}, 0 offen lds")
    o(f"buffer_load_dwordx4 v5, {sr(sWM,4)}, 0 offen offset:3072 lds")
    o("s_add_u32 s52, s52, 0x1800")
    o("s_mov_b32 m0, s52")
    srd(sX, 4, size=N*128)
    o(f"buffer_load_dwordx4 v6, {sr(sWM,4)}, 0 offen lds")
    o("s_mov_b32 m0, s62")
    o("s_nop 0")
    for m in range(4):
        o(f"buffer_load_dwordx4 v{88+m}, {sr(sX,4)}, 0 offen offset:{m*1024} lds")
    o("s_cmp_lg_u32 s22, 15")
    o("s_cbranch_scc1 P1")
    o("v_mov_b64 v[28:29], 0")
    o("v_mov_b64 v[30:31], 0")
    o(f"ds_write_b64 v28, v[28:29] offset:{FLAGS}")
    o(f"ds_write_b128 v28, v[28:31] offset:{SYNC}")
    o("s_cmp_lg_u32 s2, 0")
    o("s_cbranch_scc1 P0")
    o("s_memrealtime s[52:53]")
    o("s_waitcnt lgkmcnt(0)")
    o("s_or_b32 s52, s52, 1")
    o("v_mov_b32 v30, s52")
    o("v_mov_b32 v31, s53")
    o("s_mov_b64 exec, 1")
    o(f"global_store_dwordx2 v28, v[30:31], s[18:19] offset:{NONOFF} sc1")
    o("s_mov_b64 exec, -1")
    lab("P0")
    o("s_waitcnt lgkmcnt(0)")
    lab("P1")
    o("s_barrier")
    srd(sP, 20, size=P_SIZE)
    o("v_and_b32 v7, 31, v0")
    o("v_bfe_u32 v6, v0, 5, 1")
    o("v_add_u32 v5, s47, v3")
    o("v_lshlrev_b32 v4, 4, v0")
    o("v_and_b32 v4, 0x70, v4")
    o("v_lshl_add_u32 v4, v7, 7, v4")
    o("v_add_u32 v45, s62, v4")
    o("v_add_u32 v4, s47, v4")
    o("v_lshlrev_b32 v44, 4, v6")
    o("v_xor_b32 v44, v44, v45")
    for kc in range(1, 4):
        o(f"v_xor_b32 v{44+kc}, {32*kc}, v44")
    o("v_lshlrev_b32 v40, 6, v6")
    o("v_xor_b32 v40, v40, v4")
    for m in range(1, 4):
        o(f"v_xor_b32 v{40+m}, {16*m}, v40")
    o("v_bfe_u32 v48, v7, 2, 1")
    o("v_lshlrev_b32 v48, 4, v48")
    o("v_and_b32 v49, 3, v7")
    o("v_add_u32 v48, v48, v49")
    o("v_lshrrev_b32 v49, 3, v7")
    o("v_lshl_add_u32 v48, v49, 2, v48")
    o("v_lshlrev_b32 v48, 2, v48")
    o("v_lshl_add_u32 v48, v6, 10, v48")
    o("v_add_u32 v48, s23, v48")
    for kc in range(1, 4):
        o(f"v_add_u32 v{48+kc}, {2048*kc}, v48")
    o("s_mov_b32 s56, 0x05040100")
    o("s_mov_b32 s57, 0x07060302")
    o(f"s_mov_b32 s58, 0x{NLOG2E:08x}")
    o("s_mov_b32 s59, s58")
    o("s_mov_b32 s60, 0xffff0000")
    o("s_brev_b32 s61, 1")
    o("v_mov_b32 v62, 1")
    o("s_waitcnt vmcnt(4)")
    lds_sync("W", None, 3, 61, 62, 60)
    for kc in range(4):
        for m in range(4):
            o(f"ds_read2_b32 v[{96+8*kc+2*m}:{97+8*kc+2*m}], v{48+kc} offset0:{64*m} offset1:{64*m+32}")
        if kc == 2: o("s_waitcnt lgkmcnt(8)")
    for kc in range(4):
        o(f"s_waitcnt lgkmcnt({12-4*kc})")
        for m in range(4):
            a, b = 96 + 8*kc + 2*m, 97 + 8*kc + 2*m
            o(f"v_perm_b32 v{8+8*kc+m}, v{b}, v{a}, s56")
            o(f"v_perm_b32 v{12+8*kc+m}, v{b}, v{a}, s57")
    o("s_waitcnt vmcnt(0)")
    stamp(1)
    for kc in range(4):
        o(f"ds_read_b128 v[{72+4*kc}:{75+4*kc}], v{44+kc}")
    for kc in range(4):
        o(f"s_waitcnt lgkmcnt({3-kc})")
        cl = "0" if kc == 0 else "v[96:111]"
        ch = "0" if kc == 0 else "v[112:127]"
        o(f"v_mfma_f32_32x32x16_bf16 v[96:111], v[{8+8*kc}:{11+8*kc}], v[{72+4*kc}:{75+4*kc}], {cl}")
        o(f"v_mfma_f32_32x32x16_bf16 v[112:127], v[{12+8*kc}:{15+8*kc}], v[{72+4*kc}:{75+4*kc}], {ch}")
    o("v_mov_b32 v7, 0")
    o("s_nop 7")
    o("s_nop 3")
    for r in range(0, 32, 2):
        o(f"v_pk_mul_f32 v[{96+r}:{97+r}], v[{96+r}:{97+r}], s[58:59]")
    for r in range(16):
        lo, hi, w = 96 + r, 112 + r, 48 + r
        o(f"v_cvt_pk_bf16_f32 v{w}, v{lo}, v{lo}")
        o(f"v_and_b32 v39, 0x7fffffff, v{hi}")
        o(f"v_add_u32 v39, 0x8000, v39")
        o(f"v_sub_u32_sdwa v39, v39, v{w} clamp dst_sel:DWORD dst_unused:UNUSED_PAD src0_sel:DWORD src1_sel:WORD_0")
        o(f"v_max3_f32 v7, |v{lo}|, |v{hi}|, v7")
        o(f"v_bfi_b32 v39, s61, v{hi}, v39")
        o(f"v_bfi_b32 v{w}, s60, v39, v{w}")
        if r % 4 == 3:
            m = r // 4
            o(f"ds_write_b128 v{40+m}, v[{48+4*m}:{51+4*m}]")
    stamp(2)
    o(f"v_cmp_ngt_f32 vcc, 0x{TEN:08x}, v7")
    o(f"s_mov_b64 {sr(sVIO,2)}, vcc")
    bulk_dma()
    o("s_waitcnt lgkmcnt(0)")
    for m in range(4):
        o(f"ds_read_b128 v[{64+4*m}:{67+4*m}], v5 offset:{m*1024}")
    for m in range(4):
        o(f"s_waitcnt lgkmcnt({3-m})")
        o(f"buffer_store_dwordx4 v[{64+4*m}:{67+4*m}], v{92+m}, {sr(sP,4)}, 0 offen offset:{1024*m}{SST}")

    lab("PH1_DONE")
    o("v_mov_b32 v6, 0")
    o("v_mov_b32 v7, 1")
    o(f"s_cmp_eq_u64 {sr(sVIO,2)}, 0")
    o("s_cbranch_scc1 V1")
    o(f"ds_write_b32 v6, v7 offset:{FLAGS}")
    lab("V1")
    srd(sWS, 20, size=WS_SIZE)
    srd(sP, 20, size=P_SIZE)
    o(f"s_lshr_b32 s{sTILE}, s22, 1")
    o(f"s_and_b32 s{sHALF}, s22, 1")
    o(f"s_lshl_b32 s3, s{sTILE}, 11")
    o(f"s_add_u32 s{sROWB}, s90, s3")
    o(f"s_movk_i32 s{sK}, 0x3f80")
    o(f"s_movk_i32 s{sRS}, {RS}")
    o(f"s_mov_b32 s{sM24}, {os.environ.get('M24', '0xffffff')}")
    o(f"s_mov_b32 s{sRND}, 0")
    o(f"s_mov_b32 s{sRDONE}, 0")
    o(f"s_mov_b32 s{sSTEP}, 32")
    o(f"s_mov_b32 s{sREC}, {REC_OFF}")
    o("v_and_b32 v40, 3, v0")
    o("v_bfe_u32 v41, v0, 2, 2")
    o("v_bfe_u32 v42, v0, 4, 2")
    o("v_lshlrev_b32 v42, 10, v42")
    o("v_lshl_add_u32 v42, v41, 4, v42")
    o("v_lshl_add_u32 v43, v40, 1, v42")
    o("v_lshl_add_u32 v42, v40, 2, v42")
    o("s_lshr_b32 s52, s22, 3")
    o("s_lshl_b32 s52, s52, 6")
    o("s_bfe_u32 s53, s22, 0x10002")
    o("s_lshl_b32 s53, s53, 3")
    o("s_add_u32 s52, s52, s53")
    o("s_and_b32 s53, s22, 3")
    o("s_lshl_b32 s53, s53, 12")
    o("s_add_u32 s52, s52, s53")
    o("v_add_u32 v43, s52, v43")
    o("s_bfe_u32 s52, s22, 0x10002")
    o("s_lshl_b32 s52, s52, 6")
    o("s_bfe_u32 s53, s22, 0x10001")
    o("s_lshl_b32 s53, s53, 1")
    o("s_sub_u32 s52, s52, s53")
    o("s_add_u32 s52, s52, 2")
    o("s_and_b32 s53, s22, 1")
    o("s_lshl_b32 s53, s53, 12")
    o("s_add_u32 s52, s52, s53")
    o("v_add_u32 v42, s52, v42")
    o(f"v_and_b32 v{vJ16}, 7, v0")
    o(f"v_lshlrev_b32 v{vJ16}, 4, v{vJ16}")
    o("s_waitcnt vmcnt(0) lgkmcnt(0)")
    o("s_barrier")
    stamp(3)
    cstamp("a", 1)
    o("s_cmp_lg_u32 s22, 12")
    o("s_cbranch_scc1 NODESC")
    o(f"ds_read_b128 v[44:47], v6 offset:{FLAGS}")
    o("v_and_b32 v19, 63, v0")
    o("v_lshlrev_b32 v19, 12, v19")
    o("s_lshl_b32 s52, s2, 4")
    o(f"s_add_u32 s52, s52, {DESC_OFF}")
    o("s_waitcnt lgkmcnt(0)")
    o("v_lshl_or_b32 v21, v44, 31, v21")
    o("v_mov_b32 v22, v46")
    o("v_mov_b32 v23, v47")
    o(f"buffer_store_dwordx4 v[20:23], v19, {sr(sWS,4)}, s52 offen{SC1}")
    lab("NODESC")
    for t in range(8):
        o(f"ds_read_u16 v{56+t}, v43 offset:{RAWU + 128*t}")
    o(f"ds_read_b128 v[120:123], v{vJ16} offset:{RAW2 + 8192}")
    o("s_cmp_gt_u32 s22, 7")
    o("s_cbranch_scc1 NOW2")
    o("s_waitcnt lgkmcnt(4)")
    for t in range(8):
        o(f"ds_read_u16 v{64+t}, v42 offset:{RAW2 + 128*t}")
    o("s_waitcnt lgkmcnt(0)")
    for m in range(4):
        o(f"v_lshl_or_b32 v{76+m}, v{65+2*m}, 16, v{64+2*m}")
    o(f"ds_write_b128 v124, v[76:79] offset:{W2F}")
    lab("NOW2")
    o(f"v_add_u32 v125, {WUF}, v124")
    o(f"s_mov_b32 s90, 0x{NLOG2E:08x}")
    o("s_mov_b32 s91, s90")
    o("s_waitcnt lgkmcnt(0)")
    for m in range(4):
        o(f"v_lshl_or_b32 v{72+m}, v{57+2*m}, 16, v{56+2*m}")
    o("ds_write_b128 v125, v[72:75]")
    for k in range(4):
        o(f"v_and_b32 v{W+k}, 0xffff0000, v{120+k}")
        o(f"v_lshlrev_b32 v{W+4+k}, 16, v{120+k}")
    for p in range(4):
        pk("mul", W+2*p, vr(W+2*p,2), "s[90:91]")
    o(f"v_add_u32 v{vQC}, {QT}, v{vJ16}")
    o("v_lshrrev_b32 v125, 3, v0")
    o(f"v_mov_b32 v{vOC}, {(PART-QT) & 0xffffffff}")
    o(f"v_mad_u32_u24 v{vOC}, v125, s{sRS}, v{vOC}")
    o("v_and_b32 v72, 63, v0")
    o("v_lshlrev_b32 v72, 4, v72")
    o(f"s_lshl_b32 s52, s{sHALF}, 12")
    o("v_add_u32 v72, s52, v72")
    o("v_and_b32 v73, 15, v0")
    o(f"s_lshl_b32 s52, s{sTILE}, 4")
    o("v_add_u32 v73, s52, v73")
    o("v_and_b32 v74, 48, v0")
    o("v_lshlrev_b32 v75, 4, v0")
    o("v_and_b32 v75, 0x70, v75")
    o("v_xor_b32 v75, v75, v74")
    o("v_lshl_add_u32 v75, v73, 7, v75")
    o(f"v_add_u32 v75, {XT}, v75")
    o("v_xor_b32 v76, 64, v75")
    o(f"v_mad_u32_u24 v73, v73, s{sRS}, v74")
    o(f"s_lshl_b32 s3, s{sHALF}, 6")
    o(f"s_add_u32 s3, s3, {QT}")
    o("v_add_u32 v73, s3, v73")
    o("s_waitcnt lgkmcnt(0)")
    o("s_barrier")
    o(f"s_mov_b64 {sr(sVIO,2)}, 0")
    o("s_cmp_ge_u32 s22, 14")
    o("s_cbranch_scc1 NOQ")
    o("ds_read_b128 v[88:91], v75")
    o(f"ds_read_b128 v[96:99], v72 offset:{W2F}")
    o(f"ds_read_b128 v[104:107], v72 offset:{W2F+2048}")
    o("ds_read_b128 v[92:95], v76")
    o(f"ds_read_b128 v[100:103], v72 offset:{W2F+1024}")
    o(f"ds_read_b128 v[108:111], v72 offset:{W2F+3072}")
    o("s_waitcnt lgkmcnt(3)")
    o(f"v_mfma_f32_16x16x32_bf16 v[112:115], v[96:99], v[88:91], 0")
    o(f"v_mfma_f32_16x16x32_bf16 v[116:119], v[104:107], v[88:91], 0")
    o("s_waitcnt lgkmcnt(0)")
    o(f"v_mfma_f32_16x16x32_bf16 v[112:115], v[100:103], v[92:95], v[112:115]")
    o(f"v_mfma_f32_16x16x32_bf16 v[116:119], v[108:111], v[92:95], v[116:119]")
    o("s_nop 7")
    for p in range(4):
        pk("mul", 112+2*p, vr(112+2*p,2), "s[90:91]")
    o("ds_write_b128 v73, v[112:115]")
    o("ds_write_b128 v73, v[116:119] offset:128")
    o("v_max3_f32 v125, |v112|, |v113|, |v114|")
    o("v_max3_f32 v125, |v115|, |v116|, v125")
    o("v_max3_f32 v125, |v117|, |v118|, v125")
    o("v_max_f32 v125, |v119|, v125")
    o(f"v_cmp_ngt_f32 vcc, 0x{TEN:08x}, v125")
    o("s_cmp_eq_u64 vcc, 0")
    o("s_cbranch_scc1 NOQV")
    o(f"ds_write_b32 v6, v7 offset:{FLAGS}")
    lab("NOQV")
    silu_f(A, 112)
    lab("NOQ")
    prefill()
    o("v_and_b32 v7, 15, v0")
    o("v_add_u32 v6, 16, v7")
    o("v_lshrrev_b32 v72, 2, v0")
    o("v_and_b32 v72, 0xfc, v72")
    o("s_cmp_lg_u32 s22, 15")
    o("s_cbranch_scc1 DSKIP")
    o(f"ds_read_b64 v[74:75], v121 offset:{FLAGS+8}")
    o("v_lshlrev_b32 v76, 1, v125")
    o(f"s_lshr_b32 s3, s{sBK}, 2")
    o("s_lshl_b32 s3, s3, 12")
    o(f"s_add_u32 s3, s3, {DESC_OFF}")
    o(f"s_and_b32 s53, s{sBK}, 3")
    o("s_mul_i32 s54, s53, 12")
    o("s_cmp_eq_u32 s53, 3")
    o("s_cselect_b32 s54, 4, s54")
    o("v_mul_u32_u24 v73, 200, v76")
    for i in range(4):
        o(f"s_mov_b64 {sr(sMASK+2*i,2)}, 0")
    o(f"s_mov_b32 s52, {SPIN}")
    o("s_waitcnt lgkmcnt(0)")
    lab("DPOLL")
    for i in range(4):
        o(f"s_not_b64 exec, {sr(sMASK+2*i,2)}")
        o(f"s_cbranch_execz DP{i}")
        o(f"buffer_load_dwordx4 {vr(56+4*i,4)}, v76, {sr(sWS,4)}, s3 offen offset:{1024*i}{SC1}")
        lab(f"DP{i}")
    o("s_mov_b64 exec, -1")
    o("s_waitcnt vmcnt(0)")
    for i in range(4):
        o(f"v_cmp_eq_u64 {sr(sMASK+2*i,2)}, v[74:75], {vr(58+4*i,2)}")
    o(f"s_and_b64 {sr(sMASK+8,2)}, {sr(sMASK,2)}, {sr(sMASK+2,2)}")
    o(f"s_and_b64 {sr(sMASK+10,2)}, {sr(sMASK+4,2)}, {sr(sMASK+6,2)}")
    o(f"s_and_b64 {sr(sMASK+8,2)}, {sr(sMASK+8,2)}, {sr(sMASK+10,2)}")
    o(f"s_cmp_eq_u64 {sr(sMASK+8,2)}, -1")
    o("s_cbranch_scc1 DOK")
    o("s_sub_u32 s52, s52, 1")
    o("s_cmp_eq_u32 s52, 0")
    o("s_cbranch_scc1 DOK")
    o(f"s_sleep {SLEEP}")
    o("s_branch DPOLL")
    lab("DOK")
    o("s_cmp_lg_u32 s2, 0")
    o("s_cbranch_scc1 DNC")
    o("v_mov_b32 v77, 0")
    o("v_mov_b64 v[78:79], 0")
    o("s_mov_b64 exec, 1")
    o(f"global_store_dwordx2 v77, v[78:79], s[18:19] offset:{NONOFF} sc1")
    o("s_mov_b64 exec, -1")
    lab("DNC")
    o("v_or3_b32 v77, v57, v61, v65")
    o("v_or_b32 v77, v77, v69")
    o("v_cmp_gt_i32 vcc, 0, v77")
    o("s_cmp_eq_u64 vcc, 0")
    o("s_cbranch_scc1 DNF")
    o("v_mov_b32 v77, 1")
    o(f"ds_write_b32 v121, v77 offset:{FLAGS}")
    lab("DNF")
    o("s_cmp_lg_u32 s53, 3")
    o("s_cbranch_scc1 DK3")
    for i in range(4):
        o(f"v_mov_b32 v{56+4*i}, v{57+4*i}")
    lab("DK3")
    o("v_lshrrev_b32 v76, 2, v76")
    for i in range(4):
        o(f"v_alignbit_b32 v{56+4*i}, v{57+4*i}, v{56+4*i}, s54")
        o(f"v_bfe_u32 v{57+4*i}, v{56+4*i}, 12, 12")
        o(f"v_and_b32 v{56+4*i}, 0xfff, v{56+4*i}")
        o(f"v_sub_u32 v{57+4*i}, v{57+4*i}, v{56+4*i}")
        o(f"v_add_u32 v{56+4*i}, v{56+4*i}, v73")
        if i: o(f"v_add_u32 v{56+4*i}, {204800*i}, v{56+4*i}")
        o(f"v_lshl_or_b32 v{56+4*i}, v{57+4*i}, 20, v{56+4*i}")
        o(f"ds_write_b32 v76, v{56+4*i} offset:{DLDS + 256*i}")
    lab("DSKIP")
    o("s_waitcnt lgkmcnt(0)")
    o("s_barrier")
    stamp(4)
    cstamp("a", 2)
    o(f"ds_read2st64_b32 {vr(DESC,2)}, v72 offset0:{DLDS//256} offset1:{DLDS//256+1}")
    o(f"ds_read2st64_b32 {vr(DESC+2,2)}, v72 offset0:{DLDS//256+2} offset1:{DLDS//256+3}")
    o("s_waitcnt lgkmcnt(0)")
    lab("K2_ROUND")
    o(f"s_add_u32 s90, s{sRND}, s{sSTEP}")
    o("s_mov_b32 s3, 0xfffff")
    o(f"s_mov_b32 s52, {RECB_OFF}")
    for i in range(4):
        o(f"v_lshrrev_b32 v{80+i}, 20, v{DESC+i}")
        o(f"v_and_b32 v84, s3, v{DESC+i}")
        o(f"v_cmp_lt_u32 {sr(sMASK+4*i,2)}, v7, v{80+i}")
        o(f"v_cmp_lt_u32 {sr(sMASK+4*i+2,2)}, v6, v{80+i}")
        o(f"v_add_u32 v84, v84, v7")
        o(f"v_lshlrev_b32 v85, 2, v84")
        o(f"s_mov_b64 exec, {sr(sMASK+4*i,2)}")
        o(f"buffer_load_ubyte v{56+4*i}, v84, {sr(sWS,4)}, s52 offen{SC1}")
        o(f"buffer_load_dword v{57+4*i}, v85, {sr(sWS,4)}, s{sREC} offen{SC1}")
        o(f"s_mov_b64 exec, {sr(sMASK+4*i+2,2)}")
        o(f"s_cbranch_execz K2_T2_{i}")
        o(f"buffer_load_ubyte v{58+4*i}, v84, {sr(sWS,4)}, s52 offen offset:16{SC1}")
        o(f"buffer_load_dword v{59+4*i}, v85, {sr(sWS,4)}, s{sREC} offen offset:64{SC1}")
        lab(f"K2_T2_{i}")
        o("s_mov_b64 exec, -1")
    o("v_max3_u32 v80, v80, v81, v82")
    o("v_max_u32 v80, v80, v83")
    o("v_cmp_lt_u32 s[54:55], s90, v80")
    o("v_mov_b32 v7, 1")
    o("v_mov_b32 v6, 0")
    o("s_cmp_eq_u64 s[54:55], 0")
    o("s_cbranch_scc1 K2_F2")
    o(f"ds_write_b32 v6, v7 offset:{FLAGS+4}")
    lab("K2_F2")
    o("v_and_b32 v5, 63, v0")
    o("v_lshlrev_b32 v5, 3, v5")
    o(f"s_movk_i32 s3, {SLOT}")
    o("s_waitcnt vmcnt(0)")
    stamp(5)
    if PREF:
        o(f"s_cmp_lg_u32 s{sRND}, 0")
        o("s_cbranch_scc1 NOPF")
        o("s_cmp_gt_u32 s22, 12")
        o("s_cbranch_scc1 NOPF")
        o("s_lshr_b32 s52, s2, 3")
        o("s_mul_i32 s52, s52, 102400")
        o("v_lshlrev_b32 v44, 7, v0")
        o(f"buffer_load_dword v127, v44, {sr(sP,4)}, s52 offen{SC1}")
        lab("NOPF")
    for i in range(8):
        o(f"v_lshlrev_b32 v{100+i}, 2, v{56+2*i}")
    for i in range(8):
        masked(i, "K2_RK", f"ds_add_rtn_u32 v{80+i}, v{100+i}, v7 offset:{CNT}")
    o("s_mov_b64 exec, -1")
    for i in range(8):
        o(f"v_lshlrev_b32_sdwa v108, 7, v{57+2*i} dst_sel:DWORD dst_unused:UNUSED_PAD src0_sel:DWORD src1_sel:WORD_0")
        o(f"v_and_b32 v{57+2*i}, 0xffff0000, v{57+2*i}")
        o(f"v_lshl_or_b32 v{56+2*i}, v{56+2*i}, 24, v108")
    o("s_waitcnt lgkmcnt(0)")
    o("s_barrier")
    stamp(6)
    o(f"ds_read_b64 v[88:89], v5 offset:{CNT}")
    o(f"ds_read_b64 v[90:91], v6 offset:{FLAGS}")
    o("s_waitcnt lgkmcnt(1)")
    o("v_add_u32 v92, 3, v88")
    o("v_add_u32 v93, 3, v89")
    o("v_lshrrev_b32 v92, 2, v92")
    o("v_lshrrev_b32 v93, 2, v93")
    o("v_add_u32 v94, v92, v93")
    o("v_mov_b32 v95, v94")
    wave_scan(95)
    o("v_sub_u32 v96, v95, v94")
    o("v_add_u32 v97, v96, v92")
    o("v_lshl_add_u32 v98, v96, 5, s3")
    o("v_lshl_add_u32 v99, v97, 5, s3")
    o(f"ds_write_b64 v5, v[98:99] offset:{OFFS}")
    o(f"v_readlane_b32 s{sQN}, v95, 63")
    o("s_waitcnt lgkmcnt(0)")
    for i in range(8):
        masked(i, "K2_OF", f"ds_read_b32 v{100+i}, v{100+i} offset:{OFFS}")
    o("s_mov_b64 exec, -1")
    o(f"s_cmp_gt_u32 s{sQN}, {NSLOT//4 - 12}")
    o("s_cbranch_scc1 K2_NARROW")
    o(f"v_readfirstlane_b32 s{sSLOW}, v90")
    o(f"v_readfirstlane_b32 s{sMORE}, v91")
    o(f"s_add_u32 s{sS}, s{sQN}, 7")
    o(f"s_lshr_b32 s{sS}, s{sS}, 3")
    o(f"s_lshr_b32 s{sBASE}, s{sS}, 4")
    o(f"s_and_b32 s{sREM}, s{sS}, 15")
    o(f"s_cmp_lt_u32 s22, s{sREM}")
    o(f"s_cselect_b32 s{sRW}, 1, 0")
    o(f"s_add_u32 s{sRW}, s{sRW}, s{sBASE}")
    o(f"s_mul_i32 s3, s{sBASE}, s22")
    o(f"s_min_u32 s90, s22, s{sREM}")
    o("s_add_u32 s3, s3, s90")
    o("s_lshl_b32 s3, s3, 8")
    o(f"s_add_u32 s3, s3, {SLOT}")
    o(f"s_lshl_b32 s90, s{sRW}, 5")
    o("v_bfe_u32 v7, v0, 3, 3")
    o(f"v_mov_b32 v{vSLOT}, s3")
    o(f"v_mad_u32_u24 v{vSLOT}, v7, s90, v{vSLOT}")
    o("s_waitcnt lgkmcnt(0)")
    for i in range(8):
        o(f"v_lshl_add_u32 v{100+i}, v{80+i}, 3, v{100+i}")
    for i in range(8):
        masked(i, "K2_SC", f"ds_write_b64 v{100+i}, {vr(56+2*i,2)}")
    o("s_mov_b64 exec, -1")
    o("s_waitcnt lgkmcnt(0)")
    o("s_barrier")
    stamp(7)
    cstamp("b", 1)

    o("s_cmp_lg_u32 s22, 15")
    o("s_cbranch_scc1 K2_NONI")
    o(f"s_add_u32 s3, s{sBASE}, 1")
    o("v_cvt_f32_u32 v44, s3")
    o(f"v_cvt_f32_u32 v45, s{sBASE}")
    o("v_rcp_f32 v44, v44")
    o("v_rcp_f32 v45, v45")
    o(f"s_mul_i32 s3, s3, s{sREM}")
    o("s_lshl_b32 s3, s3, 3")
    o("v_cvt_f32_u32 v46, s3")
    o(f"s_lshl_b32 s90, s{sREM}, 3")
    o("v_add_u32 v100, -1, v97")
    o("v_add_u32 v101, -1, v95")
    for q in (96, 97, 100, 101):
        o(f"v_cvt_f32_u32 v48, v{q}")
        o("v_add_f32 v48, 0.5, v48")
        o("v_sub_f32 v49, v48, v46")
        o("v_mul_f32 v48, v48, v44")
        o("v_mul_f32 v49, v49, v45")
        o("v_cvt_u32_f32 v48, v48")
        o("v_cvt_u32_f32 v49, v49")
        o(f"v_cmp_gt_u32 vcc, s3, v{q}")
        o("v_add_u32 v49, s90, v49")
        o("s_nop 0")
        o(f"v_cndmask_b32 v{q}, v49, v48, vcc")
    for (rf, rl, nq, cn) in ((96, 100, 92, 88), (97, 101, 93, 89)):
        o(f"v_sub_u32 v{rl}, v{rl}, v{rf}")
        o(f"v_add_u32 v{rl}, 1, v{rl}")
        o(f"v_cmp_lt_u32 vcc, 0, v{nq}")
        o(f"v_lshlrev_b32 v{nq}, 2, v{nq}")
        o(f"v_sub_u32 v{nq}, v{nq}, v{cn}")
        o(f"v_cndmask_b32 v{rl}, 0, v{rl}, vcc")
        o(f"v_and_b32 v{rf}, 0xff, v{rf}")
        o(f"v_lshl_or_b32 v{rf}, v{rl}, 8, v{rf}")
        o(f"v_lshl_or_b32 v{rf}, v{nq}, 16, v{rf}")
    o(f"ds_write_b64 v5, v[96:97] offset:{NINFO}")
    lab("K2_NONI")
    o(f"s_cmp_eq_u32 s{sRW}, 0")
    o("s_cbranch_scc1 K2_MAIN_DONE")
    o(f"s_cmp_lg_u32 s{sSLOW}, 0")
    o("s_cbranch_scc1 K2_MAIN_S")
    gen_main("F", False)
    gen_main("S", True)
    lab("K2_MAIN_DONE")
    o("s_waitcnt lgkmcnt(0)")
    stamp(8)
    cstamp("b", 2)
    o("s_cmp_ge_u32 s22, 14")
    o("s_cbranch_scc1 K2_IDLE")
    o("v_and_b32 v6, 15, v0")
    o(f"s_lshl_b32 s3, s{sTILE}, 4")
    o("v_add_u32 v6, s3, v6")
    o("v_and_b32 v5, 48, v0")
    o("v_lshlrev_b32 v7, 2, v6")
    o(f"s_lshl_b32 s3, s{sHALF}, 6")
    o("v_add_u32 v36, s3, v5")
    o(f"v_mad_u32_u24 v37, v6, s{sRS}, v36")
    o(f"v_add_u32 v37, {PART}, v37")
    o(f"s_movk_i32 s3, {AGG_STRIDE}")
    o("v_mad_u32_u24 v41, v6, s3, v36")
    o("v_mad_u32_u24 v42, v6, s3, v5")
    o("v_lshlrev_b32 v40, 4, v0")
    o("v_and_b32 v40, 0x70, v40")
    o("v_xor_b32 v40, v40, v5")
    o("v_lshl_add_u32 v40, v6, 7, v40")
    o(f"v_add_u32 v40, {XT}, v40")
    o("v_xor_b32 v44, 64, v40")
    o("v_and_b32 v43, 63, v0")
    o("v_lshlrev_b32 v43, 4, v43")
    o(f"s_lshl_b32 s3, s{sHALF}, 13")
    o(f"s_add_u32 s3, s3, {WUF}")
    o("v_add_u32 v43, s3, v43")
    o("ds_read_b128 v[88:91], v40")
    o("ds_read_b128 v[92:95], v44")
    for ks in range(4):
        for sub in range(2):
            o(f"ds_read_b128 {vr(56+16*sub+4*ks,4)}, v43 offset:{4096*sub + 1024*ks}")
    srd(sOUT, 16, size=N*128)
    o(f"s_mov_b32 s90, 0x{NLN2:08x}")
    o("s_mov_b32 s91, s90")
    bop = ["v[88:91]", "v[92:95]", "v[96:99]", "v[100:103]"]
    def mm(ks):
        for sub in range(2):
            dd = vr(48+4*sub, 4)
            o(f"v_mfma_f32_16x16x32_bf16 {dd}, {vr(56+16*sub+4*ks,4)}, {bop[ks]}, {'0' if ks == 0 else dd}")
    o("s_waitcnt lgkmcnt(0)")
    mm(0); mm(1)
    o("s_barrier")
    stamp(9)
    o(f"ds_read_b32 v38, v7 offset:{NINFO}")
    o(f"s_cmp_eq_u32 s{sRDONE}, 0")
    o("s_cbranch_scc1 K2_R0")
    o(f"v_add_u32 v39, {(QT-PART) & 0xffffffff}, v37")
    o("ds_read_b128 v[104:107], v39")
    o("ds_read_b128 v[108:111], v39 offset:128")
    o("s_waitcnt lgkmcnt(0)")
    silu_f(96, 104)
    o("v_lshrrev_b32 v39, 16, v38")
    o("v_cvt_f32_u32 v39, v39")
    o("v_cmp_lt_f32 vcc, 0, v39")
    o("s_and_saveexec_b64 s[80:81], vcc")
    for k in range(8):
        o(f"v_fma_f32 v{A+k}, -v39, v{96+k}, v{A+k}")
    o("s_mov_b64 exec, -1")
    o("v_and_b32 v39, 0xff, v38")
    o(f"v_mad_u32_u24 v37, v39, s{sRS}, v37")
    o("v_bfe_u32 v38, v38, 8, 8")
    o("s_branch K2_RED")
    lab("K2_R0")
    o("s_waitcnt lgkmcnt(0)")
    o("v_and_b32 v39, 0xff, v38")
    o(f"v_mad_u32_u24 v37, v39, s{sRS}, v37")
    for m in range(3):
        o(f"ds_read_b128 {vr(96+8*m,4)}, v37 offset:{RS*m}")
        o(f"ds_read_b128 {vr(100+8*m,4)}, v37 offset:{RS*m+128}")
    o("v_cvt_f32_ubyte2 v44, v38")
    o("v_bfe_u32 v38, v38, 8, 8")
    for p in range(4):
        pk("mul", A+2*p, vr(A+2*p,2), "v[44:45]", mods="op_sel_hi:[1,0] neg_lo:[0,1] neg_hi:[0,1]")
    o(f"s_cmp_eq_u32 s{sSLOW}, 0")
    o("s_cbranch_scc1 K2_RED2")
    o("v_cmp_eq_f32 vcc, 0, v44")
    o("s_and_b64 exec, exec, vcc")
    for p in range(4):
        o(f"v_mov_b64 {vr(A+2*p,2)}, 0")
    o("s_mov_b64 exec, -1")
    o("s_branch K2_RED2")
    lab("K2_RED")
    for m in range(3):
        o(f"ds_read_b128 {vr(96+8*m,4)}, v37 offset:{RS*m}")
        o(f"ds_read_b128 {vr(100+8*m,4)}, v37 offset:{RS*m+128}")
    lab("K2_RED2")
    o(f"v_add_u32 v37, {3*RS}, v37")
    for m in range(3):
        o(f"v_cmp_lt_i32 vcc, {m}, v38")
        o("s_and_b64 exec, exec, vcc")
        o(f"s_waitcnt lgkmcnt({4-2*m})")
        for p in range(4):
            pk("add", A+2*p, vr(A+2*p,2), vr(96+8*m+2*p,2))
    o("v_cmp_lt_i32 vcc, 3, v38")
    o("v_subrev_u32 v38, 3, v38")
    o("s_and_b64 exec, exec, vcc")
    o("s_cbranch_execnz K2_RED")
    o("s_mov_b64 exec, -1")
    o(f"s_cmp_eq_u32 s{sMORE}, 0")
    o("s_cbranch_scc1 K2_FINAL")
    lab("K2_NEXT")
    o(f"s_add_u32 s{sRND}, s{sRND}, s{sSTEP}")
    o(f"s_add_u32 s{sRDONE}, s{sRDONE}, 1")
    lab("K2_REDO")
    o("s_waitcnt lgkmcnt(0)")
    o("s_barrier")
    prefill()
    o("v_and_b32 v7, 15, v0")
    o(f"v_add_u32 v7, s{sRND}, v7")
    o("v_add_u32 v6, 16, v7")
    o(f"s_cmp_eq_u32 s{sSTEP}, 32")
    o("s_cbranch_scc1 K2_WIDE")
    o("v_mov_b32 v6, 0x100000")
    lab("K2_WIDE")
    o("s_waitcnt lgkmcnt(0)")
    o("s_barrier")
    o("s_branch K2_ROUND")
    lab("K2_NARROW")
    o(f"s_mov_b32 s{sSTEP}, 16")
    o("s_branch K2_REDO")
    lab("K2_IDLE")
    o("s_barrier")
    o(f"s_cmp_eq_u32 s{sMORE}, 0")
    o("s_cbranch_scc0 K2_NEXT")
    o("s_branch K2_END")
    lab("K2_FINAL")
    for p in range(4):
        pk("mul", A+2*p, vr(A+2*p,2), "s[90:91]")
    for k in range(4):
        o(f"v_cvt_pk_bf16_f32 v{96+k}, v{A+4+k}, v{A+k}")
    o(f"ds_write_b128 v41, v[96:99] offset:{AGG}")
    o("s_mul_i32 s3, s22, 1280")
    o("v_and_b32 v36, 15, v0")
    o("v_mul_u32_u24 v36, 80, v36")
    o("v_add3_u32 v36, v36, v5, s3")
    o("v_bfe_u32 v37, v0, 2, 4")
    o("v_and_b32 v38, 3, v0")
    o("v_lshlrev_b32 v38, 4, v38")
    o("v_mul_u32_u24 v39, 80, v37")
    o("v_add3_u32 v39, v39, v38, s3")
    o("v_lshl_add_u32 v4, v37, 7, v38")
    o(f"s_lshl_b32 s3, s{sHALF}, 6")
    o(f"s_add_u32 s3, s3, s{sROWB}")
    o("v_add_u32 v4, s3, v4")
    o(f"s_lshl_b32 s3, s{sTILE}, 4")
    o("s_sub_u32 s3, 98, s3")
    o("v_cmp_gt_u32 vcc, s3, v37")
    o(f"s_mov_b32 s90, 0x{NLOG2E:08x}")
    o("s_mov_b32 s91, s90")
    o("s_waitcnt lgkmcnt(0)")
    o("s_barrier")
    stamp(10)
    o(f"ds_read_b128 v[96:99], v42 offset:{AGG}")
    o(f"ds_read_b128 v[100:103], v42 offset:{AGG+64}")
    o("s_waitcnt lgkmcnt(1)")
    mm(2)
    o("s_waitcnt lgkmcnt(0)")
    mm(3)
    o("s_nop 7")
    for p in range(4):
        pk("mul", 112+2*p, vr(48+2*p,2), "s[90:91]")
    for k in range(8):
        o(f"v_exp_f32 v{112+k}, v{112+k}")
    o("s_nop 0")
    for p in range(4):
        pk("add", 112+2*p, vr(112+2*p,2), "1.0", mods="op_sel_hi:[1,0]")
    for k in range(8):
        o(f"v_rcp_f32 v{112+k}, v{112+k}")
    o("s_nop 0")
    for p in range(4):
        pk("mul", 112+2*p, vr(112+2*p,2), vr(48+2*p,2))
    for k in range(4):
        o(f"v_cvt_pk_bf16_f32 v{120+k}, v{112+2*k}, v{113+2*k}")
    o(f"ds_write_b128 v36, v[120:123] offset:{OTR}")
    o("s_waitcnt lgkmcnt(0)")
    o(f"ds_read_b128 v[120:123], v39 offset:{OTR}")
    o("s_and_b64 exec, exec, vcc")
    o("s_cbranch_execz K2_END")
    o("s_waitcnt lgkmcnt(0)")
    o(f"buffer_store_dwordx4 v[120:123], v4, {sr(sOUT,4)}, 0 offen")
    lab("K2_END")
    if STAMP: o("s_waitcnt vmcnt(0)")
    stamp(11)
    stamp_flush(12)
    lab("K2_EXIT")
    o("s_endpgm")

def main(path):
    hdr = open("gather_scatter__mpnn_edge_mlp__graph.s.ref").read().split("\n")
    head = [h for h in hdr if h.startswith(";") and "@launch" not in h]
    L.extend(head)
    L.append(f"; @launch grid=({NBK},1,1) block=(1024,1,1) lds={LDS}")
    L.append('.amdgcn_target "amdgcn-amd-amdhsa--gfx950"')
    L.append(".text")
    gen()
    L.append('.section .rodata,"a"')
    L.append(".p2align 6")
    L.append(f".amdhsa_kernel {KN}")
    L.append("  .amdhsa_next_free_vgpr 128")
    L.append(f"  .amdhsa_next_free_sgpr {102 if STAMP else 100}")
    L.append("  .amdhsa_accum_offset 128")
    L.append("  .amdhsa_group_segment_fixed_size 0")
    L.append("  .amdhsa_kernarg_size 72")
    L.append("  .amdhsa_user_sgpr_count 2")
    L.append("  .amdhsa_user_sgpr_kernarg_segment_ptr 1")
    L.append("  .amdhsa_system_sgpr_workgroup_id_x 1")
    L.append("  .amdhsa_float_denorm_mode_32 3")
    L.append(".end_amdhsa_kernel")
    open(path, "w").write("\n".join(x for x in L if x is not None) + "\n")
    print(f"{KN}:{NBK}:1024:{LDS}")

if __name__ == "__main__":
    main(sys.argv[1] if len(sys.argv) > 1 else "v7.s")
```

```python
import sys, os

KN = "gather_scatter__mpnn_edge_mlp__graph_kernel"
N = 25000; E = 800000; NB = 98; NBK = 256; CH = 3200; NCH = 250
P_SIZE = N * 128
REC_OFF = 0x320000
RECB_OFF = 0x640000
DESC_OFF = 0x940000
WS_SIZE = 0x980000
NTILE = 782
NONOFF = 248
SPIN = 0x10000
NLOG2E = 0xbfb8aa3b
NLN2 = 0xbf317218
TEN = 0x41200000
DUMMY = 0x00FFFF80 | (98 << 24)
OOB = 0x7fffff00

CNT = 0
OFFS = 512
FLAGS = 1152
NINFO = 1280
SLOT = 1792
NSLOT = 4608
PART = SLOT + NSLOT * 8
RS = 272
QT = PART + 226 * RS
XT = (QT + 112 * RS + 127) & ~127
WUF = XT + 112 * 128
LDS = WUF + 16384
AGG = SLOT; AGG_STRIDE = 144
OTR = SLOT + 16384
C1 = PART; O1 = PART + 1024; R1 = PART + 2048; EF1 = PART + 27648
PTA = PART + 28672; PTB = PART
SYNC = FLAGS + 16
RAWU = SLOT; RAW2 = SLOT + 16384
W2F = PART
DLDS = PART + 8192 + 256
assert DLDS % 256 == 0 and DLDS // 256 + 3 < 256
assert PART % 128 == 0

STAMP = int(os.environ.get("STAMP", "0"))
ARR = os.environ.get("ARR", "atomic")
NSH = int(os.environ.get("NSH", "64"))
SHSTR = int(os.environ.get("SHSTR", "4"))
SLEEP = int(os.environ.get("SLEEP", "2"))
PFIRST = int(os.environ.get("PFIRST", "0"))
NODOT = int(os.environ.get("NODOT", "0"))
PREF = int(os.environ.get("PREF", "0"))
PRIO = int(os.environ.get("PRIO", "1"))
DBG_OFF = 0x1000000
STAMP_SG = [95, 98, 99, 100, 101, 36, 37, 38, 39, 40, 41, 42]

L = []
def o(s): L.append("    " + s)
def lab(s): L.append(s + ":")
def vr(a, n): return f"v[{a}:{a+n-1}]"
def sr(a, n): return f"s[{a}:{a+n-1}]"

def stamp(idx):
    if not STAMP: return
    o("s_memrealtime s[96:97]")
    o("s_waitcnt lgkmcnt(0)")
    o(f"s_mov_b32 s{STAMP_SG[idx]}, s96")
CYC = os.environ.get("CYC", "")
def cstamp(where, idx):
    if not STAMP or where not in CYC.split(","): return
    o("s_memtime s[96:97]")
    o("s_waitcnt lgkmcnt(0)")
    o(f"s_mov_b32 s{STAMP_SG[idx]}, s96")
def stamp_flush(n):
    if not STAMP: return
    o("s_mov_b64 exec, -1")
    o("s_lshl_b32 s96, s2, 4")
    o("s_add_u32 s96, s96, s22")
    o("s_lshl_b32 s96, s96, 6")
    o(f"s_add_u32 s96, s96, {DBG_OFF + 0x100000}")
    o("s_add_u32 s96, s20, s96")
    o("s_addc_u32 s97, s21, 0")
    o("v_mov_b32 v1, 0")
    for i in range(n):
        o(f"v_mov_b32 v2, s{STAMP_SG[i]}")
        o(f"global_store_dword v1, v2, s[96:97] offset:{4*i}")

def srd(d, base_lo, off=None, size=None, off_s=None):
    if off is None and off_s is None:
        o(f"s_mov_b64 {sr(d,2)}, {sr(base_lo,2)}")
    else:
        first = True
        for x in (off, off_s):
            if x is None: continue
            src_lo = f"s{base_lo}" if first else f"s{d}"
            src_hi = f"s{base_lo+1}" if first else f"s{d+1}"
            o(f"s_add_u32 s{d}, {src_lo}, {x}")
            o(f"s_addc_u32 s{d+1}, {src_hi}, 0")
            first = False
    o(f"s_mov_b32 s{d+2}, {size}")
    o(f"s_mov_b32 s{d+3}, 0x20000")

def wave_scan(v, op="add_u32"):
    for sh in (1, 2, 4, 8):
        o("s_nop 1")
        o(f"v_{op}_dpp v{v}, v{v}, v{v} row_shr:{sh} row_mask:0xf bank_mask:0xf bound_ctrl:0")
    o("s_nop 1")
    o(f"v_{op}_dpp v{v}, v{v}, v{v} row_bcast:15 row_mask:0xa bank_mask:0xf")
    o("s_nop 1")
    o(f"v_{op}_dpp v{v}, v{v}, v{v} row_bcast:31 row_mask:0xc bank_mask:0xf")

def lds_sync(tag, idx, n, vz, v1, vt):
    o("s_waitcnt lgkmcnt(0)")
    o("s_mov_b64 exec, 1")
    o(f"ds_add_u32 v{vz}, v{v1} offset:{SYNC if idx is None else SYNC}+{idx}" if False else f"ds_add_u32 v{vz}, v{v1} offset:{SYNC}" if idx is None else f"ds_add_u32 v{vz}, v{v1} offset:{SYNC + 4*idx}")
    lab(f"LS_{tag}")
    o(f"ds_read_b32 v{vt}, v{vz} offset:{SYNC if idx is None else SYNC + 4*idx}")
    o("s_waitcnt lgkmcnt(0)")
    o(f"v_readfirstlane_b32 s53, v{vt}")
    o(f"s_cmp_ge_u32 s53, {n}")
    o(f"s_cbranch_scc1 LSX_{tag}")
    o("s_sleep 1")
    o(f"s_branch LS_{tag}")
    lab(f"LSX_{tag}")
    o("s_mov_b64 exec, -1")

def pk(op, d, *src, mods=""):
    o(f"v_pk_{op}_f32 {vr(d,2)}, " + ", ".join(src) + (" " + mods if mods else ""))

vJ16, vQC, vOC, vSLOT, vQA, vQAN, vT0 = 1, 2, 3, 4, 5, 6, 7
W, ACC, A, DESC, GA, RA, RB, PA, PB, Q, NN, D, T, EE = 8, 16, 24, 32, 36, 40, 48, 56, 72, 88, 96, 104, 112, 120
sX, sP, sWS, sWM, sWU, sOUT = 24, 28, 32, 36, 40, 44
sMASK = 56
sQN, sS, sBASE, sREM, sRW, sCNT, sK, sM24 = 72, 73, 74, 75, 76, 77, 78, 79
sVIO = 82
sSLOW, sMORE, sRND = 84, 85, 23
sTILE, sHALF, sROWB, sBK = 86, 87, 88, 89
sSTEP, sRDONE, sRS, sREC = 48, 49, 50, 93
SC1 = " sc1"
SST = os.environ.get("SST", " sc1")
GSC = os.environ.get("GSC", " sc1")

def gathers(R, P):
    for i in range(4):
        o(f"v_and_or_b32 v{GA+i}, v{R+2*i}, s{sM24}, v{vJ16}")
        o(f"buffer_load_dwordx4 {vr(P+4*i,4)}, v{GA+i}, {sr(sP,4)}, 0 offen{GSC}")

def compute_quad(R, RN, P, slow, QA, QN, so):
    for i in range(4):
        TT = NN if (i == 0 and not slow) else T
        for p in range(4):
            pk("fma", TT+2*p, vr(R+2*i,2), vr(W+2*p,2), vr(Q+2*p,2), mods="op_sel:[1,0,0] op_sel_hi:[1,1,1]")
        if i == 3:
            o(f"v_add_u32 v{vT0}, v{QA}, v{vOC}")
            o(f"v_lshrrev_b32 v{QN}, 24, v{RN}")
            o(f"v_mad_u32_u24 v{QN}, v{QN}, s{sRS}, v{vQC}")
            o(f"ds_read_b128 {vr(Q,4)}, v{QN}")
            o(f"ds_read_b128 {vr(Q+4,4)}, v{QN} offset:128")
            o(f"ds_read_b128 {vr(R,4)}, v{vSLOT} offset:{so}")
            o(f"ds_read_b128 {vr(R+4,4)}, v{vSLOT} offset:{so+16}")
            if so == 96: o(f"v_add_u32 v{vSLOT}, 64, v{vSLOT}")
        if NODOT:
            for k in range(4):
                o(f"v_lshlrev_b32 v{EE+k}, 16, v{P+4*i+k}")
            pk("add", TT, vr(P+4*i,2), vr(TT,2))
            pk("add", TT+2, vr(P+4*i+2,2), vr(TT+2,2))
            pk("add", TT+4, vr(EE,2), vr(TT+4,2))
            pk("add", TT+6, vr(EE+2,2), vr(TT+6,2))
        else:
            for k in range(4):
                o(f"v_dot2_f32_bf16 v{TT+4+k}, v{P+4*i+k}, s{sK}, v{TT+4+k}")
            pk("add", TT, vr(P+4*i,2), vr(TT,2))
            pk("add", TT+2, vr(P+4*i+2,2), vr(TT+2,2))
        for k in range(8):
            o(f"v_exp_f32 v{EE+k}, v{TT+k}")
        if slow:
            for p in range(4):
                pk("add", EE+2*p, vr(EE+2*p,2), "1.0", mods="op_sel_hi:[1,0]")
            for k in range(8):
                o(f"v_rcp_f32 v{EE+k}, v{EE+k}")
            o("s_nop 0")
            for p in range(4):
                pk("fma", ACC+2*p, vr(T+2*p,2), vr(EE+2*p,2), vr(ACC+2*p,2))
        elif i == 0:
            for p in range(4):
                pk("add", D+2*p, vr(EE+2*p,2), "1.0", mods="op_sel_hi:[1,0]")
        else:
            for p in range(4):
                pk("fma", NN+2*p, vr(NN+2*p,2), vr(EE+2*p,2), vr(NN+2*p,2))
            for p in range(4):
                pk("fma", NN+2*p, vr(T+2*p,2), vr(D+2*p,2), vr(NN+2*p,2))
            for p in range(4):
                pk("fma", D+2*p, vr(D+2*p,2), vr(EE+2*p,2), vr(D+2*p,2))
    if not slow:
        for k in range(8):
            o(f"v_rcp_f32 v{EE+k}, v{D+k}")
        o("s_nop 0")
        for p in range(4):
            pk("fma", ACC+2*p, vr(NN+2*p,2), vr(EE+2*p,2), vr(ACC+2*p,2))
    o(f"ds_write_b128 v{vT0}, {vr(ACC,4)}")
    o(f"ds_write_b128 v{vT0}, {vr(ACC+4,4)} offset:128")

def gen_main(tag, slow):
    lab(f"K2_MAIN_{tag}")
    o(f"ds_read_b128 {vr(RA,4)}, v{vSLOT}")
    o(f"ds_read_b128 {vr(RA+4,4)}, v{vSLOT} offset:16")
    o(f"ds_read_b128 {vr(RB,4)}, v{vSLOT} offset:32")
    o(f"ds_read_b128 {vr(RB+4,4)}, v{vSLOT} offset:48")
    for p in range(4):
        o(f"v_mov_b64 {vr(ACC+2*p,2)}, 0")
    o(f"s_sub_u32 s{sCNT}, s{sRW}, 1")
    if PRIO: o("s_setprio 3")
    o("s_waitcnt lgkmcnt(2)")
    gathers(RA, PA)
    o(f"v_lshrrev_b32 v{vQA}, 24, v{RA}")
    o(f"v_mad_u32_u24 v{vQA}, v{vQA}, s{sRS}, v{vQC}")
    o(f"ds_read_b128 {vr(Q,4)}, v{vQA}")
    o(f"ds_read_b128 {vr(Q+4,4)}, v{vQA} offset:128")
    o("s_waitcnt lgkmcnt(0)")
    for (x, R, RN, P, PN, QA, QN, so) in (("A", RA, RB, PA, PB, vQA, vQAN, 64), ("B", RB, RA, PB, PA, vQAN, vQA, 96)):
        t = tag + x
        lab(f"K2_LOOP_{t}")
        o(f"s_cmp_eq_u32 s{sCNT}, 0")
        o(f"s_cbranch_scc1 K2_LAST_{t}")
        if PRIO:
            o(f"s_cmp_gt_u32 s{sCNT}, 2")
            o(f"s_cbranch_scc1 K2_PR_{t}")
            o("s_setprio 2")
            o(f"s_cmp_eq_u32 s{sCNT}, 2")
            o(f"s_cbranch_scc1 K2_PR_{t}")
            o("s_setprio 1")
            lab(f"K2_PR_{t}")
        o("s_waitcnt lgkmcnt(2)")
        gathers(RN, PN)
        o("s_waitcnt vmcnt(4)")
        o(f"s_branch K2_GO_{t}")
        lab(f"K2_LAST_{t}")
        if PRIO: o("s_setprio 0")
        o("s_waitcnt vmcnt(0) lgkmcnt(2)")
        lab(f"K2_GO_{t}")
        compute_quad(R, RN, P, slow, QA, QN, so)
        o(f"s_cmp_eq_u32 s{sCNT}, 0")
        o("s_cbranch_scc1 K2_MAIN_DONE")
        o(f"s_sub_u32 s{sCNT}, s{sCNT}, 1")
        o(f"v_cmp_ne_u32 vcc, v{vQAN}, v{vQA}")
        o("s_and_saveexec_b64 s[80:81], vcc")
        o(f"s_cbranch_execz K2_KEEP_{t}")
        for p in range(4):
            o(f"v_mov_b64 {vr(ACC+2*p,2)}, 0")
        lab(f"K2_KEEP_{t}")
        o("s_mov_b64 exec, -1")
        if x == "B":
            o(f"s_branch K2_LOOP_{tag}A")

def silu_f(dst, src):
    for k in range(8):
        o(f"v_exp_f32 v{dst+k}, v{src+k}")
    o("s_nop 0")
    for p in range(4):
        pk("add", dst+2*p, vr(dst+2*p,2), "1.0", mods="op_sel_hi:[1,0]")
    for k in range(8):
        o(f"v_rcp_f32 v{dst+k}, v{dst+k}")
    o("s_nop 0")
    for p in range(4):
        pk("mul", dst+2*p, vr(dst+2*p,2), vr(src+2*p,2))

def masked(i, tagp, instr):
    o(f"s_mov_b64 exec, {sr(sMASK+2*i,2)}")
    skip = (i % 2 == 1)
    if skip: o(f"s_cbranch_execz {tagp}{i}")
    o(instr)
    if skip: lab(f"{tagp}{i}")

def prefill():
    n = prefill.n
    o(f"v_mov_b32 v120, 0x{DUMMY:08x}")
    o("v_mov_b32 v121, 0")
    o("v_mov_b32 v122, v120")
    o("v_mov_b32 v123, 0")
    o("v_lshlrev_b32 v124, 4, v0")
    for m in range(2):
        o(f"ds_write_b128 v124, v[120:123] offset:{SLOT + m*16384}")
    o("s_cmp_gt_u32 s22, 3")
    o(f"s_cbranch_scc1 K2_PF1_{n}")
    o(f"ds_write_b128 v124, v[120:123] offset:{SLOT + 32768}")
    lab(f"K2_PF1_{n}")
    o("s_cmp_lg_u32 s22, 15")
    o(f"s_cbranch_scc1 K2_PF2_{n}")
    o("v_and_b32 v125, 63, v0")
    o("v_lshlrev_b32 v125, 3, v125")
    o("v_mov_b32 v120, 0")
    o(f"ds_write_b64 v125, v[120:121] offset:{CNT}")
    o(f"ds_write_b32 v121, v120 offset:{FLAGS+4}")
    lab(f"K2_PF2_{n}")
    prefill.n += 1
prefill.n = 0

def bulk_dma():
    srd(sWU, 14, size=128*128)
    o("v_lshlrev_b32 v124, 4, v0")
    o("s_lshl_b32 s52, s22, 10")
    o(f"s_add_u32 s53, s52, {RAWU}")
    o("s_mov_b32 m0, s53")
    o("v_add_u32 v125, 0x2000, v124")
    o(f"buffer_load_dwordx4 v124, {sr(sWU,4)}, 0 offen lds")
    o(f"s_add_u32 s53, s52, {RAW2}")
    o("s_mov_b32 m0, s53")
    o("v_lshlrev_b32 v126, 1, v0")
    o("v_and_b32 v126, 0x70, v126")
    o(f"buffer_load_dwordx4 v125, {sr(sWM,4)}, 0 offen lds")
    o("v_xor_b32 v126, v126, v124")
    o(f"s_mul_i32 s90, s{sBK}, 12544")
    o("v_add_u32 v126, s90, v126")
    o("s_and_b32 s53, s22, 14")
    o("s_cmp_lg_u32 s53, 12")
    o(f"s_cbranch_scc1 BD_{bulk_dma.n}")
    o(f"s_add_u32 s53, s52, {XT}")
    o("s_mov_b32 m0, s53")
    o("s_nop 0")
    o(f"buffer_load_dwordx4 v126, {sr(sX,4)}, 0 offen lds")
    lab(f"BD_{bulk_dma.n}")
    bulk_dma.n += 1
bulk_dma.n = 0

def gen():
    L.append(f".globl {KN}")
    L.append(".p2align 8")
    L.append(f".type {KN},@function")
    lab(KN)
    o(f"s_cmp_ge_u32 s2, {NBK}")
    o("s_cbranch_scc1 K2_EXIT")
    o("s_load_dwordx16 s[4:19], s[0:1], 0")
    o("s_load_dwordx2 s[20:21], s[0:1], 64")
    o("v_lshrrev_b32 v1, 6, v0")
    o("s_and_b32 s3, s2, 7")
    o("v_readfirstlane_b32 s22, v1")
    o("s_lshl_b32 s3, s3, 5")
    o(f"s_lshr_b32 s{sBK}, s2, 3")
    o(f"s_or_b32 s{sBK}, s{sBK}, s3")
    o(f"s_mov_b64 {sr(sVIO,2)}, 0")
    o("s_mov_b32 s3, -1")
    o("s_sub_u32 s23, s22, 13")
    o(f"s_mov_b32 s46, {PTA}")
    o("s_mov_b32 s47, 8")
    o("s_cmp_ge_u32 s22, 13")
    o("s_cbranch_scc1 P_ROLE")
    o(f"s_cmp_lt_u32 s2, {NCH}")
    o("s_cbranch_scc1 SORT_ROLE")
    o("s_mul_i32 s3, s2, 3")
    o("s_add_u32 s3, s3, s22")
    o("s_sub_u32 s3, s3, 750")
    o("s_mov_b32 s23, s22")
    o(f"s_mov_b32 s46, {PTB}")
    o("s_mov_b32 s47, 12")
    o("s_cmp_lt_u32 s22, 3")
    o("s_cbranch_scc1 P_ROLE")
    o("s_waitcnt lgkmcnt(0)")
    stamp(0)
    srd(sX, 4, size=N*128)
    srd(sWM, 12, size=129*128)
    o("s_barrier")
    stamp(1)
    o("v_mov_b32 v61, 0")
    o("v_mov_b32 v62, 0")
    o("v_mov_b64 v[20:21], 0")
    o("s_cmp_lg_u32 s22, 11")
    o("s_cbranch_scc1 NONCE1I")
    o(f"s_mov_b32 s52, {SPIN}")
    o("v_mov_b32 v12, 0")
    lab("NONCEI")
    o("s_waitcnt vmcnt(0)")
    o("v_readfirstlane_b32 s53, v62")
    o("s_sub_u32 s52, s52, 1")
    o("s_cmp_eq_u32 s52, 0")
    o("s_cbranch_scc1 NONCE2I")
    o("s_cmp_lg_u32 s53, 0")
    o("s_cbranch_scc1 NONCE2I")
    o("s_sleep 8")
    o(f"global_load_dwordx2 v[62:63], v12, s[18:19] offset:{NONOFF} sc1")
    o("s_branch NONCEI")
    lab("NONCE2I")
    o(f"ds_write_b64 v12, v[62:63] offset:{FLAGS+8}")
    lab("NONCE1I")
    stamp(2)
    bulk_dma()
    o("s_branch PH1_DONE")

    lab("SORT_ROLE")
    o("s_movk_i32 s3, 800")
    o("v_cmp_gt_u32 s[44:45], s3, v0")
    o("v_lshlrev_b32 v1, 4, v0")
    o("v_lshlrev_b32 v2, 3, v0")
    o("v_and_b32 v7, 63, v0")
    o("v_lshlrev_b32 v6, 4, v7")
    o("v_lshlrev_b32 v7, 1, v7")
    o("v_add_u32 v7, 0x4000, v7")
    o("s_mul_i32 s3, s2, 12800")
    o("s_mul_i32 s23, s2, 6400")
    o("s_waitcnt lgkmcnt(0)")
    stamp(0)
    def sort_loads():
        o("buffer_load_dwordx4 v[16:19], v1, s[56:59], 0 offen")
        o("buffer_load_dwordx4 v[8:11], v1, s[60:63], 0 offen")
        o("buffer_load_dwordx2 v[24:25], v2, s[64:67], 0 offen")
        o(f"buffer_load_ushort v7, v7, {sr(sWM,4)}, 0 offen")
    srd(56, 10, off_s="s3", size=12800)
    srd(60, 8, off_s="s3", size=12800)
    srd(64, 6, off_s="s23", size=6400)
    srd(sWM, 12, size=129*128)
    if not PFIRST: sort_loads()
    o("s_cmp_lg_u32 s22, 0")
    o("s_cbranch_scc1 S1")
    o("v_mov_b64 v[28:29], 0")
    o("v_mov_b64 v[30:31], 0")
    o(f"ds_write_b128 v6, v[28:31] offset:{C1}")
    o("s_waitcnt lgkmcnt(0)")
    lab("S1")
    o("s_barrier")
    if PFIRST: sort_loads()
    srd(68, 20, off=REC_OFF, off_s="s3", size=12800)
    o("s_mul_i32 s3, s2, 3200")
    srd(72, 20, off=RECB_OFF, off_s="s3", size=3200)
    srd(sX, 4, size=N*128)
    srd(sWS, 20, size=WS_SIZE)
    o("s_mov_b64 exec, s[44:45]")
    o("v_mov_b32 v5, 1")
    o("s_movk_i32 s46, 98")
    o("s_waitcnt vmcnt(3)")
    for i in range(4):
        d = 16 + i
        o(f"v_mul_u32_u24 v{32+i}, 0xa730, v{d}")
        o(f"v_lshrrev_b32 v{40+i}, 22, v{32+i}")
        o(f"v_lshlrev_b32 v{32+i}, 2, v{40+i}")
        o(f"v_mul_u32_u24 v28, s46, v{40+i}")
        o(f"ds_add_rtn_u32 v{40+i}, v{32+i}, v5 offset:{C1}")
        o(f"v_sub_u32 v{d}, v{d}, v28")
    o("s_mov_b64 exec, -1")
    o("v_mov_b32 v5, 1")
    o("v_mov_b32 v61, 0")
    o(f"s_mov_b32 s46, {R1}")
    lds_sync("A", 0, 13, 61, 5, 60)
    o(f"ds_read_b128 v[64:67], v6 offset:{C1}")
    o("s_cmp_lg_u32 s22, 11")
    o("s_cbranch_scc1 NI1")
    o(f"global_load_dwordx2 v[62:63], v61, s[18:19] offset:{NONOFF} sc1")
    lab("NI1")
    o("s_waitcnt lgkmcnt(0)")
    o("v_add_u32 v12, v64, v65")
    o("v_add_u32 v13, v12, v66")
    o("v_add_u32 v14, v13, v67")
    o("v_mov_b32 v68, v14")
    wave_scan(68)
    o("v_sub_u32 v68, v68, v14")
    o("v_add_u32 v69, v68, v64")
    o("v_add_u32 v70, v68, v12")
    o("v_add_u32 v71, v68, v13")
    for k in range(4):
        o(f"v_lshl_add_u32 v{20+k}, v{68+k}, 2, s46")
    o(f"ds_write_b128 v6, v[20:23] offset:{O1}")
    o("s_mov_b64 exec, s[44:45]")
    o("s_waitcnt lgkmcnt(0)")
    for i in range(4):
        o(f"ds_read_b32 v{32+i}, v{32+i} offset:{O1}")
    o("s_cmp_eq_u32 s22, 11")
    o("s_cbranch_scc1 NI2")
    o("s_waitcnt vmcnt(0)")
    lab("NI2")
    o("s_waitcnt vmcnt(1)")
    stamp(1)
    o("s_mov_b32 s3, 0xffff0000")
    for i in range(4):
        ew = 24 + i // 2
        if i % 2 == 0: o(f"v_lshl_or_b32 v{48+i}, v{ew}, 16, v{8+i}")
        else: o(f"v_and_or_b32 v{48+i}, v{ew}, s3, v{8+i}")
    o("s_waitcnt lgkmcnt(0)")
    for i in range(4):
        o(f"v_lshl_add_u32 v{32+i}, v{40+i}, 2, v{32+i}")
        o(f"ds_write_b32 v{32+i}, v{48+i}")
        o(f"v_lshrrev_b32 v{36+i}, 2, v{32+i}")
        o(f"ds_write_b8 v{36+i}, v{16+i} offset:{R1 + 12800 - R1//4}")
    o("v_max3_f32 v28, |v48|, |v49|, |v50|")
    o("v_max_f32 v28, |v51|, v28")
    o("s_mov_b64 exec, -1")
    bulk_dma()
    lds_sync("B", 1, 13, 61, 5, 60)
    stamp(2)
    o("v_mov_b32 v60, v28")
    o(f"ds_read_b128 v[24:27], v1 offset:{R1}")
    o("s_cmp_gt_u32 s22, 3")
    o("s_cbranch_scc1 CO1")
    o(f"ds_read_b128 v[28:31], v1 offset:{R1+12800}")
    o("s_waitcnt lgkmcnt(0)")
    o(f"buffer_store_dwordx4 v[28:31], v1, s[72:75], 0 offen{SST}")
    lab("CO1")
    o("s_waitcnt lgkmcnt(0)")
    o(f"buffer_store_dwordx4 v[24:27], v1, s[68:71], 0 offen{SST}")
    o("v_and_b32 v7, 0x7fff, v7")
    wave_scan(7, "max_u32")
    o("s_nop 1")
    o("v_readlane_b32 s47, v7, 63")
    o("s_lshl_b32 s47, s47, 16")
    o("s_mov_b64 exec, s[44:45]")
    o("v_mul_f32 v60, s47, v60")
    o(f"v_cmp_ngt_f32 vcc, 0x40dd7fb6, v60")
    o(f"s_mov_b64 {sr(sVIO,2)}, vcc")
    o("s_mov_b64 exec, -1")
    o("s_cmp_lg_u32 s22, 11")
    o("s_cbranch_scc1 NONCE1S")
    o(f"s_mov_b32 s52, {SPIN}")
    o("s_waitcnt vmcnt(3)")
    lab("NONCES")
    o("v_readfirstlane_b32 s53, v62")
    o("s_sub_u32 s52, s52, 1")
    o("s_cmp_eq_u32 s52, 0")
    o("s_cbranch_scc1 NONCE2S")
    o("s_cmp_lg_u32 s53, 0")
    o("s_cbranch_scc1 NONCE2S")
    o(f"global_load_dwordx2 v[62:63], v61, s[18:19] offset:{NONOFF} sc1")
    o("s_waitcnt vmcnt(0)")
    o("s_branch NONCES")
    lab("NONCE2S")
    o(f"ds_write_b64 v61, v[62:63] offset:{FLAGS+8}")
    lab("NONCE1S")
    o("s_cmp_lg_u32 s22, 12")
    o("s_cbranch_scc1 S2")
    o("v_add_u32 v19, v71, v67")
    o("v_lshl_or_b32 v20, v69, 12, v68")
    o("v_lshl_or_b32 v20, v70, 24, v20")
    o("v_lshrrev_b32 v21, 8, v70")
    o("v_lshl_or_b32 v21, v71, 4, v21")
    o("v_lshl_or_b32 v21, v19, 16, v21")
    lab("S2")
    o("s_branch PH1_DONE")

    lab("P_ROLE")
    o("v_and_b32 v2, 63, v0")
    o("v_lshlrev_b32 v1, 4, v2")
    o("v_lshlrev_b32 v3, 1, v2")
    o("v_and_b32 v3, 0x70, v3")
    o("v_xor_b32 v3, v3, v1")
    o("v_mov_b32 v61, s47")
    o("s_lshl_b32 s47, s23, 10")
    o("v_add_u32 v5, s47, v1")
    o("v_add_u32 v6, 0x1800, v5")
    o("s_add_u32 s52, s46, s47")
    o("s_mov_b32 m0, s52")
    o("s_lshl_b32 s62, s23, 12")
    o("s_add_u32 s47, s62, s46")
    o("s_add_u32 s47, s47, 9216")
    o("s_mov_b32 s23, s46")
    o("s_cmp_lg_u32 s3, -1")
    o("s_cbranch_scc1 PX")
    o(f"s_mul_i32 s46, s{sBK}, 12544")
    o("s_add_u32 s46, s46, s62")
    o(f"s_add_u32 s62, s62, {XT}")
    for m in range(4):
        o(f"v_add_u32 v{88+m}, s46, v3")
        o(f"v_add_u32 v{92+m}, s46, v1")
    o("s_branch PY")
    lab("PX")
    o("s_mov_b32 s62, s47")
    o("s_mul_i32 s46, s3, 200704")
    o("s_add_u32 s46, s46, 12288")
    o("v_bfe_u32 v4, v0, 4, 2")
    o("s_movk_i32 s53, 12544")
    o("v_mul_u32_u24 v4, s53, v4")
    o("v_add_u32 v4, s46, v4")
    o("v_and_b32 v7, 0xf0, v3")
    o("v_add_u32 v88, v4, v7")
    o("v_and_b32 v7, 0xf0, v1")
    o("v_add_u32 v92, v4, v7")
    for m in range(1, 4):
        o(f"v_add_u32 v{88+m}, {m*(4*12544-1024)}, v88")
        o(f"v_add_u32 v{92+m}, {m*(4*12544-1024)}, v92")
    lab("PY")
    o("s_waitcnt lgkmcnt(0)")
    stamp(0)
    srd(sWM, 12, size=129*128)
    o(f"buffer_load_dwordx4 v5, {sr(sWM,4)}, 0 offen lds")
    o(f"buffer_load_dwordx4 v5, {sr(sWM,4)}, 0 offen offset:3072 lds")
    o("s_add_u32 s52, s52, 0x1800")
    o("s_mov_b32 m0, s52")
    srd(sX, 4, size=N*128)
    o(f"buffer_load_dwordx4 v6, {sr(sWM,4)}, 0 offen lds")
    o("s_mov_b32 m0, s62")
    o("s_nop 0")
    for m in range(4):
        o(f"buffer_load_dwordx4 v{88+m}, {sr(sX,4)}, 0 offen offset:{m*1024} lds")
    o("s_cmp_lg_u32 s22, 15")
    o("s_cbranch_scc1 P1")
    o("v_mov_b64 v[28:29], 0")
    o("v_mov_b64 v[30:31], 0")
    o(f"ds_write_b64 v28, v[28:29] offset:{FLAGS}")
    o(f"ds_write_b128 v28, v[28:31] offset:{SYNC}")
    o("s_cmp_lg_u32 s2, 0")
    o("s_cbranch_scc1 P0")
    o("s_memrealtime s[52:53]")
    o("s_waitcnt lgkmcnt(0)")
    o("s_or_b32 s52, s52, 1")
    o("v_mov_b32 v30, s52")
    o("v_mov_b32 v31, s53")
    o("s_mov_b64 exec, 1")
    o(f"global_store_dwordx2 v28, v[30:31], s[18:19] offset:{NONOFF} sc1")
    o("s_mov_b64 exec, -1")
    lab("P0")
    o("s_waitcnt lgkmcnt(0)")
    lab("P1")
    o("s_barrier")
    srd(sP, 20, size=P_SIZE)
    o("v_and_b32 v7, 31, v0")
    o("v_bfe_u32 v6, v0, 5, 1")
    o("v_add_u32 v5, s47, v3")
    o("v_lshlrev_b32 v4, 4, v0")
    o("v_and_b32 v4, 0x70, v4")
    o("v_lshl_add_u32 v4, v7, 7, v4")
    o("v_add_u32 v45, s62, v4")
    o("v_add_u32 v4, s47, v4")
    o("v_lshlrev_b32 v44, 4, v6")
    o("v_xor_b32 v44, v44, v45")
    for kc in range(1, 4):
        o(f"v_xor_b32 v{44+kc}, {32*kc}, v44")
    o("v_lshlrev_b32 v40, 6, v6")
    o("v_xor_b32 v40, v40, v4")
    for m in range(1, 4):
        o(f"v_xor_b32 v{40+m}, {16*m}, v40")
    o("v_bfe_u32 v48, v7, 2, 1")
    o("v_lshlrev_b32 v48, 4, v48")
    o("v_and_b32 v49, 3, v7")
    o("v_add_u32 v48, v48, v49")
    o("v_lshrrev_b32 v49, 3, v7")
    o("v_lshl_add_u32 v48, v49, 2, v48")
    o("v_lshlrev_b32 v48, 2, v48")
    o("v_lshl_add_u32 v48, v6, 10, v48")
    o("v_add_u32 v48, s23, v48")
    for kc in range(1, 4):
        o(f"v_add_u32 v{48+kc}, {2048*kc}, v48")
    o("s_mov_b32 s56, 0x05040100")
    o("s_mov_b32 s57, 0x07060302")
    o(f"s_mov_b32 s58, 0x{NLOG2E:08x}")
    o("s_mov_b32 s59, s58")
    o("s_mov_b32 s60, 0xffff0000")
    o("s_brev_b32 s61, 1")
    o("v_mov_b32 v62, 1")
    o("s_waitcnt vmcnt(4)")
    lds_sync("W", None, 3, 61, 62, 60)
    for kc in range(4):
        for m in range(4):
            o(f"ds_read2_b32 v[{96+8*kc+2*m}:{97+8*kc+2*m}], v{48+kc} offset0:{64*m} offset1:{64*m+32}")
        if kc == 2: o("s_waitcnt lgkmcnt(8)")
    for kc in range(4):
        o(f"s_waitcnt lgkmcnt({12-4*kc})")
        for m in range(4):
            a, b = 96 + 8*kc + 2*m, 97 + 8*kc + 2*m
            o(f"v_perm_b32 v{8+8*kc+m}, v{b}, v{a}, s56")
            o(f"v_perm_b32 v{12+8*kc+m}, v{b}, v{a}, s57")
    o("s_waitcnt vmcnt(0)")
    stamp(1)
    for kc in range(4):
        o(f"ds_read_b128 v[{72+4*kc}:{75+4*kc}], v{44+kc}")
    for kc in range(4):
        o(f"s_waitcnt lgkmcnt({3-kc})")
        cl = "0" if kc == 0 else "v[96:111]"
        ch = "0" if kc == 0 else "v[112:127]"
        o(f"v_mfma_f32_32x32x16_bf16 v[96:111], v[{8+8*kc}:{11+8*kc}], v[{72+4*kc}:{75+4*kc}], {cl}")
        o(f"v_mfma_f32_32x32x16_bf16 v[112:127], v[{12+8*kc}:{15+8*kc}], v[{72+4*kc}:{75+4*kc}], {ch}")
    o("v_mov_b32 v7, 0")
    o("s_nop 7")
    o("s_nop 3")
    for r in range(0, 32, 2):
        o(f"v_pk_mul_f32 v[{96+r}:{97+r}], v[{96+r}:{97+r}], s[58:59]")
    for r in range(16):
        lo, hi, w = 96 + r, 112 + r, 48 + r
        o(f"v_cvt_pk_bf16_f32 v{w}, v{lo}, v{lo}")
        o(f"v_and_b32 v39, 0x7fffffff, v{hi}")
        o(f"v_add_u32 v39, 0x8000, v39")
        o(f"v_sub_u32_sdwa v39, v39, v{w} clamp dst_sel:DWORD dst_unused:UNUSED_PAD src0_sel:DWORD src1_sel:WORD_0")
        o(f"v_max3_f32 v7, |v{lo}|, |v{hi}|, v7")
        o(f"v_bfi_b32 v39, s61, v{hi}, v39")
        o(f"v_bfi_b32 v{w}, s60, v39, v{w}")
        if r % 4 == 3:
            m = r // 4
            o(f"ds_write_b128 v{40+m}, v[{48+4*m}:{51+4*m}]")
    stamp(2)
    o(f"v_cmp_ngt_f32 vcc, 0x{TEN:08x}, v7")
    o(f"s_mov_b64 {sr(sVIO,2)}, vcc")
    bulk_dma()
    o("s_waitcnt lgkmcnt(0)")
    for m in range(4):
        o(f"ds_read_b128 v[{64+4*m}:{67+4*m}], v5 offset:{m*1024}")
    for m in range(4):
        o(f"s_waitcnt lgkmcnt({3-m})")
        o(f"buffer_store_dwordx4 v[{64+4*m}:{67+4*m}], v{92+m}, {sr(sP,4)}, 0 offen offset:{1024*m}{SST}")

    lab("PH1_DONE")
    o("v_mov_b32 v6, 0")
    o("v_mov_b32 v7, 1")
    o(f"s_cmp_eq_u64 {sr(sVIO,2)}, 0")
    o("s_cbranch_scc1 V1")
    o(f"ds_write_b32 v6, v7 offset:{FLAGS}")
    lab("V1")
    srd(sWS, 20, size=WS_SIZE)
    srd(sP, 20, size=P_SIZE)
    o(f"s_lshr_b32 s{sTILE}, s22, 1")
    o(f"s_and_b32 s{sHALF}, s22, 1")
    o(f"s_lshl_b32 s3, s{sTILE}, 11")
    o(f"s_add_u32 s{sROWB}, s90, s3")
    o(f"s_movk_i32 s{sK}, 0x3f80")
    o(f"s_movk_i32 s{sRS}, {RS}")
    o(f"s_mov_b32 s{sM24}, {os.environ.get('M24', '0xffffff')}")
    o(f"s_mov_b32 s{sRND}, 0")
    o(f"s_mov_b32 s{sRDONE}, 0")
    o(f"s_mov_b32 s{sSTEP}, 32")
    o(f"s_mov_b32 s{sREC}, {REC_OFF}")
    o("v_and_b32 v40, 3, v0")
    o("v_bfe_u32 v41, v0, 2, 2")
    o("v_bfe_u32 v42, v0, 4, 2")
    o("v_lshlrev_b32 v42, 10, v42")
    o("v_lshl_add_u32 v42, v41, 4, v42")
    o("v_lshl_add_u32 v43, v40, 1, v42")
    o("v_lshl_add_u32 v42, v40, 2, v42")
    o("s_lshr_b32 s52, s22, 3")
    o("s_lshl_b32 s52, s52, 6")
    o("s_bfe_u32 s53, s22, 0x10002")
    o("s_lshl_b32 s53, s53, 3")
    o("s_add_u32 s52, s52, s53")
    o("s_and_b32 s53, s22, 3")
    o("s_lshl_b32 s53, s53, 12")
    o("s_add_u32 s52, s52, s53")
    o("v_add_u32 v43, s52, v43")
    o("s_bfe_u32 s52, s22, 0x10002")
    o("s_lshl_b32 s52, s52, 6")
    o("s_bfe_u32 s53, s22, 0x10001")
    o("s_lshl_b32 s53, s53, 1")
    o("s_sub_u32 s52, s52, s53")
    o("s_add_u32 s52, s52, 2")
    o("s_and_b32 s53, s22, 1")
    o("s_lshl_b32 s53, s53, 12")
    o("s_add_u32 s52, s52, s53")
    o("v_add_u32 v42, s52, v42")
    o(f"v_and_b32 v{vJ16}, 7, v0")
    o(f"v_lshlrev_b32 v{vJ16}, 4, v{vJ16}")
    o("s_waitcnt vmcnt(0) lgkmcnt(0)")
    o("s_barrier")
    stamp(3)
    cstamp("a", 1)
    o("s_cmp_lg_u32 s22, 12")
    o("s_cbranch_scc1 NODESC")
    o(f"ds_read_b128 v[44:47], v6 offset:{FLAGS}")
    o("v_and_b32 v19, 63, v0")
    o("v_lshlrev_b32 v19, 12, v19")
    o("s_lshl_b32 s52, s2, 4")
    o(f"s_add_u32 s52, s52, {DESC_OFF}")
    o("s_waitcnt lgkmcnt(0)")
    o("v_lshl_or_b32 v21, v44, 31, v21")
    o("v_mov_b32 v22, v46")
    o("v_mov_b32 v23, v47")
    o(f"buffer_store_dwordx4 v[20:23], v19, {sr(sWS,4)}, s52 offen{SC1}")
    lab("NODESC")
    for t in range(8):
        o(f"ds_read_u16 v{56+t}, v43 offset:{RAWU + 128*t}")
    o(f"ds_read_b128 v[120:123], v{vJ16} offset:{RAW2 + 8192}")
    o("s_cmp_gt_u32 s22, 7")
    o("s_cbranch_scc1 NOW2")
    o("s_waitcnt lgkmcnt(4)")
    for t in range(8):
        o(f"ds_read_u16 v{64+t}, v42 offset:{RAW2 + 128*t}")
    o("s_waitcnt lgkmcnt(0)")
    for m in range(4):
        o(f"v_lshl_or_b32 v{76+m}, v{65+2*m}, 16, v{64+2*m}")
    o(f"ds_write_b128 v124, v[76:79] offset:{W2F}")
    lab("NOW2")
    o(f"v_add_u32 v125, {WUF}, v124")
    o(f"s_mov_b32 s90, 0x{NLOG2E:08x}")
    o("s_mov_b32 s91, s90")
    o("s_waitcnt lgkmcnt(0)")
    for m in range(4):
        o(f"v_lshl_or_b32 v{72+m}, v{57+2*m}, 16, v{56+2*m}")
    o("ds_write_b128 v125, v[72:75]")
    for k in range(4):
        o(f"v_and_b32 v{W+k}, 0xffff0000, v{120+k}")
        o(f"v_lshlrev_b32 v{W+4+k}, 16, v{120+k}")
    for p in range(4):
        pk("mul", W+2*p, vr(W+2*p,2), "s[90:91]")
    o(f"v_add_u32 v{vQC}, {QT}, v{vJ16}")
    o("v_lshrrev_b32 v125, 3, v0")
    o(f"v_mov_b32 v{vOC}, {(PART-QT) & 0xffffffff}")
    o(f"v_mad_u32_u24 v{vOC}, v125, s{sRS}, v{vOC}")
    o("v_and_b32 v72, 63, v0")
    o("v_lshlrev_b32 v72, 4, v72")
    o(f"s_lshl_b32 s52, s{sHALF}, 12")
    o("v_add_u32 v72, s52, v72")
    o("v_and_b32 v73, 15, v0")
    o(f"s_lshl_b32 s52, s{sTILE}, 4")
    o("v_add_u32 v73, s52, v73")
    o("v_and_b32 v74, 48, v0")
    o("v_lshlrev_b32 v75, 4, v0")
    o("v_and_b32 v75, 0x70, v75")
    o("v_xor_b32 v75, v75, v74")
    o("v_lshl_add_u32 v75, v73, 7, v75")
    o(f"v_add_u32 v75, {XT}, v75")
    o("v_xor_b32 v76, 64, v75")
    o(f"v_mad_u32_u24 v73, v73, s{sRS}, v74")
    o(f"s_lshl_b32 s3, s{sHALF}, 6")
    o(f"s_add_u32 s3, s3, {QT}")
    o("v_add_u32 v73, s3, v73")
    o("s_waitcnt lgkmcnt(0)")
    o("s_barrier")
    o(f"s_mov_b64 {sr(sVIO,2)}, 0")
    o("s_cmp_ge_u32 s22, 14")
    o("s_cbranch_scc1 NOQ")
    o("ds_read_b128 v[88:91], v75")
    o(f"ds_read_b128 v[96:99], v72 offset:{W2F}")
    o(f"ds_read_b128 v[104:107], v72 offset:{W2F+2048}")
    o("ds_read_b128 v[92:95], v76")
    o(f"ds_read_b128 v[100:103], v72 offset:{W2F+1024}")
    o(f"ds_read_b128 v[108:111], v72 offset:{W2F+3072}")
    o("s_waitcnt lgkmcnt(3)")
    o(f"v_mfma_f32_16x16x32_bf16 v[112:115], v[96:99], v[88:91], 0")
    o(f"v_mfma_f32_16x16x32_bf16 v[116:119], v[104:107], v[88:91], 0")
    o("s_waitcnt lgkmcnt(0)")
    o(f"v_mfma_f32_16x16x32_bf16 v[112:115], v[100:103], v[92:95], v[112:115]")
    o(f"v_mfma_f32_16x16x32_bf16 v[116:119], v[108:111], v[92:95], v[116:119]")
    o("s_nop 7")
    for p in range(4):
        pk("mul", 112+2*p, vr(112+2*p,2), "s[90:91]")
    o("ds_write_b128 v73, v[112:115]")
    o("ds_write_b128 v73, v[116:119] offset:128")
    o("v_max3_f32 v125, |v112|, |v113|, |v114|")
    o("v_max3_f32 v125, |v115|, |v116|, v125")
    o("v_max3_f32 v125, |v117|, |v118|, v125")
    o("v_max_f32 v125, |v119|, v125")
    o(f"v_cmp_ngt_f32 vcc, 0x{TEN:08x}, v125")
    o("s_cmp_eq_u64 vcc, 0")
    o("s_cbranch_scc1 NOQV")
    o(f"ds_write_b32 v6, v7 offset:{FLAGS}")
    lab("NOQV")
    silu_f(A, 112)
    lab("NOQ")
    prefill()
    o("v_and_b32 v7, 15, v0")
    o("v_add_u32 v6, 16, v7")
    o("v_lshrrev_b32 v72, 2, v0")
    o("v_and_b32 v72, 0xfc, v72")
    o("s_cmp_lg_u32 s22, 15")
    o("s_cbranch_scc1 DSKIP")
    o(f"ds_read_b64 v[74:75], v121 offset:{FLAGS+8}")
    o("v_lshlrev_b32 v76, 1, v125")
    o(f"s_lshr_b32 s3, s{sBK}, 2")
    o("s_lshl_b32 s3, s3, 12")
    o(f"s_add_u32 s3, s3, {DESC_OFF}")
    o(f"s_and_b32 s53, s{sBK}, 3")
    o("s_mul_i32 s54, s53, 12")
    o("s_cmp_eq_u32 s53, 3")
    o("s_cselect_b32 s54, 4, s54")
    o("v_mul_u32_u24 v73, 200, v76")
    for i in range(4):
        o(f"s_mov_b64 {sr(sMASK+2*i,2)}, 0")
    o(f"s_mov_b32 s52, {SPIN}")
    o("s_waitcnt lgkmcnt(0)")
    lab("DPOLL")
    for i in range(4):
        o(f"s_not_b64 exec, {sr(sMASK+2*i,2)}")
        o(f"s_cbranch_execz DP{i}")
        o(f"buffer_load_dwordx4 {vr(56+4*i,4)}, v76, {sr(sWS,4)}, s3 offen offset:{1024*i}{SC1}")
        lab(f"DP{i}")
    o("s_mov_b64 exec, -1")
    o("s_waitcnt vmcnt(0)")
    for i in range(4):
        o(f"v_cmp_eq_u64 {sr(sMASK+2*i,2)}, v[74:75], {vr(58+4*i,2)}")
    o(f"s_and_b64 {sr(sMASK+8,2)}, {sr(sMASK,2)}, {sr(sMASK+2,2)}")
    o(f"s_and_b64 {sr(sMASK+10,2)}, {sr(sMASK+4,2)}, {sr(sMASK+6,2)}")
    o(f"s_and_b64 {sr(sMASK+8,2)}, {sr(sMASK+8,2)}, {sr(sMASK+10,2)}")
    o(f"s_cmp_eq_u64 {sr(sMASK+8,2)}, -1")
    o("s_cbranch_scc1 DOK")
    o("s_sub_u32 s52, s52, 1")
    o("s_cmp_eq_u32 s52, 0")
    o("s_cbranch_scc1 DOK")
    o(f"s_sleep {SLEEP}")
    o("s_branch DPOLL")
    lab("DOK")
    o("s_cmp_lg_u32 s2, 0")
    o("s_cbranch_scc1 DNC")
    o("v_mov_b32 v77, 0")
    o("v_mov_b64 v[78:79], 0")
    o("s_mov_b64 exec, 1")
    o(f"global_store_dwordx2 v77, v[78:79], s[18:19] offset:{NONOFF} sc1")
    o("s_mov_b64 exec, -1")
    lab("DNC")
    o("v_or3_b32 v77, v57, v61, v65")
    o("v_or_b32 v77, v77, v69")
    o("v_cmp_gt_i32 vcc, 0, v77")
    o("s_cmp_eq_u64 vcc, 0")
    o("s_cbranch_scc1 DNF")
    o("v_mov_b32 v77, 1")
    o(f"ds_write_b32 v121, v77 offset:{FLAGS}")
    lab("DNF")
    o("s_cmp_lg_u32 s53, 3")
    o("s_cbranch_scc1 DK3")
    for i in range(4):
        o(f"v_mov_b32 v{56+4*i}, v{57+4*i}")
    lab("DK3")
    o("v_lshrrev_b32 v76, 2, v76")
    for i in range(4):
        o(f"v_alignbit_b32 v{56+4*i}, v{57+4*i}, v{56+4*i}, s54")
        o(f"v_bfe_u32 v{57+4*i}, v{56+4*i}, 12, 12")
        o(f"v_and_b32 v{56+4*i}, 0xfff, v{56+4*i}")
        o(f"v_sub_u32 v{57+4*i}, v{57+4*i}, v{56+4*i}")
        o(f"v_add_u32 v{56+4*i}, v{56+4*i}, v73")
        if i: o(f"v_add_u32 v{56+4*i}, {204800*i}, v{56+4*i}")
        o(f"v_lshl_or_b32 v{56+4*i}, v{57+4*i}, 20, v{56+4*i}")
        o(f"ds_write_b32 v76, v{56+4*i} offset:{DLDS + 256*i}")
    lab("DSKIP")
    o("s_waitcnt lgkmcnt(0)")
    o("s_barrier")
    stamp(4)
    cstamp("a", 2)
    o(f"ds_read2st64_b32 {vr(DESC,2)}, v72 offset0:{DLDS//256} offset1:{DLDS//256+1}")
    o(f"ds_read2st64_b32 {vr(DESC+2,2)}, v72 offset0:{DLDS//256+2} offset1:{DLDS//256+3}")
    o("s_waitcnt lgkmcnt(0)")
    lab("K2_ROUND")
    o(f"s_add_u32 s90, s{sRND}, s{sSTEP}")
    o("s_mov_b32 s3, 0xfffff")
    o(f"s_mov_b32 s52, {RECB_OFF}")
    for i in range(4):
        o(f"v_lshrrev_b32 v{80+i}, 20, v{DESC+i}")
        o(f"v_and_b32 v84, s3, v{DESC+i}")
        o(f"v_cmp_lt_u32 {sr(sMASK+4*i,2)}, v7, v{80+i}")
        o(f"v_cmp_lt_u32 {sr(sMASK+4*i+2,2)}, v6, v{80+i}")
        o(f"v_add_u32 v84, v84, v7")
        o(f"v_lshlrev_b32 v85, 2, v84")
        o(f"s_mov_b64 exec, {sr(sMASK+4*i,2)}")
        o(f"buffer_load_ubyte v{56+4*i}, v84, {sr(sWS,4)}, s52 offen{SC1}")
        o(f"buffer_load_dword v{57+4*i}, v85, {sr(sWS,4)}, s{sREC} offen{SC1}")
        o(f"s_mov_b64 exec, {sr(sMASK+4*i+2,2)}")
        o(f"s_cbranch_execz K2_T2_{i}")
        o(f"buffer_load_ubyte v{58+4*i}, v84, {sr(sWS,4)}, s52 offen offset:16{SC1}")
        o(f"buffer_load_dword v{59+4*i}, v85, {sr(sWS,4)}, s{sREC} offen offset:64{SC1}")
        lab(f"K2_T2_{i}")
        o("s_mov_b64 exec, -1")
    o("v_max3_u32 v80, v80, v81, v82")
    o("v_max_u32 v80, v80, v83")
    o("v_cmp_lt_u32 s[54:55], s90, v80")
    o("v_mov_b32 v7, 1")
    o("v_mov_b32 v6, 0")
    o("s_cmp_eq_u64 s[54:55], 0")
    o("s_cbranch_scc1 K2_F2")
    o(f"ds_write_b32 v6, v7 offset:{FLAGS+4}")
    lab("K2_F2")
    o("v_and_b32 v5, 63, v0")
    o("v_lshlrev_b32 v5, 3, v5")
    o(f"s_movk_i32 s3, {SLOT}")
    o("s_waitcnt vmcnt(0)")
    stamp(5)
    if PREF:
        o(f"s_cmp_lg_u32 s{sRND}, 0")
        o("s_cbranch_scc1 NOPF")
        o("s_cmp_gt_u32 s22, 12")
        o("s_cbranch_scc1 NOPF")
        o("s_lshr_b32 s52, s2, 3")
        o("s_mul_i32 s52, s52, 102400")
        o("v_lshlrev_b32 v44, 7, v0")
        o(f"buffer_load_dword v127, v44, {sr(sP,4)}, s52 offen{SC1}")
        lab("NOPF")
    for i in range(8):
        o(f"v_lshlrev_b32 v{100+i}, 2, v{56+2*i}")
    for i in range(8):
        masked(i, "K2_RK", f"ds_add_rtn_u32 v{80+i}, v{100+i}, v7 offset:{CNT}")
    o("s_mov_b64 exec, -1")
    for i in range(8):
        o(f"v_lshlrev_b32_sdwa v108, 7, v{57+2*i} dst_sel:DWORD dst_unused:UNUSED_PAD src0_sel:DWORD src1_sel:WORD_0")
        o(f"v_and_b32 v{57+2*i}, 0xffff0000, v{57+2*i}")
        o(f"v_lshl_or_b32 v{56+2*i}, v{56+2*i}, 24, v108")
    o("s_waitcnt lgkmcnt(0)")
    o("s_barrier")
    stamp(6)
    o(f"ds_read_b64 v[88:89], v5 offset:{CNT}")
    o(f"ds_read_b64 v[90:91], v6 offset:{FLAGS}")
    o("s_waitcnt lgkmcnt(1)")
    o("v_add_u32 v92, 3, v88")
    o("v_add_u32 v93, 3, v89")
    o("v_lshrrev_b32 v92, 2, v92")
    o("v_lshrrev_b32 v93, 2, v93")
    o("v_add_u32 v94, v92, v93")
    o("v_mov_b32 v95, v94")
    wave_scan(95)
    o("v_sub_u32 v96, v95, v94")
    o("v_add_u32 v97, v96, v92")
    o("v_lshl_add_u32 v98, v96, 5, s3")
    o("v_lshl_add_u32 v99, v97, 5, s3")
    o(f"ds_write_b64 v5, v[98:99] offset:{OFFS}")
    o(f"v_readlane_b32 s{sQN}, v95, 63")
    o("s_waitcnt lgkmcnt(0)")
    for i in range(8):
        masked(i, "K2_OF", f"ds_read_b32 v{100+i}, v{100+i} offset:{OFFS}")
    o("s_mov_b64 exec, -1")
    o(f"s_cmp_gt_u32 s{sQN}, {NSLOT//4 - 12}")
    o("s_cbranch_scc1 K2_NARROW")
    o(f"v_readfirstlane_b32 s{sSLOW}, v90")
    o(f"v_readfirstlane_b32 s{sMORE}, v91")
    o(f"s_add_u32 s{sS}, s{sQN}, 7")
    o(f"s_lshr_b32 s{sS}, s{sS}, 3")
    o(f"s_lshr_b32 s{sBASE}, s{sS}, 4")
    o(f"s_and_b32 s{sREM}, s{sS}, 15")
    o(f"s_cmp_lt_u32 s22, s{sREM}")
    o(f"s_cselect_b32 s{sRW}, 1, 0")
    o(f"s_add_u32 s{sRW}, s{sRW}, s{sBASE}")
    o(f"s_mul_i32 s3, s{sBASE}, s22")
    o(f"s_min_u32 s90, s22, s{sREM}")
    o("s_add_u32 s3, s3, s90")
    o("s_lshl_b32 s3, s3, 8")
    o(f"s_add_u32 s3, s3, {SLOT}")
    o(f"s_lshl_b32 s90, s{sRW}, 5")
    o("v_bfe_u32 v7, v0, 3, 3")
    o(f"v_mov_b32 v{vSLOT}, s3")
    o(f"v_mad_u32_u24 v{vSLOT}, v7, s90, v{vSLOT}")
    o("s_waitcnt lgkmcnt(0)")
    for i in range(8):
        o(f"v_lshl_add_u32 v{100+i}, v{80+i}, 3, v{100+i}")
    for i in range(8):
        masked(i, "K2_SC", f"ds_write_b64 v{100+i}, {vr(56+2*i,2)}")
    o("s_mov_b64 exec, -1")
    o("s_waitcnt lgkmcnt(0)")
    o("s_barrier")
    stamp(7)
    cstamp("b", 1)

    o("s_cmp_lg_u32 s22, 15")
    o("s_cbranch_scc1 K2_NONI")
    o(f"s_add_u32 s3, s{sBASE}, 1")
    o("v_cvt_f32_u32 v44, s3")
    o(f"v_cvt_f32_u32 v45, s{sBASE}")
    o("v_rcp_f32 v44, v44")
    o("v_rcp_f32 v45, v45")
    o(f"s_mul_i32 s3, s3, s{sREM}")
    o("s_lshl_b32 s3, s3, 3")
    o("v_cvt_f32_u32 v46, s3")
    o(f"s_lshl_b32 s90, s{sREM}, 3")
    o("v_add_u32 v100, -1, v97")
    o("v_add_u32 v101, -1, v95")
    for q in (96, 97, 100, 101):
        o(f"v_cvt_f32_u32 v48, v{q}")
        o("v_add_f32 v48, 0.5, v48")
        o("v_sub_f32 v49, v48, v46")
        o("v_mul_f32 v48, v48, v44")
        o("v_mul_f32 v49, v49, v45")
        o("v_cvt_u32_f32 v48, v48")
        o("v_cvt_u32_f32 v49, v49")
        o(f"v_cmp_gt_u32 vcc, s3, v{q}")
        o("v_add_u32 v49, s90, v49")
        o("s_nop 0")
        o(f"v_cndmask_b32 v{q}, v49, v48, vcc")
    for (rf, rl, nq, cn) in ((96, 100, 92, 88), (97, 101, 93, 89)):
        o(f"v_sub_u32 v{rl}, v{rl}, v{rf}")
        o(f"v_add_u32 v{rl}, 1, v{rl}")
        o(f"v_cmp_lt_u32 vcc, 0, v{nq}")
        o(f"v_lshlrev_b32 v{nq}, 2, v{nq}")
        o(f"v_sub_u32 v{nq}, v{nq}, v{cn}")
        o(f"v_cndmask_b32 v{rl}, 0, v{rl}, vcc")
        o(f"v_and_b32 v{rf}, 0xff, v{rf}")
        o(f"v_lshl_or_b32 v{rf}, v{rl}, 8, v{rf}")
        o(f"v_lshl_or_b32 v{rf}, v{nq}, 16, v{rf}")
    o(f"ds_write_b64 v5, v[96:97] offset:{NINFO}")
    lab("K2_NONI")
    o(f"s_cmp_eq_u32 s{sRW}, 0")
    o("s_cbranch_scc1 K2_MAIN_DONE")
    o(f"s_cmp_lg_u32 s{sSLOW}, 0")
    o("s_cbranch_scc1 K2_MAIN_S")
    gen_main("F", False)
    gen_main("S", True)
    lab("K2_MAIN_DONE")
    o("s_waitcnt lgkmcnt(0)")
    stamp(8)
    cstamp("b", 2)
    o("s_cmp_ge_u32 s22, 14")
    o("s_cbranch_scc1 K2_IDLE")
    o("v_and_b32 v6, 15, v0")
    o(f"s_lshl_b32 s3, s{sTILE}, 4")
    o("v_add_u32 v6, s3, v6")
    o("v_and_b32 v5, 48, v0")
    o("v_lshlrev_b32 v7, 2, v6")
    o(f"s_lshl_b32 s3, s{sHALF}, 6")
    o("v_add_u32 v36, s3, v5")
    o(f"v_mad_u32_u24 v37, v6, s{sRS}, v36")
    o(f"v_add_u32 v37, {PART}, v37")
    o(f"s_movk_i32 s3, {AGG_STRIDE}")
    o("v_mad_u32_u24 v41, v6, s3, v36")
    o("v_mad_u32_u24 v42, v6, s3, v5")
    o("v_lshlrev_b32 v40, 4, v0")
    o("v_and_b32 v40, 0x70, v40")
    o("v_xor_b32 v40, v40, v5")
    o("v_lshl_add_u32 v40, v6, 7, v40")
    o(f"v_add_u32 v40, {XT}, v40")
    o("v_xor_b32 v44, 64, v40")
    o("v_and_b32 v43, 63, v0")
    o("v_lshlrev_b32 v43, 4, v43")
    o(f"s_lshl_b32 s3, s{sHALF}, 13")
    o(f"s_add_u32 s3, s3, {WUF}")
    o("v_add_u32 v43, s3, v43")
    o("ds_read_b128 v[88:91], v40")
    o("ds_read_b128 v[92:95], v44")
    for ks in range(4):
        for sub in range(2):
            o(f"ds_read_b128 {vr(56+16*sub+4*ks,4)}, v43 offset:{4096*sub + 1024*ks}")
    srd(sOUT, 16, size=N*128)
    o(f"s_mov_b32 s90, 0x{NLN2:08x}")
    o("s_mov_b32 s91, s90")
    bop = ["v[88:91]", "v[92:95]", "v[96:99]", "v[100:103]"]
    def mm(ks):
        for sub in range(2):
            dd = vr(48+4*sub, 4)
            o(f"v_mfma_f32_16x16x32_bf16 {dd}, {vr(56+16*sub+4*ks,4)}, {bop[ks]}, {'0' if ks == 0 else dd}")
    o("s_waitcnt lgkmcnt(0)")
    mm(0); mm(1)
    o("s_barrier")
    stamp(9)
    o(f"ds_read_b32 v38, v7 offset:{NINFO}")
    o(f"s_cmp_eq_u32 s{sRDONE}, 0")
    o("s_cbranch_scc1 K2_R0")
    o(f"v_add_u32 v39, {(QT-PART) & 0xffffffff}, v37")
    o("ds_read_b128 v[104:107], v39")
    o("ds_read_b128 v[108:111], v39 offset:128")
    o("s_waitcnt lgkmcnt(0)")
    silu_f(96, 104)
    o("v_lshrrev_b32 v39, 16, v38")
    o("v_cvt_f32_u32 v39, v39")
    o("v_cmp_lt_f32 vcc, 0, v39")
    o("s_and_saveexec_b64 s[80:81], vcc")
    for k in range(8):
        o(f"v_fma_f32 v{A+k}, -v39, v{96+k}, v{A+k}")
    o("s_mov_b64 exec, -1")
    o("v_and_b32 v39, 0xff, v38")
    o(f"v_mad_u32_u24 v37, v39, s{sRS}, v37")
    o("v_bfe_u32 v38, v38, 8, 8")
    o("s_branch K2_RED")
    lab("K2_R0")
    o("s_waitcnt lgkmcnt(0)")
    o("v_and_b32 v39, 0xff, v38")
    o(f"v_mad_u32_u24 v37, v39, s{sRS}, v37")
    for m in range(3):
        o(f"ds_read_b128 {vr(96+8*m,4)}, v37 offset:{RS*m}")
        o(f"ds_read_b128 {vr(100+8*m,4)}, v37 offset:{RS*m+128}")
    o("v_cvt_f32_ubyte2 v44, v38")
    o("v_bfe_u32 v38, v38, 8, 8")
    for p in range(4):
        pk("mul", A+2*p, vr(A+2*p,2), "v[44:45]", mods="op_sel_hi:[1,0] neg_lo:[0,1] neg_hi:[0,1]")
    o(f"s_cmp_eq_u32 s{sSLOW}, 0")
    o("s_cbranch_scc1 K2_RED2")
    o("v_cmp_eq_f32 vcc, 0, v44")
    o("s_and_b64 exec, exec, vcc")
    for p in range(4):
        o(f"v_mov_b64 {vr(A+2*p,2)}, 0")
    o("s_mov_b64 exec, -1")
    o("s_branch K2_RED2")
    lab("K2_RED")
    for m in range(3):
        o(f"ds_read_b128 {vr(96+8*m,4)}, v37 offset:{RS*m}")
        o(f"ds_read_b128 {vr(100+8*m,4)}, v37 offset:{RS*m+128}")
    lab("K2_RED2")
    o(f"v_add_u32 v37, {3*RS}, v37")
    for m in range(3):
        o(f"v_cmp_lt_i32 vcc, {m}, v38")
        o("s_and_b64 exec, exec, vcc")
        o(f"s_waitcnt lgkmcnt({4-2*m})")
        for p in range(4):
            pk("add", A+2*p, vr(A+2*p,2), vr(96+8*m+2*p,2))
    o("v_cmp_lt_i32 vcc, 3, v38")
    o("v_subrev_u32 v38, 3, v38")
    o("s_and_b64 exec, exec, vcc")
    o("s_cbranch_execnz K2_RED")
    o("s_mov_b64 exec, -1")
    o(f"s_cmp_eq_u32 s{sMORE}, 0")
    o("s_cbranch_scc1 K2_FINAL")
    lab("K2_NEXT")
    o(f"s_add_u32 s{sRND}, s{sRND}, s{sSTEP}")
    o(f"s_add_u32 s{sRDONE}, s{sRDONE}, 1")
    lab("K2_REDO")
    o("s_waitcnt lgkmcnt(0)")
    o("s_barrier")
    prefill()
    o("v_and_b32 v7, 15, v0")
    o(f"v_add_u32 v7, s{sRND}, v7")
    o("v_add_u32 v6, 16, v7")
    o(f"s_cmp_eq_u32 s{sSTEP}, 32")
    o("s_cbranch_scc1 K2_WIDE")
    o("v_mov_b32 v6, 0x100000")
    lab("K2_WIDE")
    o("s_waitcnt lgkmcnt(0)")
    o("s_barrier")
    o("s_branch K2_ROUND")
    lab("K2_NARROW")
    o(f"s_mov_b32 s{sSTEP}, 16")
    o("s_branch K2_REDO")
    lab("K2_IDLE")
    o("s_barrier")
    o(f"s_cmp_eq_u32 s{sMORE}, 0")
    o("s_cbranch_scc0 K2_NEXT")
    o("s_branch K2_END")
    lab("K2_FINAL")
    for p in range(4):
        pk("mul", A+2*p, vr(A+2*p,2), "s[90:91]")
    for k in range(4):
        o(f"v_cvt_pk_bf16_f32 v{96+k}, v{A+4+k}, v{A+k}")
    o(f"ds_write_b128 v41, v[96:99] offset:{AGG}")
    o("s_mul_i32 s3, s22, 1280")
    o("v_and_b32 v36, 15, v0")
    o("v_mul_u32_u24 v36, 80, v36")
    o("v_add3_u32 v36, v36, v5, s3")
    o("v_bfe_u32 v37, v0, 2, 4")
    o("v_and_b32 v38, 3, v0")
    o("v_lshlrev_b32 v38, 4, v38")
    o("v_mul_u32_u24 v39, 80, v37")
    o("v_add3_u32 v39, v39, v38, s3")
    o("v_lshl_add_u32 v4, v37, 7, v38")
    o(f"s_lshl_b32 s3, s{sHALF}, 6")
    o(f"s_add_u32 s3, s3, s{sROWB}")
    o("v_add_u32 v4, s3, v4")
    o(f"s_lshl_b32 s3, s{sTILE}, 4")
    o("s_sub_u32 s3, 98, s3")
    o("v_cmp_gt_u32 vcc, s3, v37")
    o(f"s_mov_b32 s90, 0x{NLOG2E:08x}")
    o("s_mov_b32 s91, s90")
    o("s_waitcnt lgkmcnt(0)")
    o("s_barrier")
    stamp(10)
    o(f"ds_read_b128 v[96:99], v42 offset:{AGG}")
    o(f"ds_read_b128 v[100:103], v42 offset:{AGG+64}")
    o("s_waitcnt lgkmcnt(1)")
    mm(2)
    o("s_waitcnt lgkmcnt(0)")
    mm(3)
    o("s_nop 7")
    for p in range(4):
        pk("mul", 112+2*p, vr(48+2*p,2), "s[90:91]")
    for k in range(8):
        o(f"v_exp_f32 v{112+k}, v{112+k}")
    o("s_nop 0")
    for p in range(4):
        pk("add", 112+2*p, vr(112+2*p,2), "1.0", mods="op_sel_hi:[1,0]")
    for k in range(8):
        o(f"v_rcp_f32 v{112+k}, v{112+k}")
    o("s_nop 0")
    for p in range(4):
        pk("mul", 112+2*p, vr(112+2*p,2), vr(48+2*p,2))
    for k in range(4):
        o(f"v_cvt_pk_bf16_f32 v{120+k}, v{112+2*k}, v{113+2*k}")
    o(f"ds_write_b128 v36, v[120:123] offset:{OTR}")
    o("s_waitcnt lgkmcnt(0)")
    o(f"ds_read_b128 v[120:123], v39 offset:{OTR}")
    o("s_and_b64 exec, exec, vcc")
    o("s_cbranch_execz K2_END")
    o("s_waitcnt lgkmcnt(0)")
    o(f"buffer_store_dwordx4 v[120:123], v4, {sr(sOUT,4)}, 0 offen{os.environ.get('OSC',' sc1')}")
    lab("K2_END")
    if STAMP: o("s_waitcnt vmcnt(0)")
    stamp(11)
    stamp_flush(12)
    lab("K2_EXIT")
    o("s_endpgm")

def main(path):
    hdr = open("gather_scatter__mpnn_edge_mlp__graph.s.ref").read().split("\n")
    head = [h for h in hdr if h.startswith(";") and "@launch" not in h]
    L.extend(head)
    L.append(f"; @launch grid=({NBK},1,1) block=(1024,1,1) lds={LDS}")
    L.append('.amdgcn_target "amdgcn-amd-amdhsa--gfx950"')
    L.append(".text")
    gen()
    L.append('.section .rodata,"a"')
    L.append(".p2align 6")
    L.append(f".amdhsa_kernel {KN}")
    L.append("  .amdhsa_next_free_vgpr 128")
    L.append(f"  .amdhsa_next_free_sgpr {102 if STAMP else 100}")
    L.append("  .amdhsa_accum_offset 128")
    L.append("  .amdhsa_group_segment_fixed_size 0")
    L.append("  .amdhsa_kernarg_size 72")
    L.append("  .amdhsa_user_sgpr_count 2")
    L.append("  .amdhsa_user_sgpr_kernarg_segment_ptr 1")
    L.append("  .amdhsa_system_sgpr_workgroup_id_x 1")
    L.append("  .amdhsa_float_denorm_mode_32 3")
    L.append(".end_amdhsa_kernel")
    open(path, "w").write("\n".join(x for x in L if x is not None) + "\n")
    print(f"{KN}:{NBK}:1024:{LDS}")

if __name__ == "__main__":
    main(sys.argv[1] if len(sys.argv) > 1 else "v7.s")
```

```python
import sys, os

KN = "gather_scatter__mpnn_edge_mlp__graph_kernel"
N = 25000; E = 800000; NB = 98; NBK = 256; CH = 3200; NCH = 250
P_SIZE = N * 128
REC_OFF = 0x320000
RECB_OFF = 0x640000
DESC_OFF = 0x940000
WS_SIZE = 0x980000
NTILE = 782
NONOFF = 248
SPIN = 0x10000
NLOG2E = 0xbfb8aa3b
NLN2 = 0xbf317218
TEN = 0x41200000
DUMMY = 0x00FFFF80 | (98 << 24)
OOB = 0x7fffff00

CNT = 0
OFFS = 512
FLAGS = 1152
NINFO = 1280
SLOT = 1792
NSLOT = 4608
PART = SLOT + NSLOT * 8
RS = 272
QT = PART + 226 * RS
XT = (QT + 112 * RS + 127) & ~127
WUF = XT + 112 * 128
LDS = WUF + 16384
AGG = SLOT; AGG_STRIDE = 144
OTR = SLOT + 16384
C1 = PART; O1 = PART + 1024; R1 = PART + 2048; EF1 = PART + 27648
PTA = PART + 28672; PTB = PART
SYNC = FLAGS + 16
RAWU = SLOT; RAW2 = SLOT + 16384
W2F = PART
DLDS = PART + 8192 + 256
assert DLDS % 256 == 0 and DLDS // 256 + 3 < 256
assert PART % 128 == 0

STAMP = int(os.environ.get("STAMP", "0"))
ARR = os.environ.get("ARR", "atomic")
NSH = int(os.environ.get("NSH", "64"))
SHSTR = int(os.environ.get("SHSTR", "4"))
SLEEP = int(os.environ.get("SLEEP", "2"))
PFIRST = int(os.environ.get("PFIRST", "0"))
NODOT = int(os.environ.get("NODOT", "0"))
PREF = int(os.environ.get("PREF", "0"))
PRIO = int(os.environ.get("PRIO", "1"))
DBG_OFF = 0x1000000
STAMP_SG = [95, 98, 99, 100, 101, 36, 37, 38, 39, 40, 41, 42]

L = []
def o(s): L.append("    " + s)
def lab(s): L.append(s + ":")
def vr(a, n): return f"v[{a}:{a+n-1}]"
def sr(a, n): return f"s[{a}:{a+n-1}]"

def stamp(idx):
    if not STAMP: return
    o("s_memrealtime s[96:97]")
    o("s_waitcnt lgkmcnt(0)")
    o(f"s_mov_b32 s{STAMP_SG[idx]}, s96")
CYC = os.environ.get("CYC", "")
def cstamp(where, idx):
    if not STAMP or where not in CYC.split(","): return
    o("s_memtime s[96:97]")
    o("s_waitcnt lgkmcnt(0)")
    o(f"s_mov_b32 s{STAMP_SG[idx]}, s96")
def stamp_flush(n):
    if not STAMP: return
    if STAMP == 2:
        o("s_mov_b64 exec, -1")
        o("s_cmp_lg_u32 s22, 5")
        o("s_cbranch_scc1 K2_EXIT")
        o("v_mov_b32 v1, 0")
        o(f"ds_read_b32 v3, v1 offset:{FLAGS+8}")
        o("s_mov_b64 exec, 1")
        o("s_waitcnt lgkmcnt(0)")
        for i in range(n):
            o(f"v_sub_u32 v2, s{STAMP_SG[i]}, v3")
            o("v_max_i32 v2, 0, v2")
            o(f"global_atomic_umax v1, v2, s[18:19] offset:{4*i}")
        return
    o("s_mov_b64 exec, -1")
    o("s_lshl_b32 s96, s2, 4")
    o("s_add_u32 s96, s96, s22")
    o("s_lshl_b32 s96, s96, 6")
    o(f"s_add_u32 s96, s96, {DBG_OFF + 0x100000}")
    o("s_add_u32 s96, s20, s96")
    o("s_addc_u32 s97, s21, 0")
    o("v_mov_b32 v1, 0")
    for i in range(n):
        o(f"v_mov_b32 v2, s{STAMP_SG[i]}")
        o(f"global_store_dword v1, v2, s[96:97] offset:{4*i}")

def srd(d, base_lo, off=None, size=None, off_s=None):
    if off is None and off_s is None:
        o(f"s_mov_b64 {sr(d,2)}, {sr(base_lo,2)}")
    else:
        first = True
        for x in (off, off_s):
            if x is None: continue
            src_lo = f"s{base_lo}" if first else f"s{d}"
            src_hi = f"s{base_lo+1}" if first else f"s{d+1}"
            o(f"s_add_u32 s{d}, {src_lo}, {x}")
            o(f"s_addc_u32 s{d+1}, {src_hi}, 0")
            first = False
    o(f"s_mov_b32 s{d+2}, {size}")
    o(f"s_mov_b32 s{d+3}, 0x20000")

def wave_scan(v, op="add_u32"):
    for sh in (1, 2, 4, 8):
        o("s_nop 1")
        o(f"v_{op}_dpp v{v}, v{v}, v{v} row_shr:{sh} row_mask:0xf bank_mask:0xf bound_ctrl:0")
    o("s_nop 1")
    o(f"v_{op}_dpp v{v}, v{v}, v{v} row_bcast:15 row_mask:0xa bank_mask:0xf")
    o("s_nop 1")
    o(f"v_{op}_dpp v{v}, v{v}, v{v} row_bcast:31 row_mask:0xc bank_mask:0xf")

def lds_sync(tag, idx, n, vz, v1, vt):
    o("s_waitcnt lgkmcnt(0)")
    o("s_mov_b64 exec, 1")
    o(f"ds_add_u32 v{vz}, v{v1} offset:{SYNC if idx is None else SYNC}+{idx}" if False else f"ds_add_u32 v{vz}, v{v1} offset:{SYNC}" if idx is None else f"ds_add_u32 v{vz}, v{v1} offset:{SYNC + 4*idx}")
    lab(f"LS_{tag}")
    o(f"ds_read_b32 v{vt}, v{vz} offset:{SYNC if idx is None else SYNC + 4*idx}")
    o("s_waitcnt lgkmcnt(0)")
    o(f"v_readfirstlane_b32 s53, v{vt}")
    o(f"s_cmp_ge_u32 s53, {n}")
    o(f"s_cbranch_scc1 LSX_{tag}")
    o("s_sleep 1")
    o(f"s_branch LS_{tag}")
    lab(f"LSX_{tag}")
    o("s_mov_b64 exec, -1")

def pk(op, d, *src, mods=""):
    o(f"v_pk_{op}_f32 {vr(d,2)}, " + ", ".join(src) + (" " + mods if mods else ""))

vJ16, vQC, vOC, vSLOT, vQA, vQAN, vT0 = 1, 2, 3, 4, 5, 6, 7
W, ACC, A, DESC, GA, RA, RB, PA, PB, Q, NN, D, T, EE = 8, 16, 24, 32, 36, 40, 48, 56, 72, 88, 96, 104, 112, 120
sX, sP, sWS, sWM, sWU, sOUT = 24, 28, 32, 36, 40, 44
sMASK = 56
sQN, sS, sBASE, sREM, sRW, sCNT, sK, sM24 = 72, 73, 74, 75, 76, 77, 78, 79
sVIO = 82
sSLOW, sMORE, sRND = 84, 85, 23
sTILE, sHALF, sROWB, sBK = 86, 87, 88, 89
sSTEP, sRDONE, sRS, sREC = 48, 49, 50, 93
SC1 = " sc1"
SST = os.environ.get("SST", " sc1")
GSC = os.environ.get("GSC", " sc1")

def gathers(R, P):
    for i in range(4):
        o(f"v_and_or_b32 v{GA+i}, v{R+2*i}, s{sM24}, v{vJ16}")
        o(f"buffer_load_dwordx4 {vr(P+4*i,4)}, v{GA+i}, {sr(sP,4)}, 0 offen{GSC}")

def compute_quad(R, RN, P, slow, QA, QN, so):
    for i in range(4):
        TT = NN if (i == 0 and not slow) else T
        for p in range(4):
            pk("fma", TT+2*p, vr(R+2*i,2), vr(W+2*p,2), vr(Q+2*p,2), mods="op_sel:[1,0,0] op_sel_hi:[1,1,1]")
        if i == 3:
            o(f"v_add_u32 v{vT0}, v{QA}, v{vOC}")
            o(f"v_lshrrev_b32 v{QN}, 24, v{RN}")
            o(f"v_mad_u32_u24 v{QN}, v{QN}, s{sRS}, v{vQC}")
            o(f"ds_read_b128 {vr(Q,4)}, v{QN}")
            o(f"ds_read_b128 {vr(Q+4,4)}, v{QN} offset:128")
            o(f"ds_read_b128 {vr(R,4)}, v{vSLOT} offset:{so}")
            o(f"ds_read_b128 {vr(R+4,4)}, v{vSLOT} offset:{so+16}")
            if so == 96: o(f"v_add_u32 v{vSLOT}, 64, v{vSLOT}")
        if NODOT:
            for k in range(4):
                o(f"v_lshlrev_b32 v{EE+k}, 16, v{P+4*i+k}")
            pk("add", TT, vr(P+4*i,2), vr(TT,2))
            pk("add", TT+2, vr(P+4*i+2,2), vr(TT+2,2))
            pk("add", TT+4, vr(EE,2), vr(TT+4,2))
            pk("add", TT+6, vr(EE+2,2), vr(TT+6,2))
        else:
            for k in range(4):
                o(f"v_dot2_f32_bf16 v{TT+4+k}, v{P+4*i+k}, s{sK}, v{TT+4+k}")
            pk("add", TT, vr(P+4*i,2), vr(TT,2))
            pk("add", TT+2, vr(P+4*i+2,2), vr(TT+2,2))
        for k in range(8):
            o(f"v_exp_f32 v{EE+k}, v{TT+k}")
        if slow:
            for p in range(4):
                pk("add", EE+2*p, vr(EE+2*p,2), "1.0", mods="op_sel_hi:[1,0]")
            for k in range(8):
                o(f"v_rcp_f32 v{EE+k}, v{EE+k}")
            o("s_nop 0")
            for p in range(4):
                pk("fma", ACC+2*p, vr(T+2*p,2), vr(EE+2*p,2), vr(ACC+2*p,2))
        elif i == 0:
            for p in range(4):
                pk("add", D+2*p, vr(EE+2*p,2), "1.0", mods="op_sel_hi:[1,0]")
        else:
            for p in range(4):
                pk("fma", NN+2*p, vr(NN+2*p,2), vr(EE+2*p,2), vr(NN+2*p,2))
            for p in range(4):
                pk("fma", NN+2*p, vr(T+2*p,2), vr(D+2*p,2), vr(NN+2*p,2))
            for p in range(4):
                pk("fma", D+2*p, vr(D+2*p,2), vr(EE+2*p,2), vr(D+2*p,2))
    if not slow:
        for k in range(8):
            o(f"v_rcp_f32 v{EE+k}, v{D+k}")
        o("s_nop 0")
        for p in range(4):
            pk("fma", ACC+2*p, vr(NN+2*p,2), vr(EE+2*p,2), vr(ACC+2*p,2))
    o(f"ds_write_b128 v{vT0}, {vr(ACC,4)}")
    o(f"ds_write_b128 v{vT0}, {vr(ACC+4,4)} offset:128")

def gen_main(tag, slow):
    lab(f"K2_MAIN_{tag}")
    o(f"ds_read_b128 {vr(RA,4)}, v{vSLOT}")
    o(f"ds_read_b128 {vr(RA+4,4)}, v{vSLOT} offset:16")
    o(f"ds_read_b128 {vr(RB,4)}, v{vSLOT} offset:32")
    o(f"ds_read_b128 {vr(RB+4,4)}, v{vSLOT} offset:48")
    for p in range(4):
        o(f"v_mov_b64 {vr(ACC+2*p,2)}, 0")
    o(f"s_sub_u32 s{sCNT}, s{sRW}, 1")
    if PRIO: o("s_setprio 3")
    o("s_waitcnt lgkmcnt(2)")
    gathers(RA, PA)
    o(f"v_lshrrev_b32 v{vQA}, 24, v{RA}")
    o(f"v_mad_u32_u24 v{vQA}, v{vQA}, s{sRS}, v{vQC}")
    o(f"ds_read_b128 {vr(Q,4)}, v{vQA}")
    o(f"ds_read_b128 {vr(Q+4,4)}, v{vQA} offset:128")
    o("s_waitcnt lgkmcnt(0)")
    for (x, R, RN, P, PN, QA, QN, so) in (("A", RA, RB, PA, PB, vQA, vQAN, 64), ("B", RB, RA, PB, PA, vQAN, vQA, 96)):
        t = tag + x
        lab(f"K2_LOOP_{t}")
        o(f"s_cmp_eq_u32 s{sCNT}, 0")
        o(f"s_cbranch_scc1 K2_LAST_{t}")
        if PRIO:
            o(f"s_cmp_gt_u32 s{sCNT}, 2")
            o(f"s_cbranch_scc1 K2_PR_{t}")
            o("s_setprio 2")
            o(f"s_cmp_eq_u32 s{sCNT}, 2")
            o(f"s_cbranch_scc1 K2_PR_{t}")
            o("s_setprio 1")
            lab(f"K2_PR_{t}")
        o("s_waitcnt lgkmcnt(2)")
        gathers(RN, PN)
        o("s_waitcnt vmcnt(4)")
        o(f"s_branch K2_GO_{t}")
        lab(f"K2_LAST_{t}")
        if PRIO: o("s_setprio 0")
        o("s_waitcnt vmcnt(0) lgkmcnt(2)")
        lab(f"K2_GO_{t}")
        compute_quad(R, RN, P, slow, QA, QN, so)
        o(f"s_cmp_eq_u32 s{sCNT}, 0")
        o("s_cbranch_scc1 K2_MAIN_DONE")
        o(f"s_sub_u32 s{sCNT}, s{sCNT}, 1")
        o(f"v_cmp_ne_u32 vcc, v{vQAN}, v{vQA}")
        o("s_and_saveexec_b64 s[80:81], vcc")
        o(f"s_cbranch_execz K2_KEEP_{t}")
        for p in range(4):
            o(f"v_mov_b64 {vr(ACC+2*p,2)}, 0")
        lab(f"K2_KEEP_{t}")
        o("s_mov_b64 exec, -1")
        if x == "B":
            o(f"s_branch K2_LOOP_{tag}A")

def silu_f(dst, src):
    for k in range(8):
        o(f"v_exp_f32 v{dst+k}, v{src+k}")
    o("s_nop 0")
    for p in range(4):
        pk("add", dst+2*p, vr(dst+2*p,2), "1.0", mods="op_sel_hi:[1,0]")
    for k in range(8):
        o(f"v_rcp_f32 v{dst+k}, v{dst+k}")
    o("s_nop 0")
    for p in range(4):
        pk("mul", dst+2*p, vr(dst+2*p,2), vr(src+2*p,2))

def masked(i, tagp, instr):
    o(f"s_mov_b64 exec, {sr(sMASK+2*i,2)}")
    skip = (i % 2 == 1)
    if skip: o(f"s_cbranch_execz {tagp}{i}")
    o(instr)
    if skip: lab(f"{tagp}{i}")

def prefill():
    n = prefill.n
    o(f"v_mov_b32 v120, 0x{DUMMY:08x}")
    o("v_mov_b32 v121, 0")
    o("v_mov_b32 v122, v120")
    o("v_mov_b32 v123, 0")
    o("v_lshlrev_b32 v124, 4, v0")
    for m in range(2):
        o(f"ds_write_b128 v124, v[120:123] offset:{SLOT + m*16384}")
    o("s_cmp_gt_u32 s22, 3")
    o(f"s_cbranch_scc1 K2_PF1_{n}")
    o(f"ds_write_b128 v124, v[120:123] offset:{SLOT + 32768}")
    lab(f"K2_PF1_{n}")
    o("s_cmp_lg_u32 s22, 15")
    o(f"s_cbranch_scc1 K2_PF2_{n}")
    o("v_and_b32 v125, 63, v0")
    o("v_lshlrev_b32 v125, 3, v125")
    o("v_mov_b32 v120, 0")
    o(f"ds_write_b64 v125, v[120:121] offset:{CNT}")
    o(f"ds_write_b32 v121, v120 offset:{FLAGS+4}")
    lab(f"K2_PF2_{n}")
    prefill.n += 1
prefill.n = 0

def bulk_dma():
    srd(sWU, 14, size=128*128)
    o("v_lshlrev_b32 v124, 4, v0")
    o("s_lshl_b32 s52, s22, 10")
    o(f"s_add_u32 s53, s52, {RAWU}")
    o("s_mov_b32 m0, s53")
    o("v_add_u32 v125, 0x2000, v124")
    o(f"buffer_load_dwordx4 v124, {sr(sWU,4)}, 0 offen lds")
    o(f"s_add_u32 s53, s52, {RAW2}")
    o("s_mov_b32 m0, s53")
    o("v_lshlrev_b32 v126, 1, v0")
    o("v_and_b32 v126, 0x70, v126")
    o(f"buffer_load_dwordx4 v125, {sr(sWM,4)}, 0 offen lds")
    o("v_xor_b32 v126, v126, v124")
    o(f"s_mul_i32 s90, s{sBK}, 12544")
    o("v_add_u32 v126, s90, v126")
    o("s_and_b32 s53, s22, 14")
    o("s_cmp_lg_u32 s53, 12")
    o(f"s_cbranch_scc1 BD_{bulk_dma.n}")
    o(f"s_add_u32 s53, s52, {XT}")
    o("s_mov_b32 m0, s53")
    o("s_nop 0")
    o(f"buffer_load_dwordx4 v126, {sr(sX,4)}, 0 offen lds")
    lab(f"BD_{bulk_dma.n}")
    bulk_dma.n += 1
bulk_dma.n = 0

def gen():
    L.append(f".globl {KN}")
    L.append(".p2align 8")
    L.append(f".type {KN},@function")
    lab(KN)
    o(f"s_cmp_ge_u32 s2, {NBK}")
    o("s_cbranch_scc1 K2_EXIT")
    o("s_load_dwordx16 s[4:19], s[0:1], 0")
    o("s_load_dwordx2 s[20:21], s[0:1], 64")
    o("v_lshrrev_b32 v1, 6, v0")
    o("s_and_b32 s3, s2, 7")
    o("v_readfirstlane_b32 s22, v1")
    o("s_lshl_b32 s3, s3, 5")
    o(f"s_lshr_b32 s{sBK}, s2, 3")
    o(f"s_or_b32 s{sBK}, s{sBK}, s3")
    o(f"s_mov_b64 {sr(sVIO,2)}, 0")
    o("s_mov_b32 s3, -1")
    o("s_sub_u32 s23, s22, 13")
    o(f"s_mov_b32 s46, {PTA}")
    o("s_mov_b32 s47, 8")
    o("s_cmp_ge_u32 s22, 13")
    o("s_cbranch_scc1 P_ROLE")
    o(f"s_cmp_lt_u32 s2, {NCH}")
    o("s_cbranch_scc1 SORT_ROLE")
    o("s_mul_i32 s3, s2, 3")
    o("s_add_u32 s3, s3, s22")
    o("s_sub_u32 s3, s3, 750")
    o("s_mov_b32 s23, s22")
    o(f"s_mov_b32 s46, {PTB}")
    o("s_mov_b32 s47, 12")
    o("s_cmp_lt_u32 s22, 3")
    o("s_cbranch_scc1 P_ROLE")
    o("s_waitcnt lgkmcnt(0)")
    stamp(0)
    srd(sX, 4, size=N*128)
    srd(sWM, 12, size=129*128)
    o("s_barrier")
    stamp(1)
    o("v_mov_b32 v61, 0")
    o("v_mov_b32 v62, 0")
    o("v_mov_b64 v[20:21], 0")
    o("s_cmp_lg_u32 s22, 11")
    o("s_cbranch_scc1 NONCE1I")
    o(f"s_mov_b32 s52, {SPIN}")
    o("v_mov_b32 v12, 0")
    lab("NONCEI")
    o("s_waitcnt vmcnt(0)")
    o("v_readfirstlane_b32 s53, v62")
    o("s_sub_u32 s52, s52, 1")
    o("s_cmp_eq_u32 s52, 0")
    o("s_cbranch_scc1 NONCE2I")
    o("s_cmp_lg_u32 s53, 0")
    o("s_cbranch_scc1 NONCE2I")
    o("s_sleep 8")
    o(f"global_load_dwordx2 v[62:63], v12, s[18:19] offset:{NONOFF} sc1")
    o("s_branch NONCEI")
    lab("NONCE2I")
    o(f"ds_write_b64 v12, v[62:63] offset:{FLAGS+8}")
    lab("NONCE1I")
    stamp(2)
    bulk_dma()
    o("s_branch PH1_DONE")

    lab("SORT_ROLE")
    o("s_movk_i32 s3, 800")
    o("v_cmp_gt_u32 s[44:45], s3, v0")
    o("v_lshlrev_b32 v1, 4, v0")
    o("v_lshlrev_b32 v2, 3, v0")
    o("v_and_b32 v7, 63, v0")
    o("v_lshlrev_b32 v6, 4, v7")
    o("v_lshlrev_b32 v7, 1, v7")
    o("v_add_u32 v7, 0x4000, v7")
    o("s_mul_i32 s3, s2, 12800")
    o("s_mul_i32 s23, s2, 6400")
    o("s_waitcnt lgkmcnt(0)")
    stamp(0)
    def sort_loads():
        o("buffer_load_dwordx4 v[16:19], v1, s[56:59], 0 offen")
        o("buffer_load_dwordx4 v[8:11], v1, s[60:63], 0 offen")
        o("buffer_load_dwordx2 v[24:25], v2, s[64:67], 0 offen")
        o(f"buffer_load_ushort v7, v7, {sr(sWM,4)}, 0 offen")
    srd(56, 10, off_s="s3", size=12800)
    srd(60, 8, off_s="s3", size=12800)
    srd(64, 6, off_s="s23", size=6400)
    srd(sWM, 12, size=129*128)
    if not PFIRST: sort_loads()
    o("s_cmp_lg_u32 s22, 0")
    o("s_cbranch_scc1 S1")
    o("v_mov_b64 v[28:29], 0")
    o("v_mov_b64 v[30:31], 0")
    o(f"ds_write_b128 v6, v[28:31] offset:{C1}")
    o("s_waitcnt lgkmcnt(0)")
    lab("S1")
    o("s_barrier")
    if PFIRST: sort_loads()
    srd(68, 20, off=REC_OFF, off_s="s3", size=12800)
    o("s_mul_i32 s3, s2, 3200")
    srd(72, 20, off=RECB_OFF, off_s="s3", size=3200)
    srd(sX, 4, size=N*128)
    srd(sWS, 20, size=WS_SIZE)
    o("s_mov_b64 exec, s[44:45]")
    o("v_mov_b32 v5, 1")
    o("s_movk_i32 s46, 98")
    o("s_waitcnt vmcnt(3)")
    for i in range(4):
        d = 16 + i
        o(f"v_mul_u32_u24 v{32+i}, 0xa730, v{d}")
        o(f"v_lshrrev_b32 v{40+i}, 22, v{32+i}")
        o(f"v_lshlrev_b32 v{32+i}, 2, v{40+i}")
        o(f"v_mul_u32_u24 v28, s46, v{40+i}")
        o(f"ds_add_rtn_u32 v{40+i}, v{32+i}, v5 offset:{C1}")
        o(f"v_sub_u32 v{d}, v{d}, v28")
    o("s_mov_b64 exec, -1")
    o("v_mov_b32 v5, 1")
    o("v_mov_b32 v61, 0")
    o(f"s_mov_b32 s46, {R1}")
    lds_sync("A", 0, 13, 61, 5, 60)
    o(f"ds_read_b128 v[64:67], v6 offset:{C1}")
    o("s_cmp_lg_u32 s22, 11")
    o("s_cbranch_scc1 NI1")
    o(f"global_load_dwordx2 v[62:63], v61, s[18:19] offset:{NONOFF} sc1")
    lab("NI1")
    o("s_waitcnt lgkmcnt(0)")
    o("v_add_u32 v12, v64, v65")
    o("v_add_u32 v13, v12, v66")
    o("v_add_u32 v14, v13, v67")
    o("v_mov_b32 v68, v14")
    wave_scan(68)
    o("v_sub_u32 v68, v68, v14")
    o("v_add_u32 v69, v68, v64")
    o("v_add_u32 v70, v68, v12")
    o("v_add_u32 v71, v68, v13")
    for k in range(4):
        o(f"v_lshl_add_u32 v{20+k}, v{68+k}, 2, s46")
    o(f"ds_write_b128 v6, v[20:23] offset:{O1}")
    o("s_mov_b64 exec, s[44:45]")
    o("s_waitcnt lgkmcnt(0)")
    for i in range(4):
        o(f"ds_read_b32 v{32+i}, v{32+i} offset:{O1}")
    o("s_cmp_eq_u32 s22, 11")
    o("s_cbranch_scc1 NI2")
    o("s_waitcnt vmcnt(0)")
    lab("NI2")
    o("s_waitcnt vmcnt(1)")
    stamp(1)
    o("s_mov_b32 s3, 0xffff0000")
    for i in range(4):
        ew = 24 + i // 2
        if i % 2 == 0: o(f"v_lshl_or_b32 v{48+i}, v{ew}, 16, v{8+i}")
        else: o(f"v_and_or_b32 v{48+i}, v{ew}, s3, v{8+i}")
    o("s_waitcnt lgkmcnt(0)")
    for i in range(4):
        o(f"v_lshl_add_u32 v{32+i}, v{40+i}, 2, v{32+i}")
        o(f"ds_write_b32 v{32+i}, v{48+i}")
        o(f"v_lshrrev_b32 v{36+i}, 2, v{32+i}")
        o(f"ds_write_b8 v{36+i}, v{16+i} offset:{R1 + 12800 - R1//4}")
    o("v_max3_f32 v28, |v48|, |v49|, |v50|")
    o("v_max_f32 v28, |v51|, v28")
    o("s_mov_b64 exec, -1")
    bulk_dma()
    lds_sync("B", 1, 13, 61, 5, 60)
    stamp(2)
    o("v_mov_b32 v60, v28")
    o(f"ds_read_b128 v[24:27], v1 offset:{R1}")
    o("s_cmp_gt_u32 s22, 3")
    o("s_cbranch_scc1 CO1")
    o(f"ds_read_b128 v[28:31], v1 offset:{R1+12800}")
    o("s_waitcnt lgkmcnt(0)")
    o(f"buffer_store_dwordx4 v[28:31], v1, s[72:75], 0 offen{SST}")
    lab("CO1")
    o("s_waitcnt lgkmcnt(0)")
    o(f"buffer_store_dwordx4 v[24:27], v1, s[68:71], 0 offen{SST}")
    o("v_and_b32 v7, 0x7fff, v7")
    wave_scan(7, "max_u32")
    o("s_nop 1")
    o("v_readlane_b32 s47, v7, 63")
    o("s_lshl_b32 s47, s47, 16")
    o("s_mov_b64 exec, s[44:45]")
    o("v_mul_f32 v60, s47, v60")
    o(f"v_cmp_ngt_f32 vcc, 0x40dd7fb6, v60")
    o(f"s_mov_b64 {sr(sVIO,2)}, vcc")
    o("s_mov_b64 exec, -1")
    o("s_cmp_lg_u32 s22, 11")
    o("s_cbranch_scc1 NONCE1S")
    o(f"s_mov_b32 s52, {SPIN}")
    o("s_waitcnt vmcnt(3)")
    lab("NONCES")
    o("v_readfirstlane_b32 s53, v62")
    o("s_sub_u32 s52, s52, 1")
    o("s_cmp_eq_u32 s52, 0")
    o("s_cbranch_scc1 NONCE2S")
    o("s_cmp_lg_u32 s53, 0")
    o("s_cbranch_scc1 NONCE2S")
    o(f"global_load_dwordx2 v[62:63], v61, s[18:19] offset:{NONOFF} sc1")
    o("s_waitcnt vmcnt(0)")
    o("s_branch NONCES")
    lab("NONCE2S")
    o(f"ds_write_b64 v61, v[62:63] offset:{FLAGS+8}")
    lab("NONCE1S")
    o("s_cmp_lg_u32 s22, 12")
    o("s_cbranch_scc1 S2")
    o("v_add_u32 v19, v71, v67")
    o("v_lshl_or_b32 v20, v69, 12, v68")
    o("v_lshl_or_b32 v20, v70, 24, v20")
    o("v_lshrrev_b32 v21, 8, v70")
    o("v_lshl_or_b32 v21, v71, 4, v21")
    o("v_lshl_or_b32 v21, v19, 16, v21")
    lab("S2")
    o("s_branch PH1_DONE")

    lab("P_ROLE")
    o("v_and_b32 v2, 63, v0")
    o("v_lshlrev_b32 v1, 4, v2")
    o("v_lshlrev_b32 v3, 1, v2")
    o("v_and_b32 v3, 0x70, v3")
    o("v_xor_b32 v3, v3, v1")
    o("v_mov_b32 v61, s47")
    o("s_lshl_b32 s47, s23, 10")
    o("v_add_u32 v5, s47, v1")
    o("v_add_u32 v6, 0x1800, v5")
    o("s_add_u32 s52, s46, s47")
    o("s_mov_b32 m0, s52")
    o("s_lshl_b32 s62, s23, 12")
    o("s_add_u32 s47, s62, s46")
    o("s_add_u32 s47, s47, 9216")
    o("s_mov_b32 s23, s46")
    o("s_cmp_lg_u32 s3, -1")
    o("s_cbranch_scc1 PX")
    o(f"s_mul_i32 s46, s{sBK}, 12544")
    o("s_add_u32 s46, s46, s62")
    o(f"s_add_u32 s62, s62, {XT}")
    for m in range(4):
        o(f"v_add_u32 v{88+m}, s46, v3")
        o(f"v_add_u32 v{92+m}, s46, v1")
    o("s_branch PY")
    lab("PX")
    o("s_mov_b32 s62, s47")
    o("s_mul_i32 s46, s3, 200704")
    o("s_add_u32 s46, s46, 12288")
    o("v_bfe_u32 v4, v0, 4, 2")
    o("s_movk_i32 s53, 12544")
    o("v_mul_u32_u24 v4, s53, v4")
    o("v_add_u32 v4, s46, v4")
    o("v_and_b32 v7, 0xf0, v3")
    o("v_add_u32 v88, v4, v7")
    o("v_and_b32 v7, 0xf0, v1")
    o("v_add_u32 v92, v4, v7")
    for m in range(1, 4):
        o(f"v_add_u32 v{88+m}, {m*(4*12544-1024)}, v88")
        o(f"v_add_u32 v{92+m}, {m*(4*12544-1024)}, v92")
    lab("PY")
    o("s_waitcnt lgkmcnt(0)")
    stamp(0)
    srd(sWM, 12, size=129*128)
    o(f"buffer_load_dwordx4 v5, {sr(sWM,4)}, 0 offen lds")
    o(f"buffer_load_dwordx4 v5, {sr(sWM,4)}, 0 offen offset:3072 lds")
    o("s_add_u32 s52, s52, 0x1800")
    o("s_mov_b32 m0, s52")
    srd(sX, 4, size=N*128)
    o(f"buffer_load_dwordx4 v6, {sr(sWM,4)}, 0 offen lds")
    o("s_mov_b32 m0, s62")
    o("s_nop 0")
    for m in range(4):
        o(f"buffer_load_dwordx4 v{88+m}, {sr(sX,4)}, 0 offen offset:{m*1024} lds")
    o("s_cmp_lg_u32 s22, 15")
    o("s_cbranch_scc1 P1")
    o("v_mov_b64 v[28:29], 0")
    o("v_mov_b64 v[30:31], 0")
    o(f"ds_write_b64 v28, v[28:29] offset:{FLAGS}")
    o(f"ds_write_b128 v28, v[28:31] offset:{SYNC}")
    o("s_cmp_lg_u32 s2, 0")
    o("s_cbranch_scc1 P0")
    o("s_memrealtime s[52:53]")
    o("s_waitcnt lgkmcnt(0)")
    o("s_or_b32 s52, s52, 1")
    o("v_mov_b32 v30, s52")
    o("v_mov_b32 v31, s53")
    o("s_mov_b64 exec, 1")
    o(f"global_store_dwordx2 v28, v[30:31], s[18:19] offset:{NONOFF} sc1")
    o("s_mov_b64 exec, -1")
    lab("P0")
    o("s_waitcnt lgkmcnt(0)")
    lab("P1")
    o("s_barrier")
    srd(sP, 20, size=P_SIZE)
    o("v_and_b32 v7, 31, v0")
    o("v_bfe_u32 v6, v0, 5, 1")
    o("v_add_u32 v5, s47, v3")
    o("v_lshlrev_b32 v4, 4, v0")
    o("v_and_b32 v4, 0x70, v4")
    o("v_lshl_add_u32 v4, v7, 7, v4")
    o("v_add_u32 v45, s62, v4")
    o("v_add_u32 v4, s47, v4")
    o("v_lshlrev_b32 v44, 4, v6")
    o("v_xor_b32 v44, v44, v45")
    for kc in range(1, 4):
        o(f"v_xor_b32 v{44+kc}, {32*kc}, v44")
    o("v_lshlrev_b32 v40, 6, v6")
    o("v_xor_b32 v40, v40, v4")
    for m in range(1, 4):
        o(f"v_xor_b32 v{40+m}, {16*m}, v40")
    o("v_bfe_u32 v48, v7, 2, 1")
    o("v_lshlrev_b32 v48, 4, v48")
    o("v_and_b32 v49, 3, v7")
    o("v_add_u32 v48, v48, v49")
    o("v_lshrrev_b32 v49, 3, v7")
    o("v_lshl_add_u32 v48, v49, 2, v48")
    o("v_lshlrev_b32 v48, 2, v48")
    o("v_lshl_add_u32 v48, v6, 10, v48")
    o("v_add_u32 v48, s23, v48")
    for kc in range(1, 4):
        o(f"v_add_u32 v{48+kc}, {2048*kc}, v48")
    o("s_mov_b32 s56, 0x05040100")
    o("s_mov_b32 s57, 0x07060302")
    o(f"s_mov_b32 s58, 0x{NLOG2E:08x}")
    o("s_mov_b32 s59, s58")
    o("s_mov_b32 s60, 0xffff0000")
    o("s_brev_b32 s61, 1")
    o("v_mov_b32 v62, 1")
    o("s_waitcnt vmcnt(4)")
    lds_sync("W", None, 3, 61, 62, 60)
    for kc in range(4):
        for m in range(4):
            o(f"ds_read2_b32 v[{96+8*kc+2*m}:{97+8*kc+2*m}], v{48+kc} offset0:{64*m} offset1:{64*m+32}")
        if kc == 2: o("s_waitcnt lgkmcnt(8)")
    for kc in range(4):
        o(f"s_waitcnt lgkmcnt({12-4*kc})")
        for m in range(4):
            a, b = 96 + 8*kc + 2*m, 97 + 8*kc + 2*m
            o(f"v_perm_b32 v{8+8*kc+m}, v{b}, v{a}, s56")
            o(f"v_perm_b32 v{12+8*kc+m}, v{b}, v{a}, s57")
    o("s_waitcnt vmcnt(0)")
    stamp(1)
    for kc in range(4):
        o(f"ds_read_b128 v[{72+4*kc}:{75+4*kc}], v{44+kc}")
    for kc in range(4):
        o(f"s_waitcnt lgkmcnt({3-kc})")
        cl = "0" if kc == 0 else "v[96:111]"
        ch = "0" if kc == 0 else "v[112:127]"
        o(f"v_mfma_f32_32x32x16_bf16 v[96:111], v[{8+8*kc}:{11+8*kc}], v[{72+4*kc}:{75+4*kc}], {cl}")
        o(f"v_mfma_f32_32x32x16_bf16 v[112:127], v[{12+8*kc}:{15+8*kc}], v[{72+4*kc}:{75+4*kc}], {ch}")
    o("v_mov_b32 v7, 0")
    o("s_nop 7")
    o("s_nop 3")
    for r in range(0, 32, 2):
        o(f"v_pk_mul_f32 v[{96+r}:{97+r}], v[{96+r}:{97+r}], s[58:59]")
    for r in range(16):
        lo, hi, w = 96 + r, 112 + r, 48 + r
        o(f"v_cvt_pk_bf16_f32 v{w}, v{lo}, v{lo}")
        o(f"v_and_b32 v39, 0x7fffffff, v{hi}")
        o(f"v_add_u32 v39, 0x8000, v39")
        o(f"v_sub_u32_sdwa v39, v39, v{w} clamp dst_sel:DWORD dst_unused:UNUSED_PAD src0_sel:DWORD src1_sel:WORD_0")
        o(f"v_max3_f32 v7, |v{lo}|, |v{hi}|, v7")
        o(f"v_bfi_b32 v39, s61, v{hi}, v39")
        o(f"v_bfi_b32 v{w}, s60, v39, v{w}")
        if r % 4 == 3:
            m = r // 4
            o(f"ds_write_b128 v{40+m}, v[{48+4*m}:{51+4*m}]")
    stamp(2)
    o(f"v_cmp_ngt_f32 vcc, 0x{TEN:08x}, v7")
    o(f"s_mov_b64 {sr(sVIO,2)}, vcc")
    bulk_dma()
    o("s_waitcnt lgkmcnt(0)")
    for m in range(4):
        o(f"ds_read_b128 v[{64+4*m}:{67+4*m}], v5 offset:{m*1024}")
    for m in range(4):
        o(f"s_waitcnt lgkmcnt({3-m})")
        o(f"buffer_store_dwordx4 v[{64+4*m}:{67+4*m}], v{92+m}, {sr(sP,4)}, 0 offen offset:{1024*m}{SST}")

    lab("PH1_DONE")
    o("v_mov_b32 v6, 0")
    o("v_mov_b32 v7, 1")
    o(f"s_cmp_eq_u64 {sr(sVIO,2)}, 0")
    o("s_cbranch_scc1 V1")
    o(f"ds_write_b32 v6, v7 offset:{FLAGS}")
    lab("V1")
    srd(sWS, 20, size=WS_SIZE)
    srd(sP, 20, size=P_SIZE)
    o(f"s_lshr_b32 s{sTILE}, s22, 1")
    o(f"s_and_b32 s{sHALF}, s22, 1")
    o(f"s_lshl_b32 s3, s{sTILE}, 11")
    o(f"s_add_u32 s{sROWB}, s90, s3")
    o(f"s_movk_i32 s{sK}, 0x3f80")
    o(f"s_movk_i32 s{sRS}, {RS}")
    o(f"s_mov_b32 s{sM24}, {os.environ.get('M24', '0xffffff')}")
    o(f"s_mov_b32 s{sRND}, 0")
    o(f"s_mov_b32 s{sRDONE}, 0")
    o(f"s_mov_b32 s{sSTEP}, 32")
    o(f"s_mov_b32 s{sREC}, {REC_OFF}")
    o("v_and_b32 v40, 3, v0")
    o("v_bfe_u32 v41, v0, 2, 2")
    o("v_bfe_u32 v42, v0, 4, 2")
    o("v_lshlrev_b32 v42, 10, v42")
    o("v_lshl_add_u32 v42, v41, 4, v42")
    o("v_lshl_add_u32 v43, v40, 1, v42")
    o("v_lshl_add_u32 v42, v40, 2, v42")
    o("s_lshr_b32 s52, s22, 3")
    o("s_lshl_b32 s52, s52, 6")
    o("s_bfe_u32 s53, s22, 0x10002")
    o("s_lshl_b32 s53, s53, 3")
    o("s_add_u32 s52, s52, s53")
    o("s_and_b32 s53, s22, 3")
    o("s_lshl_b32 s53, s53, 12")
    o("s_add_u32 s52, s52, s53")
    o("v_add_u32 v43, s52, v43")
    o("s_bfe_u32 s52, s22, 0x10002")
    o("s_lshl_b32 s52, s52, 6")
    o("s_bfe_u32 s53, s22, 0x10001")
    o("s_lshl_b32 s53, s53, 1")
    o("s_sub_u32 s52, s52, s53")
    o("s_add_u32 s52, s52, 2")
    o("s_and_b32 s53, s22, 1")
    o("s_lshl_b32 s53, s53, 12")
    o("s_add_u32 s52, s52, s53")
    o("v_add_u32 v42, s52, v42")
    o(f"v_and_b32 v{vJ16}, 7, v0")
    o(f"v_lshlrev_b32 v{vJ16}, 4, v{vJ16}")
    o("s_waitcnt vmcnt(0) lgkmcnt(0)")
    o("s_barrier")
    stamp(3)
    cstamp("a", 1)
    o("s_cmp_lg_u32 s22, 12")
    o("s_cbranch_scc1 NODESC")
    o(f"ds_read_b128 v[44:47], v6 offset:{FLAGS}")
    o("v_and_b32 v19, 63, v0")
    o("v_lshlrev_b32 v19, 12, v19")
    o("s_lshl_b32 s52, s2, 4")
    o(f"s_add_u32 s52, s52, {DESC_OFF}")
    o("s_waitcnt lgkmcnt(0)")
    o("v_lshl_or_b32 v21, v44, 31, v21")
    o("v_mov_b32 v22, v46")
    o("v_mov_b32 v23, v47")
    o(f"buffer_store_dwordx4 v[20:23], v19, {sr(sWS,4)}, s52 offen{SC1}")
    lab("NODESC")
    for t in range(8):
        o(f"ds_read_u16 v{56+t}, v43 offset:{RAWU + 128*t}")
    o(f"ds_read_b128 v[120:123], v{vJ16} offset:{RAW2 + 8192}")
    o("s_cmp_gt_u32 s22, 7")
    o("s_cbranch_scc1 NOW2")
    o("s_waitcnt lgkmcnt(4)")
    for t in range(8):
        o(f"ds_read_u16 v{64+t}, v42 offset:{RAW2 + 128*t}")
    o("s_waitcnt lgkmcnt(0)")
    for m in range(4):
        o(f"v_lshl_or_b32 v{76+m}, v{65+2*m}, 16, v{64+2*m}")
    o(f"ds_write_b128 v124, v[76:79] offset:{W2F}")
    lab("NOW2")
    o(f"v_add_u32 v125, {WUF}, v124")
    o(f"s_mov_b32 s90, 0x{NLOG2E:08x}")
    o("s_mov_b32 s91, s90")
    o("s_waitcnt lgkmcnt(0)")
    for m in range(4):
        o(f"v_lshl_or_b32 v{72+m}, v{57+2*m}, 16, v{56+2*m}")
    o("ds_write_b128 v125, v[72:75]")
    for k in range(4):
        o(f"v_and_b32 v{W+k}, 0xffff0000, v{120+k}")
        o(f"v_lshlrev_b32 v{W+4+k}, 16, v{120+k}")
    for p in range(4):
        pk("mul", W+2*p, vr(W+2*p,2), "s[90:91]")
    o(f"v_add_u32 v{vQC}, {QT}, v{vJ16}")
    o("v_lshrrev_b32 v125, 3, v0")
    o(f"v_mov_b32 v{vOC}, {(PART-QT) & 0xffffffff}")
    o(f"v_mad_u32_u24 v{vOC}, v125, s{sRS}, v{vOC}")
    o("v_and_b32 v72, 63, v0")
    o("v_lshlrev_b32 v72, 4, v72")
    o(f"s_lshl_b32 s52, s{sHALF}, 12")
    o("v_add_u32 v72, s52, v72")
    o("v_and_b32 v73, 15, v0")
    o(f"s_lshl_b32 s52, s{sTILE}, 4")
    o("v_add_u32 v73, s52, v73")
    o("v_and_b32 v74, 48, v0")
    o("v_lshlrev_b32 v75, 4, v0")
    o("v_and_b32 v75, 0x70, v75")
    o("v_xor_b32 v75, v75, v74")
    o("v_lshl_add_u32 v75, v73, 7, v75")
    o(f"v_add_u32 v75, {XT}, v75")
    o("v_xor_b32 v76, 64, v75")
    o(f"v_mad_u32_u24 v73, v73, s{sRS}, v74")
    o(f"s_lshl_b32 s3, s{sHALF}, 6")
    o(f"s_add_u32 s3, s3, {QT}")
    o("v_add_u32 v73, s3, v73")
    o("s_waitcnt lgkmcnt(0)")
    o("s_barrier")
    o(f"s_mov_b64 {sr(sVIO,2)}, 0")
    o("s_cmp_ge_u32 s22, 14")
    o("s_cbranch_scc1 NOQ")
    o("ds_read_b128 v[88:91], v75")
    o(f"ds_read_b128 v[96:99], v72 offset:{W2F}")
    o(f"ds_read_b128 v[104:107], v72 offset:{W2F+2048}")
    o("ds_read_b128 v[92:95], v76")
    o(f"ds_read_b128 v[100:103], v72 offset:{W2F+1024}")
    o(f"ds_read_b128 v[108:111], v72 offset:{W2F+3072}")
    o("s_waitcnt lgkmcnt(3)")
    o(f"v_mfma_f32_16x16x32_bf16 v[112:115], v[96:99], v[88:91], 0")
    o(f"v_mfma_f32_16x16x32_bf16 v[116:119], v[104:107], v[88:91], 0")
    o("s_waitcnt lgkmcnt(0)")
    o(f"v_mfma_f32_16x16x32_bf16 v[112:115], v[100:103], v[92:95], v[112:115]")
    o(f"v_mfma_f32_16x16x32_bf16 v[116:119], v[108:111], v[92:95], v[116:119]")
    o("s_nop 7")
    for p in range(4):
        pk("mul", 112+2*p, vr(112+2*p,2), "s[90:91]")
    o("ds_write_b128 v73, v[112:115]")
    o("ds_write_b128 v73, v[116:119] offset:128")
    o("v_max3_f32 v125, |v112|, |v113|, |v114|")
    o("v_max3_f32 v125, |v115|, |v116|, v125")
    o("v_max3_f32 v125, |v117|, |v118|, v125")
    o("v_max_f32 v125, |v119|, v125")
    o(f"v_cmp_ngt_f32 vcc, 0x{TEN:08x}, v125")
    o("s_cmp_eq_u64 vcc, 0")
    o("s_cbranch_scc1 NOQV")
    o(f"ds_write_b32 v6, v7 offset:{FLAGS}")
    lab("NOQV")
    silu_f(A, 112)
    lab("NOQ")
    prefill()
    o("v_and_b32 v7, 15, v0")
    o("v_add_u32 v6, 16, v7")
    o("v_lshrrev_b32 v72, 2, v0")
    o("v_and_b32 v72, 0xfc, v72")
    o("s_cmp_lg_u32 s22, 15")
    o("s_cbranch_scc1 DSKIP")
    o(f"ds_read_b64 v[74:75], v121 offset:{FLAGS+8}")
    o("v_lshlrev_b32 v76, 1, v125")
    o(f"s_lshr_b32 s3, s{sBK}, 2")
    o("s_lshl_b32 s3, s3, 12")
    o(f"s_add_u32 s3, s3, {DESC_OFF}")
    o(f"s_and_b32 s53, s{sBK}, 3")
    o("s_mul_i32 s54, s53, 12")
    o("s_cmp_eq_u32 s53, 3")
    o("s_cselect_b32 s54, 4, s54")
    o("v_mul_u32_u24 v73, 200, v76")
    for i in range(4):
        o(f"s_mov_b64 {sr(sMASK+2*i,2)}, 0")
    o(f"s_mov_b32 s52, {SPIN}")
    o("s_waitcnt lgkmcnt(0)")
    lab("DPOLL")
    for i in range(4):
        o(f"s_not_b64 exec, {sr(sMASK+2*i,2)}")
        o(f"s_cbranch_execz DP{i}")
        o(f"buffer_load_dwordx4 {vr(56+4*i,4)}, v76, {sr(sWS,4)}, s3 offen offset:{1024*i}{SC1}")
        lab(f"DP{i}")
    o("s_mov_b64 exec, -1")
    o("s_waitcnt vmcnt(0)")
    for i in range(4):
        o(f"v_cmp_eq_u64 {sr(sMASK+2*i,2)}, v[74:75], {vr(58+4*i,2)}")
    o(f"s_and_b64 {sr(sMASK+8,2)}, {sr(sMASK,2)}, {sr(sMASK+2,2)}")
    o(f"s_and_b64 {sr(sMASK+10,2)}, {sr(sMASK+4,2)}, {sr(sMASK+6,2)}")
    o(f"s_and_b64 {sr(sMASK+8,2)}, {sr(sMASK+8,2)}, {sr(sMASK+10,2)}")
    o(f"s_cmp_eq_u64 {sr(sMASK+8,2)}, -1")
    o("s_cbranch_scc1 DOK")
    o("s_sub_u32 s52, s52, 1")
    o("s_cmp_eq_u32 s52, 0")
    o("s_cbranch_scc1 DOK")
    o(f"s_sleep {SLEEP}")
    o("s_branch DPOLL")
    lab("DOK")
    o("s_cmp_lg_u32 s2, 0")
    o("s_cbranch_scc1 DNC")
    o("v_mov_b32 v77, 0")
    o("v_mov_b64 v[78:79], 0")
    o("s_mov_b64 exec, 1")
    o(f"global_store_dwordx2 v77, v[78:79], s[18:19] offset:{NONOFF} sc1")
    o("s_mov_b64 exec, -1")
    lab("DNC")
    o("v_or3_b32 v77, v57, v61, v65")
    o("v_or_b32 v77, v77, v69")
    o("v_cmp_gt_i32 vcc, 0, v77")
    o("s_cmp_eq_u64 vcc, 0")
    o("s_cbranch_scc1 DNF")
    o("v_mov_b32 v77, 1")
    o(f"ds_write_b32 v121, v77 offset:{FLAGS}")
    lab("DNF")
    o("s_cmp_lg_u32 s53, 3")
    o("s_cbranch_scc1 DK3")
    for i in range(4):
        o(f"v_mov_b32 v{56+4*i}, v{57+4*i}")
    lab("DK3")
    o("v_lshrrev_b32 v76, 2, v76")
    for i in range(4):
        o(f"v_alignbit_b32 v{56+4*i}, v{57+4*i}, v{56+4*i}, s54")
        o(f"v_bfe_u32 v{57+4*i}, v{56+4*i}, 12, 12")
        o(f"v_and_b32 v{56+4*i}, 0xfff, v{56+4*i}")
        o(f"v_sub_u32 v{57+4*i}, v{57+4*i}, v{56+4*i}")
        o(f"v_add_u32 v{56+4*i}, v{56+4*i}, v73")
        if i: o(f"v_add_u32 v{56+4*i}, {204800*i}, v{56+4*i}")
        o(f"v_lshl_or_b32 v{56+4*i}, v{57+4*i}, 20, v{56+4*i}")
        o(f"ds_write_b32 v76, v{56+4*i} offset:{DLDS + 256*i}")
    lab("DSKIP")
    o("s_waitcnt lgkmcnt(0)")
    o("s_barrier")
    stamp(4)
    cstamp("a", 2)
    o(f"ds_read2st64_b32 {vr(DESC,2)}, v72 offset0:{DLDS//256} offset1:{DLDS//256+1}")
    o(f"ds_read2st64_b32 {vr(DESC+2,2)}, v72 offset0:{DLDS//256+2} offset1:{DLDS//256+3}")
    o("s_waitcnt lgkmcnt(0)")
    lab("K2_ROUND")
    o(f"s_add_u32 s90, s{sRND}, s{sSTEP}")
    o("s_mov_b32 s3, 0xfffff")
    o(f"s_mov_b32 s52, {RECB_OFF}")
    for i in range(4):
        o(f"v_lshrrev_b32 v{80+i}, 20, v{DESC+i}")
        o(f"v_and_b32 v84, s3, v{DESC+i}")
        o(f"v_cmp_lt_u32 {sr(sMASK+4*i,2)}, v7, v{80+i}")
        o(f"v_cmp_lt_u32 {sr(sMASK+4*i+2,2)}, v6, v{80+i}")
        o(f"v_add_u32 v84, v84, v7")
        o(f"v_lshlrev_b32 v85, 2, v84")
        o(f"s_mov_b64 exec, {sr(sMASK+4*i,2)}")
        o(f"buffer_load_ubyte v{56+4*i}, v84, {sr(sWS,4)}, s52 offen{SC1}")
        o(f"buffer_load_dword v{57+4*i}, v85, {sr(sWS,4)}, s{sREC} offen{SC1}")
        o(f"s_mov_b64 exec, {sr(sMASK+4*i+2,2)}")
        o(f"s_cbranch_execz K2_T2_{i}")
        o(f"buffer_load_ubyte v{58+4*i}, v84, {sr(sWS,4)}, s52 offen offset:16{SC1}")
        o(f"buffer_load_dword v{59+4*i}, v85, {sr(sWS,4)}, s{sREC} offen offset:64{SC1}")
        lab(f"K2_T2_{i}")
        o("s_mov_b64 exec, -1")
    o("v_max3_u32 v80, v80, v81, v82")
    o("v_max_u32 v80, v80, v83")
    o("v_cmp_lt_u32 s[54:55], s90, v80")
    o("v_mov_b32 v7, 1")
    o("v_mov_b32 v6, 0")
    o("s_cmp_eq_u64 s[54:55], 0")
    o("s_cbranch_scc1 K2_F2")
    o(f"ds_write_b32 v6, v7 offset:{FLAGS+4}")
    lab("K2_F2")
    o("v_and_b32 v5, 63, v0")
    o("v_lshlrev_b32 v5, 3, v5")
    o(f"s_movk_i32 s3, {SLOT}")
    o("s_waitcnt vmcnt(0)")
    stamp(5)
    if PREF:
        o(f"s_cmp_lg_u32 s{sRND}, 0")
        o("s_cbranch_scc1 NOPF")
        o("s_cmp_gt_u32 s22, 12")
        o("s_cbranch_scc1 NOPF")
        o("s_lshr_b32 s52, s2, 3")
        o("s_mul_i32 s52, s52, 102400")
        o("v_lshlrev_b32 v44, 7, v0")
        o(f"buffer_load_dword v127, v44, {sr(sP,4)}, s52 offen{SC1}")
        lab("NOPF")
    for i in range(8):
        o(f"v_lshlrev_b32 v{100+i}, 2, v{56+2*i}")
    for i in range(8):
        masked(i, "K2_RK", f"ds_add_rtn_u32 v{80+i}, v{100+i}, v7 offset:{CNT}")
    o("s_mov_b64 exec, -1")
    for i in range(8):
        o(f"v_lshlrev_b32_sdwa v108, 7, v{57+2*i} dst_sel:DWORD dst_unused:UNUSED_PAD src0_sel:DWORD src1_sel:WORD_0")
        o(f"v_and_b32 v{57+2*i}, 0xffff0000, v{57+2*i}")
        o(f"v_lshl_or_b32 v{56+2*i}, v{56+2*i}, 24, v108")
    o("s_waitcnt lgkmcnt(0)")
    o("s_barrier")
    stamp(6)
    o(f"ds_read_b64 v[88:89], v5 offset:{CNT}")
    o(f"ds_read_b64 v[90:91], v6 offset:{FLAGS}")
    o("s_waitcnt lgkmcnt(1)")
    o("v_add_u32 v92, 3, v88")
    o("v_add_u32 v93, 3, v89")
    o("v_lshrrev_b32 v92, 2, v92")
    o("v_lshrrev_b32 v93, 2, v93")
    o("v_add_u32 v94, v92, v93")
    o("v_mov_b32 v95, v94")
    wave_scan(95)
    o("v_sub_u32 v96, v95, v94")
    o("v_add_u32 v97, v96, v92")
    o("v_lshl_add_u32 v98, v96, 5, s3")
    o("v_lshl_add_u32 v99, v97, 5, s3")
    o(f"ds_write_b64 v5, v[98:99] offset:{OFFS}")
    o(f"v_readlane_b32 s{sQN}, v95, 63")
    o("s_waitcnt lgkmcnt(0)")
    for i in range(8):
        masked(i, "K2_OF", f"ds_read_b32 v{100+i}, v{100+i} offset:{OFFS}")
    o("s_mov_b64 exec, -1")
    o(f"s_cmp_gt_u32 s{sQN}, {NSLOT//4 - 12}")
    o("s_cbranch_scc1 K2_NARROW")
    o(f"v_readfirstlane_b32 s{sSLOW}, v90")
    o(f"v_readfirstlane_b32 s{sMORE}, v91")
    o(f"s_add_u32 s{sS}, s{sQN}, 7")
    o(f"s_lshr_b32 s{sS}, s{sS}, 3")
    o(f"s_lshr_b32 s{sBASE}, s{sS}, 4")
    o(f"s_and_b32 s{sREM}, s{sS}, 15")
    o(f"s_cmp_lt_u32 s22, s{sREM}")
    o(f"s_cselect_b32 s{sRW}, 1, 0")
    o(f"s_add_u32 s{sRW}, s{sRW}, s{sBASE}")
    o(f"s_mul_i32 s3, s{sBASE}, s22")
    o(f"s_min_u32 s90, s22, s{sREM}")
    o("s_add_u32 s3, s3, s90")
    o("s_lshl_b32 s3, s3, 8")
    o(f"s_add_u32 s3, s3, {SLOT}")
    o(f"s_lshl_b32 s90, s{sRW}, 5")
    o("v_bfe_u32 v7, v0, 3, 3")
    o(f"v_mov_b32 v{vSLOT}, s3")
    o(f"v_mad_u32_u24 v{vSLOT}, v7, s90, v{vSLOT}")
    o("s_waitcnt lgkmcnt(0)")
    for i in range(8):
        o(f"v_lshl_add_u32 v{100+i}, v{80+i}, 3, v{100+i}")
    for i in range(8):
        masked(i, "K2_SC", f"ds_write_b64 v{100+i}, {vr(56+2*i,2)}")
    o("s_mov_b64 exec, -1")
    o("s_waitcnt lgkmcnt(0)")
    o("s_barrier")
    stamp(7)
    cstamp("b", 1)

    o("s_cmp_lg_u32 s22, 15")
    o("s_cbranch_scc1 K2_NONI")
    o(f"s_add_u32 s3, s{sBASE}, 1")
    o("v_cvt_f32_u32 v44, s3")
    o(f"v_cvt_f32_u32 v45, s{sBASE}")
    o("v_rcp_f32 v44, v44")
    o("v_rcp_f32 v45, v45")
    o(f"s_mul_i32 s3, s3, s{sREM}")
    o("s_lshl_b32 s3, s3, 3")
    o("v_cvt_f32_u32 v46, s3")
    o(f"s_lshl_b32 s90, s{sREM}, 3")
    o("v_add_u32 v100, -1, v97")
    o("v_add_u32 v101, -1, v95")
    for q in (96, 97, 100, 101):
        o(f"v_cvt_f32_u32 v48, v{q}")
        o("v_add_f32 v48, 0.5, v48")
        o("v_sub_f32 v49, v48, v46")
        o("v_mul_f32 v48, v48, v44")
        o("v_mul_f32 v49, v49, v45")
        o("v_cvt_u32_f32 v48, v48")
        o("v_cvt_u32_f32 v49, v49")
        o(f"v_cmp_gt_u32 vcc, s3, v{q}")
        o("v_add_u32 v49, s90, v49")
        o("s_nop 0")
        o(f"v_cndmask_b32 v{q}, v49, v48, vcc")
    for (rf, rl, nq, cn) in ((96, 100, 92, 88), (97, 101, 93, 89)):
        o(f"v_sub_u32 v{rl}, v{rl}, v{rf}")
        o(f"v_add_u32 v{rl}, 1, v{rl}")
        o(f"v_cmp_lt_u32 vcc, 0, v{nq}")
        o(f"v_lshlrev_b32 v{nq}, 2, v{nq}")
        o(f"v_sub_u32 v{nq}, v{nq}, v{cn}")
        o(f"v_cndmask_b32 v{rl}, 0, v{rl}, vcc")
        o(f"v_and_b32 v{rf}, 0xff, v{rf}")
        o(f"v_lshl_or_b32 v{rf}, v{rl}, 8, v{rf}")
        o(f"v_lshl_or_b32 v{rf}, v{nq}, 16, v{rf}")
    o(f"ds_write_b64 v5, v[96:97] offset:{NINFO}")
    lab("K2_NONI")
    o(f"s_cmp_eq_u32 s{sRW}, 0")
    o("s_cbranch_scc1 K2_MAIN_DONE")
    o(f"s_cmp_lg_u32 s{sSLOW}, 0")
    o("s_cbranch_scc1 K2_MAIN_S")
    gen_main("F", False)
    gen_main("S", True)
    lab("K2_MAIN_DONE")
    o("s_waitcnt lgkmcnt(0)")
    stamp(8)
    cstamp("b", 2)
    o("s_cmp_ge_u32 s22, 14")
    o("s_cbranch_scc1 K2_IDLE")
    o("v_and_b32 v6, 15, v0")
    o(f"s_lshl_b32 s3, s{sTILE}, 4")
    o("v_add_u32 v6, s3, v6")
    o("v_and_b32 v5, 48, v0")
    o("v_lshlrev_b32 v7, 2, v6")
    o(f"s_lshl_b32 s3, s{sHALF}, 6")
    o("v_add_u32 v36, s3, v5")
    o(f"v_mad_u32_u24 v37, v6, s{sRS}, v36")
    o(f"v_add_u32 v37, {PART}, v37")
    o(f"s_movk_i32 s3, {AGG_STRIDE}")
    o("v_mad_u32_u24 v41, v6, s3, v36")
    o("v_mad_u32_u24 v42, v6, s3, v5")
    o("v_lshlrev_b32 v40, 4, v0")
    o("v_and_b32 v40, 0x70, v40")
    o("v_xor_b32 v40, v40, v5")
    o("v_lshl_add_u32 v40, v6, 7, v40")
    o(f"v_add_u32 v40, {XT}, v40")
    o("v_xor_b32 v44, 64, v40")
    o("v_and_b32 v43, 63, v0")
    o("v_lshlrev_b32 v43, 4, v43")
    o(f"s_lshl_b32 s3, s{sHALF}, 13")
    o(f"s_add_u32 s3, s3, {WUF}")
    o("v_add_u32 v43, s3, v43")
    o("ds_read_b128 v[88:91], v40")
    o("ds_read_b128 v[92:95], v44")
    for ks in range(4):
        for sub in range(2):
            o(f"ds_read_b128 {vr(56+16*sub+4*ks,4)}, v43 offset:{4096*sub + 1024*ks}")
    srd(sOUT, 16, size=N*128)
    o(f"s_mov_b32 s90, 0x{NLN2:08x}")
    o("s_mov_b32 s91, s90")
    bop = ["v[88:91]", "v[92:95]", "v[96:99]", "v[100:103]"]
    def mm(ks):
        for sub in range(2):
            dd = vr(48+4*sub, 4)
            o(f"v_mfma_f32_16x16x32_bf16 {dd}, {vr(56+16*sub+4*ks,4)}, {bop[ks]}, {'0' if ks == 0 else dd}")
    o("s_waitcnt lgkmcnt(0)")
    mm(0); mm(1)
    o("s_barrier")
    stamp(9)
    o(f"ds_read_b32 v38, v7 offset:{NINFO}")
    o(f"s_cmp_eq_u32 s{sRDONE}, 0")
    o("s_cbranch_scc1 K2_R0")
    o(f"v_add_u32 v39, {(QT-PART) & 0xffffffff}, v37")
    o("ds_read_b128 v[104:107], v39")
    o("ds_read_b128 v[108:111], v39 offset:128")
    o("s_waitcnt lgkmcnt(0)")
    silu_f(96, 104)
    o("v_lshrrev_b32 v39, 16, v38")
    o("v_cvt_f32_u32 v39, v39")
    o("v_cmp_lt_f32 vcc, 0, v39")
    o("s_and_saveexec_b64 s[80:81], vcc")
    for k in range(8):
        o(f"v_fma_f32 v{A+k}, -v39, v{96+k}, v{A+k}")
    o("s_mov_b64 exec, -1")
    o("v_and_b32 v39, 0xff, v38")
    o(f"v_mad_u32_u24 v37, v39, s{sRS}, v37")
    o("v_bfe_u32 v38, v38, 8, 8")
    o("s_branch K2_RED")
    lab("K2_R0")
    o("s_waitcnt lgkmcnt(0)")
    o("v_and_b32 v39, 0xff, v38")
    o(f"v_mad_u32_u24 v37, v39, s{sRS}, v37")
    for m in range(3):
        o(f"ds_read_b128 {vr(96+8*m,4)}, v37 offset:{RS*m}")
        o(f"ds_read_b128 {vr(100+8*m,4)}, v37 offset:{RS*m+128}")
    o("v_cvt_f32_ubyte2 v44, v38")
    o("v_bfe_u32 v38, v38, 8, 8")
    for p in range(4):
        pk("mul", A+2*p, vr(A+2*p,2), "v[44:45]", mods="op_sel_hi:[1,0] neg_lo:[0,1] neg_hi:[0,1]")
    o(f"s_cmp_eq_u32 s{sSLOW}, 0")
    o("s_cbranch_scc1 K2_RED2")
    o("v_cmp_eq_f32 vcc, 0, v44")
    o("s_and_b64 exec, exec, vcc")
    for p in range(4):
        o(f"v_mov_b64 {vr(A+2*p,2)}, 0")
    o("s_mov_b64 exec, -1")
    o("s_branch K2_RED2")
    lab("K2_RED")
    for m in range(3):
        o(f"ds_read_b128 {vr(96+8*m,4)}, v37 offset:{RS*m}")
        o(f"ds_read_b128 {vr(100+8*m,4)}, v37 offset:{RS*m+128}")
    lab("K2_RED2")
    o(f"v_add_u32 v37, {3*RS}, v37")
    for m in range(3):
        o(f"v_cmp_lt_i32 vcc, {m}, v38")
        o("s_and_b64 exec, exec, vcc")
        o(f"s_waitcnt lgkmcnt({4-2*m})")
        for p in range(4):
            pk("add", A+2*p, vr(A+2*p,2), vr(96+8*m+2*p,2))
    o("v_cmp_lt_i32 vcc, 3, v38")
    o("v_subrev_u32 v38, 3, v38")
    o("s_and_b64 exec, exec, vcc")
    o("s_cbranch_execnz K2_RED")
    o("s_mov_b64 exec, -1")
    o(f"s_cmp_eq_u32 s{sMORE}, 0")
    o("s_cbranch_scc1 K2_FINAL")
    lab("K2_NEXT")
    o(f"s_add_u32 s{sRND}, s{sRND}, s{sSTEP}")
    o(f"s_add_u32 s{sRDONE}, s{sRDONE}, 1")
    lab("K2_REDO")
    o("s_waitcnt lgkmcnt(0)")
    o("s_barrier")
    prefill()
    o("v_and_b32 v7, 15, v0")
    o(f"v_add_u32 v7, s{sRND}, v7")
    o("v_add_u32 v6, 16, v7")
    o(f"s_cmp_eq_u32 s{sSTEP}, 32")
    o("s_cbranch_scc1 K2_WIDE")
    o("v_mov_b32 v6, 0x100000")
    lab("K2_WIDE")
    o("s_waitcnt lgkmcnt(0)")
    o("s_barrier")
    o("s_branch K2_ROUND")
    lab("K2_NARROW")
    o(f"s_mov_b32 s{sSTEP}, 16")
    o("s_branch K2_REDO")
    lab("K2_IDLE")
    o("s_barrier")
    o(f"s_cmp_eq_u32 s{sMORE}, 0")
    o("s_cbranch_scc0 K2_NEXT")
    o("s_branch K2_END")
    lab("K2_FINAL")
    for p in range(4):
        pk("mul", A+2*p, vr(A+2*p,2), "s[90:91]")
    for k in range(4):
        o(f"v_cvt_pk_bf16_f32 v{96+k}, v{A+4+k}, v{A+k}")
    o(f"ds_write_b128 v41, v[96:99] offset:{AGG}")
    o("s_mul_i32 s3, s22, 1280")
    o("v_and_b32 v36, 15, v0")
    o("v_mul_u32_u24 v36, 80, v36")
    o("v_add3_u32 v36, v36, v5, s3")
    o("v_bfe_u32 v37, v0, 2, 4")
    o("v_and_b32 v38, 3, v0")
    o("v_lshlrev_b32 v38, 4, v38")
    o("v_mul_u32_u24 v39, 80, v37")
    o("v_add3_u32 v39, v39, v38, s3")
    o("v_lshl_add_u32 v4, v37, 7, v38")
    o(f"s_lshl_b32 s3, s{sHALF}, 6")
    o(f"s_add_u32 s3, s3, s{sROWB}")
    o("v_add_u32 v4, s3, v4")
    o(f"s_lshl_b32 s3, s{sTILE}, 4")
    o("s_sub_u32 s3, 98, s3")
    o("v_cmp_gt_u32 vcc, s3, v37")
    o(f"s_mov_b32 s90, 0x{NLOG2E:08x}")
    o("s_mov_b32 s91, s90")
    o("s_waitcnt lgkmcnt(0)")
    o("s_barrier")
    stamp(10)
    o(f"ds_read_b128 v[96:99], v42 offset:{AGG}")
    o(f"ds_read_b128 v[100:103], v42 offset:{AGG+64}")
    o("s_waitcnt lgkmcnt(1)")
    mm(2)
    o("s_waitcnt lgkmcnt(0)")
    mm(3)
    o("s_nop 7")
    for p in range(4):
        pk("mul", 112+2*p, vr(48+2*p,2), "s[90:91]")
    for k in range(8):
        o(f"v_exp_f32 v{112+k}, v{112+k}")
    o("s_nop 0")
    for p in range(4):
        pk("add", 112+2*p, vr(112+2*p,2), "1.0", mods="op_sel_hi:[1,0]")
    for k in range(8):
        o(f"v_rcp_f32 v{112+k}, v{112+k}")
    o("s_nop 0")
    for p in range(4):
        pk("mul", 112+2*p, vr(112+2*p,2), vr(48+2*p,2))
    for k in range(4):
        o(f"v_cvt_pk_bf16_f32 v{120+k}, v{112+2*k}, v{113+2*k}")
    o(f"ds_write_b128 v36, v[120:123] offset:{OTR}")
    o("s_waitcnt lgkmcnt(0)")
    o(f"ds_read_b128 v[120:123], v39 offset:{OTR}")
    o("s_and_b64 exec, exec, vcc")
    o("s_cbranch_execz K2_END")
    o("s_waitcnt lgkmcnt(0)")
    o(f"buffer_store_dwordx4 v[120:123], v4, {sr(sOUT,4)}, 0 offen{os.environ.get('OSC',' sc1')}")
    lab("K2_END")
    if STAMP: o("s_waitcnt vmcnt(0)")
    stamp(11)
    stamp_flush(12)
    lab("K2_EXIT")
    o("s_endpgm")

def main(path):
    hdr = open("gather_scatter__mpnn_edge_mlp__graph.s.ref").read().split("\n")
    head = [h for h in hdr if h.startswith(";") and "@launch" not in h]
    L.extend(head)
    L.append(f"; @launch grid=({NBK},1,1) block=(1024,1,1) lds={LDS}")
    L.append('.amdgcn_target "amdgcn-amd-amdhsa--gfx950"')
    L.append(".text")
    gen()
    L.append('.section .rodata,"a"')
    L.append(".p2align 6")
    L.append(f".amdhsa_kernel {KN}")
    L.append("  .amdhsa_next_free_vgpr 128")
    L.append(f"  .amdhsa_next_free_sgpr {102 if STAMP else 100}")
    L.append("  .amdhsa_accum_offset 128")
    L.append("  .amdhsa_group_segment_fixed_size 0")
    L.append("  .amdhsa_kernarg_size 72")
    L.append("  .amdhsa_user_sgpr_count 2")
    L.append("  .amdhsa_user_sgpr_kernarg_segment_ptr 1")
    L.append("  .amdhsa_system_sgpr_workgroup_id_x 1")
    L.append("  .amdhsa_float_denorm_mode_32 3")
    L.append(".end_amdhsa_kernel")
    open(path, "w").write("\n".join(x for x in L if x is not None) + "\n")
    print(f"{KN}:{NBK}:1024:{LDS}")

if __name__ == "__main__":
    main(sys.argv[1] if len(sys.argv) > 1 else "v7.s")
```
